```python
import torch

def _softmax(x, axis=-1):
    return torch.softmax(x, dim=axis)
def _gelu(x):
    return torch.nn.functional.gelu(x, approximate="tanh")
def _silu(x):
    return torch.nn.functional.silu(x)
def _sigmoid(x):
    return torch.sigmoid(x)
def _layernorm(x, axis=-1, eps=1e-5):
    m = x.mean(dim=axis, keepdim=True)
    v = x.var(dim=axis, keepdim=True, unbiased=False)
    return (x - m) / torch.sqrt(v + eps)
def _scatter_add(tgt, idx, src, axis=0):
    return tgt.clone().index_add_(axis, idx, src)
def _segment_sum(src, seg, n):
    out = torch.zeros((n,) + src.shape[1:], dtype=src.dtype)
    return out.index_add_(0, seg, src)
def _pad(x, pw):
    flat = tuple(v for pair in reversed(pw) for v in pair)
    return torch.nn.functional.pad(x, flat)

kernel_name = 'sequential_preLN__compressed_kv_cla__mixer_channel_mlp__prompt'

def setup_inputs():

    _w = (lambda a: (lambda t: t.to(torch.bfloat16) if t.is_floating_point() else t)(torch.as_tensor(a)))
    def _A_setup():
        B, H, Sq, Sk, D, M = 1, 32, 2048, 2048, 128, 512
        Dc = 4 * D
        return {
            "x": _w((lambda *s: torch.randn(*s, dtype=torch.bfloat16) * 0.05)(B, Sq, M)),
            "c_kv": _w((lambda *s: torch.randn(*s, dtype=torch.bfloat16) * 0.4)(B, Sk, Dc)),
            "w_q": _w((lambda *s: torch.randn(*s, dtype=torch.bfloat16) * 3.2)(M, H, D) * (M ** -0.5)),
            "w_uk": _w((lambda *s: torch.randn(*s, dtype=torch.bfloat16) * 3.2)(Dc, H, D) * (Dc ** -0.5)),
            "w_uv": _w((lambda *s: torch.randn(*s, dtype=torch.bfloat16) * 0.4)(Dc, H, D) * (Dc ** -0.5)),
            "w_o": _w((lambda *s: torch.randn(*s, dtype=torch.bfloat16) * 0.4)(H, D, M) * ((H * D) ** -0.5)),
        }
    _A_in = _A_setup()

    def _B_setup():
        B, S, D, F = 1, 2048, 512, 1376
        return {
            "x": _w((lambda *s: torch.randn(*s, dtype=torch.bfloat16) * 0.05)(B, S, D)),
            "w1": _w((lambda *s: torch.randn(*s, dtype=torch.bfloat16) * 0.8)(D, F) * (D ** -0.5)),
            "b1": _w((lambda *s: torch.randn(*s, dtype=torch.bfloat16) * 0.4)(F)),
            "w2": _w((lambda *s: torch.randn(*s, dtype=torch.bfloat16) * 0.05)(F, D) * (F ** -0.5)),
            "b2": _w((lambda *s: torch.randn(*s, dtype=torch.bfloat16) * 0.05)(D)),
        }
    _B_in = _B_setup()

    return {
        "A_x": _A_in["x"],
        "A_c_kv": _A_in["c_kv"],
        "A_w_q": _A_in["w_q"],
        "A_w_uk": _A_in["w_uk"],
        "A_w_uv": _A_in["w_uv"],
        "A_w_o": _A_in["w_o"],
        "B_x": _B_in["x"],
        "B_w1": _B_in["w1"],
        "B_b1": _B_in["b1"],
        "B_w2": _B_in["w2"],
        "B_b2": _B_in["b2"],
    }

def reference(A_x, A_c_kv, A_w_q, A_w_uk, A_w_uv, A_w_o, B_x, B_w1, B_b1, B_w2, B_b2):
    def _A_ref(x, c_kv, w_q, w_uk, w_uv, w_o):
        B, Sq, M = x.shape[0], x.shape[1], x.shape[2]
        Sk = c_kv.shape[1]
        H, D = w_q.shape[1], w_q.shape[2]
        q = torch.einsum("bqm,mhd->bhqd", x, w_q)
        k = torch.einsum("bkc,chd->bhkd", c_kv, w_uk)
        v = torch.einsum("bkc,chd->bhkd", c_kv, w_uv)
        scores = torch.einsum("bhqd,bhkd->bhqk", q, k) * (D ** -0.5)
        off = Sk - Sq
        qi = torch.arange(Sq)[:, None]
        kj = torch.arange(Sk)[None, :]
        cmask = kj <= (qi + off)
        scores = torch.where(cmask[None, None], scores, -1e9)
        p = _softmax(scores, axis=-1)
        ctx = torch.einsum("bhqk,bhkd->bhqd", p, v)
        return torch.einsum("bhqd,hdm->bqm", ctx, w_o)

    def _B_ref(x, w1, b1, w2, b2):
        y = _layernorm(x, axis=-1)
        h = _gelu(torch.einsum("bsd,df->bsf", y, w1) + b1)
        return torch.einsum("bsf,fd->bsd", h, w2) + b2

    x = A_x
    h = x + _A_ref(_layernorm(x, axis=-1), A_c_kv, A_w_q, A_w_uk, A_w_uv, A_w_o)
    h2 = h + _B_ref(_layernorm(h, axis=-1), B_w1, B_b1, B_w2, B_b2)
    return h2
```

```python
import re, sys
RR = re.compile(r'\b([vas])(?:(\d+)|\[(\d+):(\d+)\])')
def regs(tok):
    out = set()
    for m in RR.finditer(tok):
        k = m.group(1)
        if m.group(2) is not None: out.add((k, int(m.group(2))))
        else:
            for i in range(int(m.group(3)), int(m.group(4)) + 1): out.add((k, i))
    t = tok.strip()
    if t in ('vcc',): out |= {('s', 'vcc')}
    if t in ('vcc_lo', 'vcc_hi'): out |= {('s', 'vcc')}
    if t == 'm0': out.add(('s', 'm0'))
    if t in ('exec', 'exec_lo', 'exec_hi'): out.add(('s', 'exec'))
    return out
TRANS = ('v_exp_f32', 'v_log_f32', 'v_rcp_f32', 'v_rsq_f32', 'v_sqrt_f32', 'v_sin_f32', 'v_cos_f32')
class I:
    def __init__(s, text, idx):
        s.text = text; s.idx = idx
        t = text.split(';')[0].strip()
        p = t.split(None, 1)
        s.op = p[0]; rest = p[1] if len(p) > 1 else ''
        ops = [x.strip() for x in re.split(r',\s*(?![^\[]*\])', rest)] if rest else []
        s.ops = ops
        op = s.op
        for suf in ('_e32', '_e64', '_dpp', '_sdwa'):
            if op.endswith(suf): op = op[:-len(suf)]
        s.b = op
        s.mfma = op.startswith('v_mfma')
        s.valu = op.startswith('v_') and not s.mfma
        s.salu = op.startswith('s_')
        s.ds = op.startswith('ds_')
        s.vmem = op.startswith('buffer_') or op.startswith('global_')
        s.trans = op in TRANS
        s.dpp = any(k in text for k in ('quad_perm', 'row_shr', 'row_ror', 'row_mirror', 'row_half_mirror', 'row_bcast', 'row_shl', 'row_newbcast'))
        s.perml = op.startswith('v_permlane')
        s.w = set(); s.r = set(); s.A = s.B = s.C = set(); s.sdata = set()
        s.states = 1
        if op == 's_nop': s.states = int(ops[0], 0) + 1
        first = lambda x: x.split()[0] if x else x
        if s.mfma:
            s.w = regs(ops[0]); s.A = regs(ops[1]); s.B = regs(ops[2]); s.C = regs(first(ops[3])); s.r = s.A | s.B | s.C
            s.passes = 8 if '32x32' in op else 4
        elif s.valu:
            if op.startswith('v_cmp'):
                s.w = regs(ops[0]); s.r = set().union(*[regs(x) for x in ops[1:]])
                if op.startswith('v_cmpx'): s.w |= {('s', 'exec')}
            elif s.perml and 'swap' in op:
                s.w = regs(ops[0]) | regs(ops[1]); s.r = set(s.w)
            elif op in ('v_add_co_u32', 'v_sub_co_u32', 'v_addc_co_u32'):
                s.w = regs(ops[0]) | regs(ops[1]); s.r = set().union(*[regs(x) for x in ops[2:]])
            elif op == 'v_nop': pass
            else:
                s.w = regs(ops[0]); s.r = set().union(*[regs(first(x)) if i == len(ops) - 2 else regs(x) for i, x in enumerate(ops[1:])]) if len(ops) > 1 else set()
                if op in ('v_fmac_f32', 'v_writelane_b32') or s.dpp: s.r |= s.w
        elif s.ds:
            if op.startswith('ds_read') or op.startswith('ds_bpermute') or op.startswith('ds_swizzle') :
                s.w = regs(ops[0]); s.r = set().union(*[regs(first(x)) for x in ops[1:]])
            else:
                s.r = set().union(*[regs(first(x)) for x in ops])
        elif s.vmem:
            lds = re.search(r'\blds\b', text) is not None
            s.lds = lds
            if 'load' in op and not lds:
                s.w = regs(ops[0]); s.r = set().union(*[regs(first(x)) for x in ops[1:]])
            else:
                s.r = set().union(*[regs(first(x)) for x in ops]) if ops else set()
                if 'store' in op and ('x4' in op or 'x3' in op):
                    s.sdata = regs(ops[0]) if op.startswith('buffer') else regs(ops[1])
            if lds: s.r |= {('s', 'm0')}
        elif s.salu:
            if op.startswith('s_cmp') or op in ('s_waitcnt', 's_barrier', 's_nop', 's_endpgm', 's_setprio', 's_sleep') or 'branch' in op:
                s.r = set().union(*[regs(x) for x in ops]) if ops and op.startswith('s_cmp') else set()
            else:
                s.w = regs(ops[0]) if ops else set(); s.r = set().union(*[regs(x) for x in ops[1:]]) if len(ops) > 1 else set()
                if 'saveexec' in op: s.w |= {('s', 'exec')}
def need(p, c):
    n = 0; why = ''
    def up(v, w):
        nonlocal n, why
        if v > n: n, why = v, w
    vw = {x for x in p.w if x[0] in 'va'}; sw = {x for x in p.w if x[0] == 's'}
    if p.valu:
        if c.mfma and vw & c.r: up(2, 'valu->mfma')
        if c.valu and c.perml and vw & c.r: up(2, 'valu->permlane')
        if c.valu and c.dpp and vw & c.r: up(2, 'valu->dpp')
        if c.b in ('v_readfirstlane_b32', 'v_readlane_b32') and vw & c.r: up(1, 'valu->readlane')
        if p.trans and c.valu and not c.trans and vw & c.r: up(1, 'trans->valu')
        if p.trans and c.mfma and vw & c.r: up(2, 'trans->mfma')
        if c.vmem and sw & c.r: up(5, 'valu sgpr->vmem')
        if c.valu and sw & c.r: up(2, 'valu sgpr->valu')
        if ('s', 'exec') in sw and (c.mfma or c.perml): up(4, 'exec->mfma')
        if ('s', 'exec') in sw and c.dpp: up(5, 'exec->dpp')
    if p.mfma:
        big = p.passes == 8
        if c.mfma:
            if vw & (c.A | c.B): up(12 if big else 8, 'mfma D->mfma A/B')
            if vw & c.C and not (vw == c.C and p.passes == c.passes): up(10 if big else 6, 'mfma D->mfma C partial')
            if vw & c.w and not (vw & c.C) : up(10 if big else 6, 'mfma D->mfma D WAW(conservative)')
        elif (c.valu or c.ds or c.vmem) and vw & (c.r | c.w): up(12 if big else 8, 'mfma D->valu/mem')
        if c.valu and p.C & c.w: up(7 if big else 3, 'mfma C WAR')
    if p.salu and ('s', 'm0') in p.w and c.vmem and getattr(c, 'lds', False): up(1, 'm0->dma')
    if p.vmem and p.sdata:
        if c.valu and p.sdata & c.w: up(2, 'store data WAR valu')
        elif (c.mfma or c.ds or c.vmem) and p.sdata & c.w: up(1, 'store data WAR')
    return n, why
def check(lines, name='', maxd=13):
    ins = []; lab = {}
    for ln in lines:
        t = ln.split(';')[0].strip()
        if not t or t.startswith('.'): continue
        if t.endswith(':'): lab[t[:-1]] = len(ins); continue
        ins.append(I(t, len(ins)))
    pred = [[] for _ in range(len(ins) + 1)]
    for i, x in enumerate(ins):
        if x.b == 's_endpgm': continue
        if 'branch' in x.b:
            pred[lab[x.ops[0]]].append(i)
            if x.b == 's_branch': continue
        if x.b in ('s_setpc_b64',): continue
        pred[i + 1].append(i)
    bad = 0
    for c in ins:
        stack = [(p, 0) for p in pred[c.idx]]; seen = set()
        while stack:
            pi, d = stack.pop()
            if (pi, d) in seen: continue
            seen.add((pi, d))
            p = ins[pi]
            n, why = need(p, c)
            if n > d:
                bad += 1
                if bad < 30: print(f"HAZARD[{name}] {why}: need {n} have {d}\n    #{p.idx} {p.text}\n    #{c.idx} {c.text}")
            d2 = d + p.states
            if d2 < maxd:
                for q in pred[pi]: stack.append((q, d2))
    if bad: print(f"{name}: {bad} hazards")
    return bad
```

```python
from asmlib import *
from layout import *
import struct
def f2h(x): return "0x%08x" % struct.unpack("<I", struct.pack("<f", x))[0]

MF = "v_mfma_f32_16x16x32_bf16"

def wave_ids(k, swave, vlane, vt):
    k(f"v_lshrrev_b32 {vt}, 6, v0")
    k(f"v_and_b32 {vlane}, 63, v0")
    k(f"v_readfirstlane_b32 {swave}, {vt}")

def setup_wstream(k, vW, vtrb, vlane, swave, t0, t1, t2, st0):
    k(f"v_lshrrev_b32 {t0}, 4, {vlane}")
    k(f"v_and_b32 {t1}, 15, {vlane}")
    k(f"v_lshlrev_b32 {t2}, 1, {t0}")
    k(f"v_xor_b32 {t1}, {t1}, {t2}")
    k(f"v_lshlrev_b32 {t1}, 4, {t1}")
    k(f"s_lshl_b32 {st0}, {swave}, 18")
    k(f"v_lshl_add_u32 {t0}, {t0}, 13, {st0}")
    k(f"v_add_u32 {t2}, {t0}, {t1}")
    k(f"v_xor_b32 {t1}, 128, {t1}")
    k(f"v_add_u32 {t1}, {t0}, {t1}")
    for p in range(8):
        src = t1 if (p >> 1) & 1 else t2
        k(f"v_add_u32 {vW[p]}, {p*32768 - (p%4)*1024}, {src}")
    k(f"v_lshrrev_b32 {t0}, 4, {vlane}")
    k(f"v_bfe_u32 {t1}, {vlane}, 2, 2")
    k(f"v_and_b32 {t2}, 3, {vlane}")
    k(f"v_lshlrev_b32 {vtrb}, 3, {t2}")
    k(f"v_lshl_add_u32 {vtrb}, {t0}, 11, {vtrb}")
    k(f"v_lshl_add_u32 {vtrb}, {t1}, 8, {vtrb}")
    k(f"v_lshl_add_u32 {vtrb}, {t1}, 5, {vtrb}")
    k(f"v_and_b32 {t0}, 1, {t0}")
    k(f"v_lshl_add_u32 {vtrb}, {t0}, 7, {vtrb}")

def wdma(st, vW, srdW, ssoff, sldsw, tag, nsl=4):
    L = [f"s_mov_b32 {ssoff}, {(st % 4) * 128 * 8192}"]
    for p in range(8):
        if p % 4 == 0: L.append(f"s_add_u32 m0, {sldsw}, {(nsl[st] if isinstance(nsl, list) else st % nsl) * 32768 + (p // 4) * 4096}")
        L.append(f"buffer_load_dwordx4 {vW[p]}, {srdW}, {ssoff} offen offset:{(p%4)*1024} lds ; tag={tag}")
    return L

def trreads(st, cb, WF, vtr, vtrb, nsl=4):
    slot = nsl[st] if isinstance(nsl, list) else st % nsl
    L = [f"v_xor_b32 {vtr}, {cb*32 + slot * 32768}, {vtrb}"]
    for ks in range(4):
        for hf in range(2):
            L.append(f"ds_read_b64_tr_b16 {WF[cb%2].sub(4*ks+2*hf,2)}, {vtr} offset:{ks*8192 + hf*1024}")
    return L

def cb_mfmas(st, cb, ACC, WF, R, swap):
    mf = []
    for rb in range(4):
        d = ACC.sub((cb * 4 + rb) * 4, 4)
        for ks in range(4):
            w = WF[cb % 2].sub(4 * ks, 4); r = R.sub(((st % 4 * 4 + ks) * 4 + rb) * 4, 4)
            c = "0" if (st % 4 == 0 and ks == 0) else str(d)
            a, b = (r, w) if swap else (w, r)
            mf.append(f"{MF} {d}, {a}, {b}, {c}")
    return mf

def pack(dst, t0, t1):
    return [f"v_cvt_pk_bf16_f32 {dst[0]}, {t0[0]}, {t0[1]}", f"v_cvt_pk_bf16_f32 {dst[1]}, {t0[2]}, {t0[3]}",
            f"v_cvt_pk_bf16_f32 {dst[2]}, {t1[0]}, {t1[1]}", f"v_cvt_pk_bf16_f32 {dst[3]}, {t1[2]}, {t1[3]}"]

def sched_queue(G, q, lo, hi=None):
    hi = G.n - 1 if hi is None else hi
    g = lo
    while q and g <= hi:
        x = q[0]
        full = G.cost(g) + icost(x) > G.cap
        clash = ismem(x) and len(G.g[g]) > 0
        if full or clash:
            g += 1; continue
        G.g[g].append(x); q.pop(0)

def gen_k1(name="kv_kernel", stflag="sc1", dbg=False, touch=True):
    k = Kern(name)
    ST = Stamps(dbg, kern=0)
    V = Alloc('v', 1, 256); S = Alloc('s', 3, 72)
    vlane = V(); vl16 = V(); vco = V(4, 1); vcr = V(4, 1); vtch = V(3, 1); vtrb = V(); vtr = V(); t0 = V(); t1 = V(); t2 = V()
    vW = V(8); ACC = V(128); WF = [V(16), V(16)]; PK = [V(4) for _ in range(4)]
    XR = [V(4), V(4)]; XF = [V(8), V(8)]; vs = V(2, 1); vt_ = V(2, 1); vxo = V()
    R = Reg('a', 0, 256)
    swave = S(); sh = S(); skb = S(); st0 = S(); st1 = S(); ssoff = S(); sldsw = S(); sldsc = S(); ssc = S()
    pA = S(4); pB = S(4); pC = S(2); pD = S(2); pE = S(2); pWS = S(2)
    sX = S(4); sC = S(4); sWk = S(4); sWv = S(4); sKV = S(4); sXN = S(4); sP = S(4); sD = S(4)
    scr = S(4, 1); sst = S(4, 1)
    E = f"L_end_{name}"
    k(f"s_cmp_ge_u32 s2, 256"); k(f"s_cbranch_scc1 {E}")
    k.ext(ST("start"))
    k(f"s_load_dwordx4 {pA}, s[0:1], 0")
    k(f"s_load_dwordx4 {pB}, s[0:1], 24")
    k(f"s_load_dwordx2 {pC}, s[0:1], 40")
    k(f"s_load_dwordx2 {pD}, s[0:1], 56")
    k(f"s_load_dwordx2 {pE}, s[0:1], 72")
    k(f"s_load_dwordx2 {pWS}, s[0:1], 104")
    wave_ids(k, swave, vlane, t0)
    k(f"v_lshlrev_b32 {vl16}, 4, {vlane}")
    k(f"s_and_b32 {st0}, s2, 7"); k(f"s_lshl_b32 {st0}, {st0}, 2"); k(f"s_lshr_b32 {sh}, s2, 6"); k(f"s_add_u32 {sh}, {sh}, {st0}")
    k(f"s_bfe_u32 {skb}, s2, 0x30003")
    setup_wstream(k, vW, vtrb, vlane, swave, t0, t1, t2, st0)
    k(f"v_and_b32 {t0}, 15, {vlane}"); k(f"v_lshrrev_b32 {t1}, 4, {vlane}")
    k(f"s_lshl_b32 {sldsc}, {swave}, 14"); k(f"s_add_u32 {sldsc}, {sldsc}, {96*1024}")
    k(f"v_xor_b32 {t2}, {t0}, {t1}"); k(f"v_lshlrev_b32 {t2}, 4, {t2}")
    k(f"v_lshl_add_u32 {vco[0]}, {t1}, 10, {t2}")
    k(f"v_lshl_add_u32 {vcr[0]}, {t0}, 8, {t2}"); k(f"v_add_u32 {vcr[0]}, {sldsc}, {vcr[0]}")
    for q in range(1, 4):
        k(f"v_xor_b32 {vco[q]}, {q*64}, {vco[0]}"); k(f"v_add_u32 {vco[q]}, {q*4096 - q*1024}, {vco[q]}")
        k(f"v_xor_b32 {vcr[q]}, {q*64}, {vcr[0]}")
    k(f"s_lshl_b32 {st0}, {skb}, 2"); k(f"s_add_u32 {st0}, {st0}, {swave}")
    k(f"s_lshl_b32 {scr[0]}, {st0}, 16")
    for rb in range(1, 4): k(f"s_add_u32 {scr[rb]}, {scr[0]}, {rb*16384}")
    k(f"s_lshl_b32 {sst[0]}, {st0}, 14")
    for rb in range(1, 4): k(f"s_add_u32 {sst[rb]}, {sst[0]}, {rb*4096}")
    k(f"s_lshl_b32 {sldsw}, {swave}, 13")
    k(f"s_waitcnt lgkmcnt(0)")
    srd(k, sX, pA[0:2], 2 * MB); srd(k, sC, pA[2:4], 2 * MB)
    k(f"s_lshl_b32 {st0}, {sh}, 8")
    k(f"s_sub_u32 {st1}, {4*MB}, {st0}")
    srd(k, sWk, pB[0:2], st1, st0); srd(k, sWv, pB[2:4], st1, st0)
    k(f"s_lshl_b32 {st0}, s2, 2"); k(f"s_add_u32 {st0}, {st0}, {swave}"); k(f"s_lshl_b32 {st1}, {st0}, 11")
    k(f"buffer_load_dwordx4 {XR[0]}, {vl16}, {sX}, {st1} offen ; tag=x")
    k(f"buffer_load_dwordx4 {XR[1]}, {vl16}, {sX}, {st1} offen offset:1024 ; tag=x")
    def cdma(ch):
        L = []
        for rb in range(4):
            L += [f"s_add_u32 {ssc}, {scr[rb]}, {ch*256}", f"s_add_u32 m0, {sldsc}, {rb*4096}"]
            L += [f"buffer_load_dwordx4 {vco[q]}, {sC}, {ssc} offen offset:{q*1024} lds ; tag=c{ch}" for q in range(4)]
        return L
    def creads(ch):
        return [f"ds_read_b128 {R.sub(((4*ch+ks)*4+rb)*4,4)}, {vcr[ks]} offset:{rb*4096}" for rb in range(4) for ks in range(4)]
    def wd(st): return wdma(st, vW, sWk if st < 4 else sWv, ssoff, sldsw, f"w{st}", 3)
    def emit_dma(L):
        for x in L:
            k(x)
            if "m0" in x.split(",")[0]: k("s_nop 0")
    emit_dma(wd(0)); emit_dma(cdma(0))
    if touch:
        k(f"s_lshr_b32 {ssc}, s2, 3"); k(f"s_lshl_b32 {ssc}, {ssc}, 2"); k(f"s_add_u32 {ssc}, {ssc}, {swave}")
        k(f"v_lshlrev_b32 {t0}, 7, {vlane}"); k(f"s_lshl_b32 {ssoff}, {ssc}, 14")
        k(f"buffer_load_dword {vtch[0]}, {t0}, {sC}, {ssoff} offen"); k(f"s_add_u32 {ssoff}, {ssoff}, 8192")
        k(f"buffer_load_dword {vtch[1]}, {t0}, {sC}, {ssoff} offen")
        k(f"s_and_b32 {ssc}, {ssc}, 31"); k(f"s_and_b32 {ssoff}, {ssc}, 15"); k(f"s_lshl_b32 {ssoff}, {ssoff}, 18")
        k(f"v_lshrrev_b32 {t0}, 1, {vlane}"); k(f"v_and_b32 {t1}, 1, {vlane}"); k(f"v_lshlrev_b32 {t1}, 7, {t1}")
        k(f"v_lshl_add_u32 {t0}, {t0}, 13, {t1}")
        k(f"s_cmp_ge_u32 {ssc}, 16"); k(f"s_cbranch_scc1 L_tv_{name}")
        k(f"buffer_load_dword {vtch[2]}, {t0}, {sWk}, {ssoff} offen"); k(f"s_branch L_tw_{name}")
        k.label(f"L_tv_{name}")
        k.L.append(f"  buffer_load_dword {vtch[2]}, {t0}, {sWv}, {ssoff} offen")
        k.label(f"L_tw_{name}")
    emit_dma(wd(1)); emit_dma(wd(2))
    k(f"s_lshl_b32 {st1}, {sh}, 20")
    srd(k, sKV, pWS, MB, st1)
    srd(k, sXN, pWS, 2 * MB, WS_XN)
    k(f"v_lshrrev_b32 {t0}, 2, {vlane}"); k(f"v_and_b32 {t1}, 3, {vlane}"); k(f"v_lshlrev_b32 {t1}, 8, {t1}")
    k(f"v_lshl_add_u32 {vxo}, {t0}, 10, {t1}")
    k(f"s_lshr_b32 {st1}, {st0}, 3"); k(f"s_lshl_b32 {st1}, {st1}, 14")
    k(f"s_and_b32 {st0}, {st0}, 7"); k(f"s_lshl_b32 {st0}, {st0}, 5"); k(f"s_add_u32 {st1}, {st1}, {st0}")
    xnst = []
    k("WAITVM x")
    for a in range(2):
        for j in range(4):
            k(f"v_lshlrev_b32 {XF[a][2*j]}, 16, {XR[a][j]}"); k(f"v_and_b32 {XF[a][2*j+1]}, 0xffff0000, {XR[a][j]}")
        k(f"v_add_f32 {vs[a]}, {XF[a][0]}, {XF[a][1]}")
        for j in range(2, 8): k(f"v_add_f32 {vs[a]}, {vs[a]}, {XF[a][j]}")
    allreduce(k, [vs[0], vs[1]], [vt_[0], vt_[1]])
    for a in range(2):
        k(f"v_mul_f32 {vs[a]}, {f2h(1/512)}, {vs[a]}")
        for j in range(8): k(f"v_sub_f32 {XF[a][j]}, {XF[a][j]}, {vs[a]}")
        k(f"v_mul_f32 {vs[a]}, {XF[a][0]}, {XF[a][0]}")
        for j in range(1, 8): k(f"v_fmac_f32 {vs[a]}, {XF[a][j]}, {XF[a][j]}")
    allreduce(k, [vs[0], vs[1]], [vt_[0], vt_[1]])
    for a in range(2):
        k(f"v_mov_b32 {vt_[a]}, {f2h(1e-5)}")
        k(f"v_fmac_f32 {vt_[a]}, {f2h(1/512)}, {vs[a]}")
        k(f"v_rsq_f32 {vs[a]}, {vt_[a]}")
    k("s_nop 0")
    for a in range(2):
        k(f"v_mul_f32 {vs[a]}, {f2h(QSCALE)}, {vs[a]}")
        for j in range(8): k(f"v_mul_f32 {XF[a][j]}, {XF[a][j]}, {vs[a]}")
        for j in range(4): k(f"v_cvt_pk_bf16_f32 {XR[a][j]}, {XF[a][2*j]}, {XF[a][2*j+1]}")
        xnst.append(f"buffer_store_dwordx4 {XR[a]}, {vxo}, {sXN}, {st1} offen offset:{16*a} {stflag}")
    k.ext(ST("ln_done"))
    k("WAITVM c0")
    cr = creads(0)
    k.ext(cr[:8]); k("s_barrier"); k("s_waitcnt lgkmcnt(4)"); k.ext(cr[8:]); k("s_waitcnt lgkmcnt(4)")
    k.ext(trreads(0, 0, WF, vtr, vtrb, 3))
    k("s_waitcnt lgkmcnt(0)")
    k.ext(ST("go"))
    memq = []; drainq = []; npk = [0]
    def drain_frag(ta, tb, soff, imm):
        p = PK[npk[0] % 4]; npk[0] += 1
        return pack(p, ta, tb) + [f"buffer_store_dwordx4 {p}, {vl16}, {sKV}, {soff} offen offset:{imm} {stflag}"]
    T = lambda cb, rb: ACC.sub((cb * 4 + rb) * 4, 4)
    for st in range(8):
        if st < 3: memq += cdma(st + 1)
        if 1 <= st <= 5: memq += wd(st + 2)
        if st == 3: memq += xnst
        if st == 5: memq += [f"s_add_u32 {sst[i]}, {sst[i]}, {512*1024}" for i in range(4)]
        for cb in range(8):
            G = Gaps(cb_mfmas(st, cb, ACC, WF, R, swap=st >= 4))
            last = st == 7 and cb == 7
            if cb == 7 and st < 7:
                k(f"WAITVM w{st+1}"); k("s_barrier")
            if not last:
                nst, ncb = (st, cb + 1) if cb < 7 else (st + 1, 0)
                rd = trreads(nst, ncb, WF, vtr, vtrb, 3)
                G.put(0, rd[0])
                for i, x in enumerate(rd[1:]): G.put(1 + i, x)
            sched_queue(G, drainq, 1, 14)
            if st < 3 and cb == 5:
                assert not memq
                memq += [f"WAITVM c{st+1}"] + creads(st + 1)
                sched_queue(G, memq, 8, 14)
            else:
                sched_queue(G, memq, 0, 14)
            if not last: G.put(15, "s_waitcnt lgkmcnt(0)")
            G.emit(k)
            if st == 3 and cb % 2 == 1:
                for rb in range(4): drainq += drain_frag(T(cb - 1, rb), T(cb, rb), sst[rb], (cb // 2) * 1024)
            if st == 7:
                for t in range(2): drainq += drain_frag(T(cb, 2 * t), T(cb, 2 * t + 1), sst[2 * t + cb // 4], (cb % 4) * 1024)
        assert not memq, (st, memq)
        k.ext(ST(f"st{st}"))
    sgw = st0; su = st1; srow = scr[0]; sA = scr[1]; sB = scr[2]; sdst = scr[3]
    k(f"s_lshl_b32 {sgw}, s2, 2"); k(f"s_add_u32 {sgw}, {sgw}, {swave}")
    k("s_nop 3")
    k.ext(drainq); drainq = []
    if dbg:
        k("s_waitcnt vmcnt(0)"); k.ext(ST("drained"))
        ST.dump(k, pWS, swave, sD, su, t0, t1, WS_DBG)
    k(f"s_cmp_ge_u32 {sgw}, 860"); k(f"s_cbranch_scc1 L_cs_{name}")
    k(f"s_add_u32 {sldsw}, {sldsw}, 131072")
    k(f"v_lshrrev_b32 {t0}, 4, {vlane}"); k(f"v_and_b32 {t1}, 15, {vlane}"); k(f"v_lshlrev_b32 {t1}, 4, {t1}")
    k(f"v_bfe_u32 {t2}, {vlane}, 2, 2"); k(f"v_lshlrev_b32 {vtrb}, 8, {t2}"); k(f"v_lshl_add_u32 {vtrb}, {t0}, 11, {vtrb}")
    k(f"v_add_u32 {vtrb}, {sldsw}, {vtrb}"); k(f"v_and_b32 {t2}, 3, {vlane}")
    k(f"s_cmp_ge_u32 {sgw}, 684"); k(f"s_cbranch_scc1 L_w1_{name}")
    k(f"s_mov_b32 {sP[2]}, {4*MB}"); k(f"s_mov_b32 {sA}, {128*4096}")
    k(f"s_cmp_ge_u32 {sgw}, 512")
    k(f"s_cselect_b32 {sP[0]}, {pE[0]}, {pC[0]}"); k(f"s_cselect_b32 {sP[1]}, {pE[1]}, {pC[1]}")
    k(f"s_cselect_b32 {sP[2]}, {1376*1024}, {sP[2]}"); k(f"s_mov_b32 {sP[3]}, 0x20000")
    k(f"s_cselect_b32 {sA}, {43*4096}, {sA}")
    k(f"s_cselect_b32 {sdst}, {WS_W2P - WS_WOP}, 0")
    k(f"s_and_b32 {su}, {sgw}, 511")
    k(f"s_lshr_b32 {srow}, {su}, 2"); k(f"s_and_b32 {su}, {su}, 3")
    k(f"s_lshl_b32 {sB}, {srow}, 12"); k(f"s_add_u32 {sdst}, {sdst}, {sB}")
    k(f"s_mul_i32 {sB}, {su}, {sA}"); k(f"s_lshl_b32 {sB}, {sB}, 1"); k(f"s_add_u32 {sdst}, {sdst}, {sB}")
    k(f"s_lshl_b32 {srow}, {srow}, 15"); k(f"s_lshl_b32 {su}, {su}, 8"); k(f"s_add_u32 {srow}, {srow}, {su}")
    k(f"v_lshl_add_u32 {t1}, {t0}, 10, {t1}")
    srd(k, sD, pWS, 6 * MB, WS_WOP)
    for p in range(8):
        k(f"s_add_u32 m0, {sldsw}, {p*1024}")
        k(f"s_add_u32 {ssoff}, {srow}, {(16*(p%2) + 4*(p//2)) * 1024}")
        k(f"buffer_load_dwordx4 {t1}, {sP}, {ssoff} offen lds")
    k(f"v_lshl_add_u32 {vtrb}, {t2}, 5, {vtrb}")
    k(f"s_add_u32 {sA}, {sA}, {sdst}")
    k("s_waitcnt vmcnt(0)")
    for x in range(8):
        for hf in range(2):
            k(f"ds_read_b64_tr_b16 {ACC.sub(4*x+2*hf,2)}, {vtrb} offset:{hf*1024 + 128*(x//4) + 8*(x%4)}")
        if x == 3: k("s_waitcnt lgkmcnt(0)")
    k("s_waitcnt lgkmcnt(0)")
    for x in range(8):
        k(f"buffer_store_dwordx4 {ACC.sub(4*x,4)}, {vl16}, {sD}, {sdst if x < 4 else sA} offen offset:{(x%4)*1024} {stflag}")
    k("s_endpgm")
    k.label(f"L_w1_{name}")
    srd(k, sP, pD, 512 * 2752)
    srd(k, sD, pWS, 88 * 16384, WS_W1P)
    k(f"s_sub_u32 {su}, {sgw}, 684")
    k(f"s_and_b32 {srow}, {su}, 15"); k(f"s_lshr_b32 {su}, {su}, 4")
    k(f"s_lshl_b32 {sdst}, {su}, 17"); k(f"s_lshl_b32 {sA}, {srow}, 10"); k(f"s_add_u32 {sdst}, {sdst}, {sA}")
    k(f"s_lshr_b32 {sA}, {srow}, 1"); k(f"s_lshl_b32 {sA}, {sA}, 6"); k(f"s_and_b32 {srow}, {srow}, 1"); k(f"s_lshl_b32 {srow}, {srow}, 3")
    k(f"s_add_u32 {srow}, {srow}, {sA}"); k(f"s_mul_i32 {srow}, {srow}, 2752")
    k(f"s_lshl_b32 {su}, {su}, 8"); k(f"s_add_u32 {srow}, {srow}, {su}")
    k(f"v_mul_u32_u24 {t0}, 2752, {t0}"); k(f"v_add_u32 {t1}, {t0}, {t1}")
    for p in range(8):
        k(f"s_add_u32 m0, {sldsw}, {p*1024}")
        k(f"s_add_u32 {ssoff}, {srow}, {(4*(p%2) + 16*(p//2)) * 2752}")
        k(f"buffer_load_dwordx4 {t1}, {sP}, {ssoff} offen lds")
    k(f"v_lshl_add_u32 {vtrb}, {t2}, 3, {vtrb}")
    k("s_waitcnt vmcnt(0)")
    for x in range(8):
        for hf in range(2):
            k(f"ds_read_b64_tr_b16 {ACC.sub(4*x+2*hf,2)}, {vtrb} offset:{hf*1024 + 32*x}")
        if x == 3: k("s_waitcnt lgkmcnt(0)")
    k("s_waitcnt lgkmcnt(0)")
    for x in range(8):
        k(f"s_add_u32 {ssoff}, {sdst}, {x*16384}")
        k(f"buffer_store_dwordx4 {ACC.sub(4*x,4)}, {vl16}, {sD}, {ssoff} offen {stflag}")
    k("s_endpgm")
    k.label(f"L_cs_{name}")
    k(f"s_sub_u32 {su}, {sgw}, 860"); k(f"s_cmp_ge_u32 {su}, 86"); k(f"s_cbranch_scc1 {E}")
    srd(k, sP, pD, 512 * 2752)
    srd(k, sD, pWS, 1376 * 4, WS_C1)
    k(f"v_lshrrev_b32 {t0}, 1, {vlane}"); k(f"v_and_b32 {t1}, 1, {vlane}"); k(f"v_lshlrev_b32 {t2}, 4, {t1}")
    k(f"v_mul_u32_u24 {t0}, 2752, {t0}"); k(f"v_add_u32 {t0}, {t0}, {t2}")
    k(f"s_lshl_b32 {srow}, {su}, 5")
    for t in range(16):
        k(f"s_add_u32 {ssoff}, {srow}, {t*32*2752}")
        k(f"buffer_load_dwordx4 {ACC.sub(4*t,4)}, {t0}, {sP}, {ssoff} offen")
    CS = ACC.sub(64, 8); CT = ACC.sub(72, 8)
    for j in range(8): k(f"v_mov_b32 {CS[j]}, 0")
    for t in range(16):
        k(f"s_waitcnt vmcnt({15-t})")
        for j in range(4):
            k(f"v_lshlrev_b32 {CT[2*j]}, 16, {ACC[4*t+j]}"); k(f"v_and_b32 {CT[2*j+1]}, 0xffff0000, {ACC[4*t+j]}")
        for j in range(8): k(f"v_add_f32 {CS[j]}, {CS[j]}, {CT[j]}")
    for dpp in ("quad_perm:[2,3,0,1]", "row_ror:4", "row_ror:8"):
        for j in range(8): k(f"v_add_f32_dpp {CS[j]}, {CS[j]}, {CS[j]} {dpp} row_mask:0xf bank_mask:0xf")
    allreduce(k, [CS[j] for j in range(8)], [CT[j] for j in range(8)], cross_only=True)
    k(f"v_lshlrev_b32 {t0}, 5, {t1}")
    k(f"s_lshl_b32 {srow}, {su}, 6")
    k(f"s_mov_b64 exec, 3")
    k(f"buffer_store_dwordx4 {CS.sub(0,4)}, {t0}, {sD}, {srow} offen {stflag}")
    k(f"buffer_store_dwordx4 {CS.sub(4,4)}, {t0}, {sD}, {srow} offen offset:16 {stflag}")
    k.label(E)
    k("s_endpgm")
    k.L = resolve_waits(k.L)
    return k, (name, 256, 256, 163840), (512, 256, 100)

if __name__ == "__main__":
    import hazard
    k, l, r = gen_k1(dbg="dbg" in sys.argv, stflag="" if "plain" in sys.argv else "sc1", touch="notouch" not in sys.argv)
    hazard.check(k.L, k.name)
    p = "t_k1.s"
    open(p, "w").write(build_file([(k, *r)], [l]))
    check_file(p)
```

```python
from asmlib import *
from layout import *
from k1 import *

NEGINF = "0xff800000"

def gen_k2(name="attn_kernel", stflag="sc1", dbg=False, thr=2.0**60, dmamode=0):
    k = Kern(name)
    ST = Stamps(dbg, kern=1, base=80)
    V = Alloc('v', 1, 256); S = Alloc('s', 3, 80)
    vlane = V(); vl16 = V(); vl16b = V(); vra = V(); vrc = V(); t0 = V(); t1 = V(); t2 = V(); vinf = V(); vtr = V(); vtrb = V()
    ACC = V(128)
    SB = [V(32), V(32)]
    NM = V(16); MK = V(16); TMP = V(16)
    WF = [SB[0].sub(0, 16), SB[0].sub(16, 16)]; vW = SB[1].sub(0, 8); PKQ = [SB[1].sub(8 + 4 * i, 4) for i in range(4)]
    R = Reg('a', 0, 256)
    Q = Reg('a', 0, 64); F = Reg('a', 64, 32); LA = Reg('a', 96, 16); ONES = Reg('a', 112, 4); F2 = Reg('a', 128, 64)
    swave = S(); sh = S(); si = S(); st0 = S(); st1 = S(); ssoff = S(); sldsw = S(); skv = S(); scnt = S(); snS = S()
    sflag = S(); sctx = S(2, 1); srg = S(2, 1)
    pQ = S(2); pWS = S(2)
    sWq = S(4); sKV = S(4); sXN = S(4); sCT = S(4)
    sxr = S(4, 1)
    mA = [S(2) for _ in range(4)]; mB = [S(2) for _ in range(4)]; mC = S(2)
    mT = [S(2) for _ in range(4)]; mU = S(2); mX = S(2)
    E = f"L_end_{name}"
    Lb = lambda s: f"L_{s}_{name}"
    O = lambda grp, db, qb: ACC.sub(grp * 64 + (db * 2 + qb) * 4, 4)
    Sq = lambda par, grp, qb: SB[par].sub((grp * 2 + qb) * 8, 8)
    Qf = lambda grp, qb, ks: Q.sub(((grp * 2 + qb) * 4 + ks) * 4, 4)
    k(f"s_cmp_ge_u32 s2, 256"); k(f"s_cbranch_scc1 {E}")
    k.ext(ST("start"))
    k(f"s_load_dwordx2 {pQ}, s[0:1], 16")
    k(f"s_load_dwordx2 {pWS}, s[0:1], 104")
    wave_ids(k, swave, vlane, t0)
    k(f"v_lshlrev_b32 {vl16}, 4, {vlane}")
    k(f"s_and_b32 {st0}, s2, 7"); k(f"s_lshl_b32 {st0}, {st0}, 2"); k(f"s_lshr_b32 {sh}, s2, 6"); k(f"s_add_u32 {sh}, {sh}, {st0}")
    k(f"s_bfe_u32 {si}, s2, 0x30003")
    setup_wstream(k, vW, vtrb, vlane, swave, t0, t1, t2, st0)
    k(f"s_lshl_b32 {sldsw}, {swave}, 13")
    k(f"s_lshl_b32 {st0}, {si}, 2"); k(f"s_add_u32 {srg[0]}, {st0}, {swave}")
    k(f"s_sub_u32 {srg[1]}, 60, {st0}"); k(f"s_add_u32 {srg[1]}, {srg[1]}, {swave}")
    for g in range(2):
        k(f"s_lshl_b32 {sxr[2*g]}, {srg[g]}, 15"); k(f"s_add_u32 {sxr[2*g+1]}, {sxr[2*g]}, 16384")
    k(f"s_waitcnt lgkmcnt(0)")
    k(f"s_lshl_b32 {st0}, {sh}, 8"); k(f"s_sub_u32 {st1}, {4*MB}, {st0}")
    srd(k, sWq, pQ, st1, st0)
    srd(k, sXN, pWS, 2 * MB, WS_XN)
    def xloads(ch):
        L = []
        for rb in range(4):
            L.append(f"s_add_u32 {st1}, {sxr[rb]}, {ch*4096}")
            L += [f"buffer_load_dwordx4 {R.sub(((4*ch+ks)*4+rb)*4,4)}, {vl16}, {sXN}, {st1} offen offset:{ks*1024} ; tag=c{ch}" for ks in range(4)]
        return L
    wd = lambda st: wdma(st, vW, sWq, ssoff, sldsw, f"w{st}", 4)
    def emit_dma(L):
        for x in L:
            k(x)
            if "m0" in x.split(",")[0]: k("s_nop 0")
    emit_dma(wd(0)); k.ext(xloads(0))
    k(f"s_lshl_b32 {st1}, {sh}, 20")
    srd(k, sKV, pWS, MB, st1)
    srd(k, sCT, pWS, 16 * MB, WS_CTX)
    k(f"v_add_u32 {vl16b}, 4096, {vl16}")
    k(f"v_mov_b32 {vinf}, {NEGINF}")
    k(f"s_or_b32 {st0}, {sldsw}, 0x10000"); k(f"v_or_b32 {vrc}, {st0}, {vl16}")
    k(f"s_and_b32 {st0}, {swave}, 1"); k(f"s_lshl_b32 {skv}, {st0}, 13")
    k(f"s_cmp_ge_u32 {swave}, 2"); k(f"s_cselect_b32 {st1}, {512*1024-8192}, 0"); k(f"s_add_u32 {skv}, {skv}, {st1}")
    for g in range(2):
        k(f"s_lshr_b32 {st1}, {srg[g]}, 1"); k(f"s_lshl_b32 {sctx[g]}, {st1}, 19")
        k(f"s_lshl_b32 {st1}, {sh}, 14"); k(f"s_add_u32 {sctx[g]}, {sctx[g]}, {st1}")
        k(f"s_lshl_b32 {st1}, {st0}, 11"); k(f"s_add_u32 {sctx[g]}, {sctx[g]}, {st1}")
    k(f"s_lshr_b32 {snS}, {srg[0]}, 1"); k(f"s_add_u32 {snS}, {snS}, 1")
    k(f"s_mov_b32 {sflag}, 0")
    k(f"v_and_b32 {t0}, 15, {vlane}"); k(f"v_lshrrev_b32 {t1}, 4, {vlane}"); k(f"v_lshlrev_b32 {t1}, 2, {t1}"); k(f"v_sub_u32 {t0}, {t0}, {t1}")
    for r in range(4): k(f"v_cmp_le_i32 {mT[r]}, {r}, {t0}")
    k(f"s_cmp_eq_u32 {st0}, 0")
    k(f"s_cselect_b64 {mC}, 0, -1")
    for r in range(4):
        k(f"s_or_b64 {mA[r]}, {mT[r]}, {mC}"); k(f"s_and_b64 {mB[r]}, {mT[r]}, {mC}")
    def kvdma(j, tag):
        L = []
        for p in range(8):
            if p % 4 == 0: L.append(f"s_add_u32 m0, {sldsw}, {(j%4)*32768 + (p//4)*4096}")
            L.append(f"buffer_load_dwordx4 {vl16 if p < 4 else vl16b}, {sKV}, {skv} offen offset:{(p%4)*1024} lds ; tag={tag}")
        L.append(f"s_add_u32 {skv}, {skv}, 16384")
        return L
    k("WAITVM w0"); k("s_barrier")
    k.ext(trreads(0, 0, WF, vtr, vtrb, 4))
    k("WAITVM c0 lgkm=0")
    k.ext(ST("go"))
    memq = []; drainq = []; npk = [0]
    T = lambda cb, rb: ACC.sub((cb * 4 + rb) * 4, 4)
    def drain_q(ta, tb, dst):
        p = PKQ[npk[0] % 4]; npk[0] += 1
        return pack(p, ta, tb) + [f"v_accvgpr_write_b32 {dst[j]}, {p[j]}" for j in range(4)]
    for st in range(4):
        if st == 0: memq += wd(1) + xloads(1) + wd(2)
        if st == 1: memq += xloads(2) + wd(3) + kvdma(0, "kv0")
        if st == 2: memq += xloads(3) + kvdma(1, "kv1")
        for cb in range(8):
            G = Gaps(cb_mfmas(st, cb, ACC, WF, R, swap=False))
            last = st == 3 and cb == 7
            if cb == 7 and st < 3:
                k(f"WAITVM w{st+1}"); k("s_barrier")
            if not last:
                nst, ncb = (st, cb + 1) if cb < 7 else (st + 1, 0)
                rd = trreads(nst, ncb, WF, vtr, vtrb, 4)
                G.put(0, rd[0])
                for i, x in enumerate(rd[1:]): G.put(1 + i, x)
            sched_queue(G, drainq, 1, 14)
            sched_queue(G, memq, 0, 14)
            if not last:
                if cb == 7: G.put(15, f"WAITVM c{st+1} lgkm=0")
                else: G.put(15, "s_waitcnt lgkmcnt(0)")
            G.emit(k)
            if st == 3 and cb % 2 == 1:
                for rb in range(4): drainq += drain_q(T(cb - 1, rb), T(cb, rb), Qf(rb // 2, rb % 2, cb // 2))
        assert not memq, (st, memq)
    k.ext(ST("qdone"))
    OFF = {"K0": 0, "K1": 8192, "V0": 16384, "V1": 24576}
    def rd(f, src): return f"ds_read_b128 {F.sub(4*f,4)}, {vra} offset:{OFF[src] + f*1024}"
    def ph_pv(groups, par):
        mf = []; fu = {}; lu = {}
        for db in range(8):
            for g in groups:
                for qb in range(2):
                    fu.setdefault(db, len(mf)); lu[db] = len(mf)
                    mf.append(f"{MF} {O(g,db,qb)}, {F.sub(4*db,4)}, {Sq(par,g,qb).sub(0,4)}, {O(g,db,qb)}")
        for g in groups:
            for qb in range(2):
                l = LA.sub((g * 2 + qb) * 4, 4)
                mf.append(f"{MF} {l}, {ONES}, {Sq(par,g,qb).sub(0,4)}, {l}")
        return mf, fu, lu
    def ph_qk(groups, par, cfun):
        mf = []; fu = {}; lu = {}
        for kb in range(2):
            for g in groups:
                for qb in range(2):
                    d = Sq(par, g, qb).sub(4 * kb, 4)
                    for ks in range(4):
                        f = 4 * kb + ks
                        fu.setdefault(f, len(mf)); lu[f] = len(mf)
                        mf.append(f"{MF} {d}, {F.sub(4*f,4)}, {Qf(g,qb,ks)}, {cfun(g,qb,kb) if ks == 0 else d}")
        return mf, fu, lu
    cplain = lambda g, qb, kb: NM.sub((g * 2 + qb) * 4, 4)
    def maskops(g, which, masks, base):
        mtri, mc = masks
        L = []; tiles = {}
        for qb in range(2):
            for kb in range(2):
                t = MK.sub((qb * 2 + kb) * 4, 4); tiles[(qb, kb)] = t
                for r in range(4):
                    if kb == qb: m = mtri[r]
                    elif kb > qb: m = mc if which == "a" else masks_none(masks)
                    else: m = None if which == "a" else mc
                    if m is None: L.append(f"v_mov_b32 {t[r]}, {base(qb, r)}")
                    elif m == "none": L.append(f"v_mov_b32 {t[r]}, {vinf}")
                    else: L.append(f"v_cndmask_b32 {t[r]}, {vinf}, {base(qb, r)}, {m}")
        return L, tiles
    none_mask = ["none"]
    def masks_none(masks): return none_mask[0]
    def build(phases, sm, extras_mem, extras, premask=None):
        mf = []; start = []
        for p in phases:
            start.append(len(mf)); mf += p[0]
        start.append(len(mf))
        G = Gaps(mf)
        for pi, (m, fu, lu, nxt) in enumerate(phases):
            if nxt:
                for f in range(8): G.put(start[pi] + lu[f], rd(f, nxt))
        for pi, (m, fu, lu, nxt) in enumerate(phases):
            G.put(start[pi] + fu[4] - 1, f"s_waitcnt lgkmcnt({4 if nxt else 0})")
            if pi > 0: G.put(start[pi] - 1, "s_waitcnt lgkmcnt(4)")
        if premask:
            for (pi, L) in premask:
                G.chain(L, start[pi], start[pi + 1] - 3)
        return G, start
    def softmax(G, lo, hi, par, groups, reserve=()):
        els = [(g, qb, kb, r) for kb in range(2) for g in groups for qb in range(2) for r in range(4)]
        free = [x for x in range(lo, hi + 1) if G.cost(x) == 0 and x not in reserve]
        n = len(els)
        if len(free) >= n:
            pos = free[:n] if len(free) <= n + 2 else [free[(i * (len(free) - 1)) // n] for i in range(n)]
        else:
            allg = list(range(lo, hi)); pos = [allg[(i * len(allg)) // n] for i in range(n)]
        gcv = lo
        for (g, qb, kb, r), p in zip(els, pos):
            s = Sq(par, g, qb)
            G.put(p, f"v_exp_f32 {s[4*kb+r]}, {s[4*kb+r]}")
        for (g, qb, kb, r), p in zip(els, pos):
            if r % 2 == 1:
                s = Sq(par, g, qb); c = 2 * kb + r // 2
                x = f"v_cvt_pk_bf16_f32 {s[c]}, {s[4*kb+r-1]}, {s[4*kb+r]}"
                gcv = G.add(x, max(gcv, p + 1), hi)
                gl = G.g[gcv]; w = [y for y in gl if y.startswith("s_waitcnt")]
                G.g[gcv] = [y for y in gl if not y.startswith("s_waitcnt")] + w
    def pair(pvA, qkA, smA, pvB, qkB, smB, dma=True, mask=None, loop=None, endwait=8, last=False):
        ph = []; pm = []
        def cf(which):
            if mask is None: return cplain
            L, tiles = maskops(mask, which, (mA if which == "a" else mB, mC), lambda qb, r: NM[(mask * 2 + qb) * 4 + r])
            pm.append((len(ph) - 1, L))
            return lambda g, qb, kb: tiles[(qb, kb)] if g == mask else cplain(g, qb, kb)
        ph.append(ph_pv(pvA, 0) + ("K0" if qkA else "V0",))
        if qkA: c = cf("a"); ph.append(ph_qk(qkA, 0, c) + ("V0",))
        nb = len(ph)
        ph.append(ph_pv(pvB, 1) + ("K1" if qkB else None,))
        if qkB: c = cf("b"); ph.append(ph_qk(qkB, 1, c) + ("V1",))
        G, start = build(ph, None, None, None, pm)
        n = G.n
        pre = ["s_barrier", f"v_xor_b32 {vra}, m0, {vrc}"]
        resv = set()
        if dma:
            D = [f"buffer_load_dwordx4 {vl16 if p < 4 else vl16b}, {sKV}, {skv} offen offset:{(p%4)*1024} lds" for p in range(8)]
            pos = []
            lo = 0
            for p in range(8):
                tgt = max(lo, 1 + (p * (n - 6)) // 8)
                g = tgt
                if dmamode == 0:
                    while g < n - 2 and not (G.cost(g) == 4 and G.g[g][0].startswith("ds_read")): g += 1
                else:
                    while g < n - 2 and G.cost(g) != 0: g += 1
                G.put(g, D[p]); pos.append(g); lo = g + 1
                if p == 3: lo = g + 2
            later = [(f"s_add_u32 m0, m0, 4096", pos[3], pos[4] - 1),
                     (f"s_add_u32 {skv}, {skv}, 16384", pos[7], n - 1), (f"s_add_u32 m0, m0, {32768-4096}", pos[7], n - 1)]
        else:
            later = [(f"s_add_u32 m0, m0, 32768", 0, n - 1)]
        if smA: softmax(G, 0, start[nb] - 2, 1, smA)
        if smB: softmax(G, start[nb], n - 2, 0, smB)
        gl = 0
        for x, lo, hi in later: gl = G.add(x, lo, hi)
        gl = G.add("s_and_b32 m0, m0, 0x1ffff", gl, n - 1)
        if loop: G.put(n - 1, f"s_sub_u32 {scnt}, {scnt}, 1")
        k.ext(pre); G.emit(k)
        if endwait is not None: k(f"s_waitcnt vmcnt({endwait}) lgkmcnt(4)")
        if loop: k(f"s_cbranch_scc0 {loop}")
    def epilogue(g, lsrc=None):
        rl = TMP.sub(0, 2)
        for qb in range(2):
            if lsrc is None: k(f"v_accvgpr_read_b32 {rl[qb]}, {LA[(g*2+qb)*4]}")
            else: k(f"v_mov_b32 {rl[qb]}, {lsrc[qb]}")
        if lsrc is None:
            k(f"v_max_f32 {t0}, {rl[0]}, {rl[1]}"); k(f"v_add_f32 {t1}, {rl[0]}, {rl[1]}")
            k(f"v_cmp_nlt_f32 vcc, {t1}, {TMP[2]}")
        for qb in range(2): k(f"v_rcp_f32 {rl[qb]}, {rl[qb]}")
        if lsrc is None:
            k(f"s_cmp_lg_u64 vcc, 0"); k(f"s_cselect_b32 {st0}, {1 << g}, 0"); k(f"s_or_b32 {sflag}, {sflag}, {st0}")
        else: k("s_nop 0")
        n = 0
        for s in range(4):
            k(f"s_add_u32 {st1}, {sctx[g]}, {s*4096}")
            for qb in range(2):
                p = TMP.sub(4 + 4 * (n % 3), 4); n += 1
                for db in (2 * s, 2 * s + 1):
                    for r in range(4): k(f"v_mul_f32 {O(g,db,qb)[r]}, {O(g,db,qb)[r]}, {rl[qb]}")
                k.ext(pack(p, O(g, 2 * s, qb), O(g, 2 * s + 1, qb)))
                k(f"buffer_store_dwordx4 {p}, {vl16}, {sCT}, {st1} offen offset:{qb*1024} {stflag}")
    k("WAITVM kv0"); k("s_barrier")
    k(f"v_mov_b32 {vra}, {vl16}")
    for f in range(8): k(rd(f, "K0"))
    k.ext(drainq); drainq = []
    k(f"s_cmp_eq_u32 {snS}, 1"); k(f"s_cselect_b64 {mX}, 0, -1")
    for r in range(4): k(f"s_or_b64 {mT[r]}, {mA[r]}, {mX}")
    k(f"s_or_b64 {mU}, {mC}, {mX}")
    k(f"v_mov_b32 {t2}, 0")
    L, tiles = maskops(0, "a", (mT, mU), lambda qb, r: t2)
    k.ext(L)
    k(f"v_mov_b32 {t0}, 0x3f803f80")
    for j in range(4): k(f"v_accvgpr_write_b32 {ONES[j]}, {t0}")
    for j in range(16): k(f"v_accvgpr_write_b32 {LA[j]}, 0")
    k("s_waitcnt lgkmcnt(4)")
    G, start = build([ph_qk([0, 1], 0, lambda g, qb, kb: tiles[(qb, kb)] if g == 0 else "0") + ("K1",)], None, None, None)
    zq = [f"v_mov_b32 {ACC[j]}, 0" for j in range(128)]
    d2 = kvdma(2, "kv2")
    sched_queue(G, d2, 0); assert not d2
    sched_queue(G, zq, 0)
    G.emit(k)
    k.ext(zq)
    mx = [TMP[j] for j in range(4)]; mt = [TMP[4 + j] for j in range(4)]
    for j in range(4):
        s = SB[0].sub(8 * j, 8)
        k(f"v_max3_f32 {mx[j]}, {s[0]}, {s[1]}, {s[2]}"); k(f"v_max3_f32 {mx[j]}, {mx[j]}, {s[3]}, {s[4]}")
        k(f"v_max3_f32 {mx[j]}, {mx[j]}, {s[5]}, {s[6]}"); k(f"v_max_f32 {mx[j]}, {mx[j]}, {s[7]}")
    allreduce(k, mx, mt, op="v_max_f32", cross_only=True)
    for j in range(4):
        for r in range(4): k(f"v_sub_f32 {NM[4*j+r]}, 0, {mx[j]}")
    for r in range(4): k(f"s_or_b64 {mT[r]}, {mB[r]}, {mX}")
    none_mask[0] = mX
    L, tiles = maskops(0, "b", (mT, mU), lambda qb, r: NM[qb * 4 + r])
    none_mask[0] = "none"
    k.ext(L)
    for j in range(4):
        for e in range(8): k(f"v_sub_f32 {SB[0][8*j+e]}, {SB[0][8*j+e]}, {mx[j]}")
    k(f"v_mov_b32 {TMP[2]}, {f2h(thr)}")
    k("s_waitcnt lgkmcnt(4)")
    G, start = build([ph_qk([0, 1], 1, lambda g, qb, kb: tiles[(qb, kb)] if g == 0 else cplain(g, qb, kb)) + ("V1",)], None, None, None)
    softmax(G, 0, G.n - 1, 0, [0, 1])
    G.emit(k)
    k(f"s_add_u32 m0, {sldsw}, {3*32768}")
    k("WAITVM kv1 lgkm=4")
    k("VMRESET")
    k.ext(ST("pro"))
    if dbg: k("s_waitcnt lgkmcnt(0)")
    D = [0, 1]
    k(f"s_cmp_eq_u32 {snS}, 1"); k(f"s_cbranch_scc1 {Lb('T')}")
    k(f"s_sub_u32 {scnt}, {snS}, 3"); k(f"s_cbranch_scc1 {Lb('DM')}")
    k(".p2align 6"); k.label(Lb("D"))
    pair(D, D, D, D, D, D, loop=Lb("D"))
    k.label(Lb("DM"))
    pair(D, D, D, D, D, D, mask=0)
    k.label(Lb("T"))
    pair(D, [1], D, D, [1], [1], endwait=None)
    epilogue(0)
    k("s_waitcnt vmcnt(16) lgkmcnt(4)")
    k.ext(ST("sdone"))
    if dbg: k("s_waitcnt lgkmcnt(0)")
    k(f"s_lshl_b32 {st0}, {si}, 2"); k(f"s_sub_u32 {scnt}, 27, {st0}"); k(f"s_cbranch_scc1 {Lb('SM')}")
    k(".p2align 6"); k.label(Lb("S"))
    pair([1], [1], [1], [1], [1], [1], loop=Lb("S"))
    k.label(Lb("SM"))
    pair([1], [1], [1], [1], [1], [1], dma=False, mask=1, endwait=0)
    pair([1], None, [1], [1], None, None, dma=False, endwait=None)
    k.ext(ST("ldone"))
    k("s_nop 7")
    epilogue(1)
    k(f"s_cmp_ge_u32 {swave}, 2"); k(f"s_cbranch_scc1 {Lb('nb')}"); k("s_barrier"); k.label(Lb("nb"))
    if dbg:
        k.ext(ST("stored")); k("s_waitcnt vmcnt(0)"); k.ext(ST("drained"))
        ST.dump(k, pWS, swave, sWq, st0, t0, t1, WS_DBG)
    k(f"s_cmp_eq_u32 {sflag}, 0"); k(f"s_cbranch_scc1 {E}")
    k("s_waitcnt vmcnt(0)")
    k(f"v_and_b32 {t0}, 15, {vlane}"); k(f"v_lshrrev_b32 {t1}, 4, {vlane}"); k(f"v_lshlrev_b32 {t1}, 2, {t1}"); k(f"v_sub_u32 {t0}, {t0}, {t1}")
    for r in range(4): k(f"v_cmp_le_i32 {mA[r]}, {r}, {t0}")
    for g in range(2):
        k(f"s_and_b32 {st0}, {sflag}, {1 << g}"); k(f"s_cbranch_scc0 {Lb(f'fbdone{g}')}")
        M = NM.sub(0, 2); AL = NM.sub(2, 2); LL = [NM.sub(4, 4), NM.sub(8, 4)]; MN = NM.sub(12, 2); MT = NM.sub(14, 2)
        for j in range(64): k(f"v_mov_b32 {ACC[g*64+j]}, 0")
        for qb in range(2):
            k(f"v_mov_b32 {M[qb]}, {vinf}")
            for r in range(4): k(f"v_mov_b32 {LL[qb][r]}, 0")
        k(f"v_mov_b32 {t2}, 0")
        k(f"s_mov_b32 {scnt}, 0")
        k.label(Lb(f"fb{g}"))
        k(f"s_lshl_b32 {st0}, {scnt}, 13"); k(f"s_add_u32 {st1}, {st0}, {512*1024}")
        for f in range(16):
            k(f"buffer_load_dwordx4 {F2.sub(4*f,4)}, {vl16 if f % 8 < 4 else vl16b}, {sKV}, {st0 if f < 8 else st1} offen offset:{(f%4)*1024}")
        k(f"s_cmp_eq_u32 {scnt}, {srg[g]}"); k(f"s_cselect_b64 {mX}, 0, -1")
        for r in range(4): k(f"s_or_b64 {mT[r]}, {mA[r]}, {mX}")
        L, tiles = maskops(g, "a", (mT, mX), lambda qb, r: t2)
        k.ext(L)
        k("s_waitcnt vmcnt(0)")
        for kb in range(2):
            for qb in range(2):
                d = Sq(0, 0, qb).sub(4 * kb, 4)
                for ks in range(4):
                    k(f"{MF} {d}, {F2.sub(4*(4*kb+ks),4)}, {Qf(g,qb,ks)}, {tiles[(qb,kb)] if ks == 0 else d}")
        k("s_nop 7")
        for qb in range(2):
            s = Sq(0, 0, qb)
            k(f"v_max3_f32 {MN[qb]}, {s[0]}, {s[1]}, {s[2]}"); k(f"v_max3_f32 {MN[qb]}, {MN[qb]}, {s[3]}, {s[4]}")
            k(f"v_max3_f32 {MN[qb]}, {MN[qb]}, {s[5]}, {s[6]}"); k(f"v_max3_f32 {MN[qb]}, {MN[qb]}, {s[7]}, {M[qb]}")
        allreduce(k, [MN[0], MN[1]], [MT[0], MT[1]], op="v_max_f32", cross_only=True)
        for qb in range(2):
            s = Sq(0, 0, qb)
            k(f"v_sub_f32 {AL[qb]}, {M[qb]}, {MN[qb]}"); k(f"v_exp_f32 {AL[qb]}, {AL[qb]}"); k(f"v_mov_b32 {M[qb]}, {MN[qb]}")
            for e in range(8): k(f"v_sub_f32 {s[e]}, {s[e]}, {MN[qb]}")
            for e in range(8): k(f"v_exp_f32 {s[e]}, {s[e]}")
            for db in range(8):
                for r in range(4): k(f"v_mul_f32 {O(g,db,qb)[r]}, {O(g,db,qb)[r]}, {AL[qb]}")
            for r in range(4): k(f"v_mul_f32 {LL[qb][r]}, {LL[qb][r]}, {AL[qb]}")
            for c in range(4): k(f"v_cvt_pk_bf16_f32 {s[c]}, {s[2*c]}, {s[2*c+1]}")
        k("s_nop 1")
        for qb in range(2):
            for db in range(8):
                k(f"{MF} {O(g,db,qb)}, {F2.sub(4*(8+db),4)}, {Sq(0,0,qb).sub(0,4)}, {O(g,db,qb)}")
            k(f"{MF} {LL[qb]}, {ONES}, {Sq(0,0,qb).sub(0,4)}, {LL[qb]}")
        k("s_nop 7")
        k(f"s_add_u32 {scnt}, {scnt}, 1"); k(f"s_cmp_le_u32 {scnt}, {srg[g]}"); k(f"s_cbranch_scc1 {Lb(f'fb{g}')}")
        epilogue(g, [LL[0][0], LL[1][0]])
        k.label(Lb(f"fbdone{g}"))
    k.label(E)
    k("s_endpgm")
    k.L = resolve_waits(k.L)
    return k, (name, 256, 256, 131072), (512, 256, 100)

if __name__ == "__main__":
    import hazard
    dbg = "dbg" in sys.argv
    k1_, l1, r1 = gen_k1(dbg=dbg, touch=False)
    k2_, l2, r2 = gen_k2(dbg=dbg, thr=0.5 if "force" in sys.argv else 2.0**60, dmamode=1 if "dm1" in sys.argv else 0)
    hazard.check(k2_.L, k2_.name)
    p = "t_k2.s"
    open(p, "w").write(build_file([(k1_, *r1), (k2_, *r2)], [l1, l2]))
    check_file(p)
```

```python
from asmlib import *
from layout import *
from k1 import *
import math

def gen_ksplit(name, mode, stflag="sc1", dbg=False, kern=2):
    k = Kern(name)
    ST = Stamps(dbg, kern=kern)
    V = Alloc('v', 1, 256); S = Alloc('s', 3, 72)
    NKS = 128 if mode == "out" else 43
    NST = 32 if mode == "out" else 11
    NB = 8
    vlane = V(); vl16 = V(); t0 = V(); t1 = V(); t2 = V(); vrow = V(); vrd = V()
    vb = V(4, 1); vw = V(3, 1)
    ACC = V(64); RD = V(48); XR = V(8); BR = V(8); PK = V(8); vs = V(2); vt_ = V(2)
    RING = Reg('a', 0, 256)
    swave = S(); smb = S(); snb = S(); st0 = S(); st1 = S(); so = S(); shf = S(); srow = S()
    pA = S(2); pB = S(2); pWS = S(2)
    sW = S(4); sAct = S(4); sX = S(4); sHF = S(4); sD = S(4)
    E = f"L_end_{name}"
    k(f"s_cmp_ge_u32 s2, 256"); k(f"s_cbranch_scc1 {E}")
    k.ext(ST("start"))
    k(f"s_load_dwordx2 {pWS}, s[0:1], 104")
    if mode == "out": k(f"s_load_dwordx2 {pA}, s[0:1], 0")
    else:
        k(f"s_load_dwordx2 {pA}, s[0:1], 88"); k(f"s_load_dwordx2 {pB}, s[0:1], 80")
    wave_ids(k, swave, vlane, t0)
    k(f"v_lshlrev_b32 {vl16}, 4, {vlane}")
    k(f"s_and_b32 {st0}, s2, 7"); k(f"s_lshl_b32 {st0}, {st0}, 2"); k(f"s_lshr_b32 {smb}, s2, 6"); k(f"s_add_u32 {smb}, {smb}, {st0}")
    k(f"s_bfe_u32 {snb}, s2, 0x30003")
    for r in range(4):
        k(f"s_add_u32 {st0}, {swave}, {r}"); k(f"s_and_b32 {st0}, {st0}, 3"); k(f"s_lshl_b32 {st1}, {st0}, 10")
        k(f"v_add_u32 {vb[r]}, {st1}, {vl16}")
        if r:
            k(f"s_mul_i32 {st1}, {st0}, 12288"); k(f"s_add_u32 {st1}, {st1}, {(r-1)*4096}"); k(f"v_add_u32 {vw[r-1]}, {st1}, {vl16}")
    k(f"s_mul_i32 {st1}, {swave}, 12288"); k(f"v_add_u32 {vrd}, {st1}, {vl16}")
    k(f"s_mul_i32 {so}, {swave}, {NST*4096}")
    k(f"s_mul_i32 {st0}, {snb}, {NKS*4096}"); k(f"s_add_u32 {st0}, {st0}, {WS_WOP if mode == 'out' else WS_W2P}")
    k(f"s_mul_i32 {st1}, {smb}, {NKS*4096}"); k(f"s_add_u32 {st1}, {st1}, {WS_CTX if mode == 'out' else WS_HM}")
    k(f"s_waitcnt lgkmcnt(0)")
    srd(k, sW, pWS, NKS * 4096, st0); srd(k, sAct, pWS, NKS * 4096, st1)
    Wf = lambda s, cb: RING.sub((s % NB) * 32 + cb * 4, 4)
    Af = lambda s, rb: RING.sub((s % NB) * 32 + 16 + rb * 4, 4)
    def loads(s):
        L = [f"buffer_load_dwordx4 {Wf(s,c)}, {vl16}, {sW}, {so} offen offset:{c*1024} ; tag=s{s}" for c in range(4)]
        L += [f"buffer_load_dwordx4 {Af(s,r)}, {vb[r]}, {sAct}, {so} offen ; tag=s{s}" for r in range(4)]
        return L + [f"s_add_u32 {so}, {so}, 4096"]
    PRE = 6
    for s in range(2): k.ext(loads(s))
    k(f"s_lshl_b32 {srow}, {smb}, 2"); k(f"s_add_u32 {srow}, {srow}, {swave}")
    k(f"s_lshl_b32 {shf}, {srow}, 14"); k(f"s_lshl_b32 {st0}, {snb}, 11"); k(f"s_add_u32 {shf}, {shf}, {st0}")
    k(f"v_and_b32 {t0}, 15, {vlane}"); k(f"v_lshrrev_b32 {t1}, 4, {vlane}"); k(f"v_lshlrev_b32 {t1}, 5, {t1}")
    k(f"v_lshl_add_u32 {vrow}, {t0}, 10, {t1}")
    srd(k, sX, pA, 2 * MB); srd(k, sHF, pWS, 2 * MB, WS_HF)
    k(f"s_lshl_b32 {st1}, {srow}, 14"); k(f"s_lshl_b32 {st0}, {snb}, 7"); k(f"s_add_u32 {st1}, {st1}, {st0}")
    if mode == "out":
        srd(k, sD, pWS, 2048 * 64, WS_STAT)
        for j in range(2): k(f"buffer_load_dwordx4 {XR.sub(4*j,4)}, {vrow}, {sX}, {st1} offen offset:{16*j} ; tag=e")
    else:
        srd(k, sD, pB, 1024)
        for j in range(2): k(f"buffer_load_dwordx4 {XR.sub(4*j,4)}, {vl16}, {sHF}, {shf} offen offset:{1024*j} ; tag=e")
        for j in range(2): k(f"buffer_load_dwordx4 {BR.sub(4*j,4)}, {t1}, {sD}, {st0} offen offset:{16*j} ; tag=e")
    for s in range(2, PRE): k.ext(loads(s))
    T = lambda cb, rb: ACC.sub((rb * 4 + cb) * 4, 4)
    nxt = PRE
    s = 0
    while s < NST:
        grp = [s, s + 1] if s + 1 < NST else [s]
        mf = []
        for rb in range(4):
            for cb in range(4):
                for x in grp:
                    mf.append(f"{MF} {T(cb,rb)}, {Wf(x,cb)}, {Af(x,rb)}, {'0' if x == 0 else T(cb,rb)}")
        G = Gaps(mf)
        q = []
        for x in range(2):
            if nxt < NST: q += loads(nxt); nxt += 1
        k(f"WAITVM s{grp[-1]}")
        if s == 0: k.ext(ST("go"))
        sched_queue(G, q, 0); assert not q
        G.emit(k)
        s += 2
    k.ext(ST("mm"))
    k("s_nop 7")
    for r in range(1, 4):
        for cb in range(4): k(f"ds_write_b128 {vw[r-1]}, {T(cb,r)} offset:{cb*1024}")
    k("s_waitcnt lgkmcnt(0)"); k("s_barrier")
    for j in range(12): k(f"ds_read_b128 {RD.sub(4*j,4)}, {vrd} offset:{j*1024}")
    k("WAITVM e")
    for src in ([XR] if mode == "out" else [XR, BR]):
        for j in range(8):
            k(f"v_lshlrev_b32 {t0}, 16, {src[j]}"); k(f"v_and_b32 {t2}, 0xffff0000, {src[j]}")
            k(f"v_add_f32 {ACC[2*j]}, {ACC[2*j]}, {t0}"); k(f"v_add_f32 {ACC[2*j+1]}, {ACC[2*j+1]}, {t2}")
    for p in range(3):
        k(f"s_waitcnt lgkmcnt({8-4*p})")
        for j in range(16): k(f"v_add_f32 {ACC[j]}, {ACC[j]}, {RD[16*p+j]}")
    for j in range(8): k(f"v_cvt_pk_bf16_f32 {PK[j]}, {ACC[2*j]}, {ACC[2*j+1]}")
    if mode == "out":
        for j in range(2): k(f"buffer_store_dwordx4 {PK.sub(4*j,4)}, {vl16}, {sHF}, {shf} offen offset:{1024*j} {stflag}")
        k(f"v_mov_b32 {vs[0]}, 0"); k(f"v_mov_b32 {vs[1]}, 0")
        for j in range(8):
            k(f"v_lshlrev_b32 {t0}, 16, {PK[j]}"); k(f"v_and_b32 {t2}, 0xffff0000, {PK[j]}")
            k(f"v_add_f32 {vs[0]}, {vs[0]}, {t0}"); k(f"v_fmac_f32 {vs[1]}, {t0}, {t0}")
            k(f"v_add_f32 {vs[0]}, {vs[0]}, {t2}"); k(f"v_fmac_f32 {vs[1]}, {t2}, {t2}")
        allreduce(k, [vs[0], vs[1]], [vt_[0], vt_[1]], cross_only=True)
        k(f"v_lshlrev_b32 {t0}, 6, {vlane}")
        k(f"s_lshl_b32 {st0}, {srow}, 10"); k(f"s_lshl_b32 {st1}, {snb}, 3"); k(f"s_add_u32 {st0}, {st0}, {st1}")
        k(f"s_mov_b64 exec, 0xffff")
        k(f"buffer_store_dwordx2 {vs}, {t0}, {sD}, {st0} offen {stflag}")
        k(f"s_mov_b64 exec, -1")
    else:
        for j in range(2): k(f"buffer_store_dwordx4 {PK.sub(4*j,4)}, {vrow}, {sX}, {st1} offen offset:{16*j}")
    if dbg:
        k.ext(ST("stored")); k("s_waitcnt vmcnt(0)"); k.ext(ST("drained"))
        ST.dump(k, pWS, swave, sD, st0, t0, t1, WS_DBG)
    k.label(E); k("s_endpgm")
    k.L = resolve_waits(k.L)
    return k, (name, 256, 256, 49152), (512, 256, 100)

def gen_up(name="up_kernel", stflag="sc1", dbg=False):
    k = Kern(name)
    ST = Stamps(dbg, kern=3)
    V = Alloc('v', 1, 256); S = Alloc('s', 3, 72)
    vlane = V(); vl16 = V(); vl16b = V(); t0 = V(); t1 = V(); t2 = V(); vra = V()
    ACC = V(48); WF = [V(16), V(16)]; B1 = V(12); C1 = V(24); BF = V(24); SR = V(8); vt_ = V(4); RS = V(2, 1); MR = V(2, 1)
    G0 = V(4); G1 = V(4); PK = [V(4), V(4)]
    H = Reg('a', 0, 128)
    swave = S(); smt = S(); sng = S(); st0 = S(); st1 = S(); so = S(); sldsw = S(); shm = S(); sk1 = S(); sk2 = S()
    pB = S(2); pWS = S(2)
    sW = S(4); sHF = S(4); sST = S(4); sB1 = S(4); sC1 = S(4); sHM = S(4)
    E = f"L_end_{name}"
    k(f"s_cmp_ge_u32 s2, 256"); k(f"s_cbranch_scc1 {E}")
    k(f"s_bfe_u32 {sng}, s2, 0x40003"); k(f"s_cmp_eq_u32 {sng}, 15"); k(f"s_cbranch_scc1 {E}")
    k.ext(ST("start"))
    k(f"s_load_dwordx2 {pWS}, s[0:1], 104"); k(f"s_load_dwordx2 {pB}, s[0:1], 64")
    wave_ids(k, swave, vlane, t0)
    k(f"v_lshlrev_b32 {vl16}, 4, {vlane}"); k(f"v_add_u32 {vl16b}, 4096, {vl16}")
    k(f"s_and_b32 {st0}, s2, 7"); k(f"s_lshl_b32 {st0}, {st0}, 1"); k(f"s_lshr_b32 {smt}, s2, 7"); k(f"s_add_u32 {smt}, {smt}, {st0}")
    k(f"s_lshl_b32 {smt}, {smt}, 2"); k(f"s_add_u32 {smt}, {smt}, {swave}")
    k(f"s_lshl_b32 {sldsw}, {swave}, 13")
    k(f"s_mul_i32 {so}, {sng}, {6*16384}"); k(f"s_add_u32 {so}, {so}, {sldsw}")
    k(f"s_waitcnt lgkmcnt(0)")
    srd(k, sW, pWS, 88 * 16384, WS_W1P); srd(k, sHF, pWS, 2 * MB, WS_HF)
    def wload(pp):
        for p in range(8):
            if p % 4 == 0: k(f"s_add_u32 m0, {sldsw}, {pp*32768 + (p//4)*4096}"); k("s_nop 0")
            k(f"buffer_load_dwordx4 {vl16 if p < 4 else vl16b}, {sW}, {so} offen offset:{(p%4)*1024} lds ; tag=w{pp}")
        k(f"s_add_u32 {so}, {so}, 32768")
    Hf = lambda rb, ks: H.sub((rb * 16 + ks) * 4, 4)
    wload(0)
    k(f"s_lshl_b32 {st0}, {smt}, 15")
    for kq in range(4):
        for rb in range(2):
            k(f"s_add_u32 {st1}, {st0}, {rb*16384 + kq*4096}")
            for ks in range(4): k(f"buffer_load_dwordx4 {Hf(rb,4*kq+ks)}, {vl16}, {sHF}, {st1} offen offset:{ks*1024} ; tag=h{kq}")
    srd(k, sST, pWS, 2048 * 64, WS_STAT); srd(k, sB1, pB, 2752); srd(k, sC1, pWS, 1376 * 4, WS_C1)
    k(f"v_and_b32 {t0}, 15, {vlane}"); k(f"v_lshrrev_b32 {t1}, 4, {vlane}"); k(f"v_lshlrev_b32 {t1}, 4, {t1}")
    k(f"v_lshl_add_u32 {t0}, {t0}, 6, {t1}"); k(f"v_lshrrev_b32 {t2}, 1, {t1}")
    k(f"s_lshl_b32 {st0}, {smt}, 11")
    for rb in range(2): k(f"buffer_load_dwordx4 {SR.sub(4*rb,4)}, {t0}, {sST}, {st0} offen offset:{rb*1024} ; tag=e")
    wload(1)
    k("WAITVM w0"); k("s_barrier")
    k(f"s_mul_i32 {st0}, {sng}, 384"); k(f"s_lshr_b32 {st1}, {st0}, 1")
    for fb in range(6):
        k(f"buffer_load_dwordx4 {C1.sub(4*fb,4)}, {t1}, {sC1}, {st0} offen offset:{fb*64} ; tag=e")
        k(f"buffer_load_dwordx2 {B1.sub(2*fb,2)}, {t2}, {sB1}, {st1} offen offset:{fb*32} ; tag=e")
    k(f"s_lshr_b32 {st0}, {smt}, 1"); k(f"s_mul_i32 {st0}, {st0}, {43*4096}"); k(f"s_add_u32 {st0}, {st0}, {WS_HM}")
    srd(k, sHM, pWS, 43 * 4096, st0)
    k(f"s_and_b32 {st0}, {smt}, 1"); k(f"s_lshl_b32 {st0}, {st0}, 11"); k(f"s_mul_i32 {shm}, {sng}, {3*4096}"); k(f"s_add_u32 {shm}, {shm}, {st0}")
    K1 = 2 * math.sqrt(2 / math.pi) * math.log2(math.e)
    k(f"s_mov_b32 {sk1}, {f2h(-K1 * 0.044715)}"); k(f"v_mov_b32 {vra}, {f2h(-K1)}")
    vk2 = vra
    T = lambda fb, rb: ACC.sub((fb * 2 + rb) * 4, 4)
    units = [(fb, kq) for fb in range(6) for kq in range(4)]
    k(f"v_add_u32 {t0}, 65536, {vl16}")
    def reads(u):
        fb, kq = units[u]
        o = fb * 16384 + kq * 4096
        return [f"ds_read_b128 {WF[u%2].sub(4*ks,4)}, {vl16 if o < 65536 else t0} offset:{o % 65536 + ks*1024}" for ks in range(4)]
    def stats():
        L = Kern("x")
        L("WAITVM e")
        for rb in range(2):
            L(f"v_add_f32 {SR[4*rb]}, {SR[4*rb]}, {SR[4*rb+2]}"); L(f"v_add_f32 {SR[4*rb+1]}, {SR[4*rb+1]}, {SR[4*rb+3]}")
        allreduce(L, [SR[0], SR[1], SR[4], SR[5]], [vt_[j] for j in range(4)], cross_only=True)
        for rb in range(2):
            mu, q, a, b = SR[4*rb], SR[4*rb+1], SR[4*rb+2], SR[4*rb+3]
            L(f"v_mul_f32 {mu}, {f2h(1/512)}, {mu}"); L(f"v_mul_f32 {q}, {f2h(1/512)}, {q}")
            L(f"v_fma_f32 {q}, -{mu}, {mu}, {q}"); L(f"v_max_f32 {q}, 0, {q}")
            L(f"v_add_f32 {a}, {f2h(1e-5)}, {q}"); L(f"v_rsq_f32 {a}, {a}"); L("s_nop 0")
            L(f"v_mul_f32 {b}, {a}, {a}"); L(f"v_mul_f32 {b}, {b}, {q}"); L(f"v_add_f32 {b}, {f2h(1e-5)}, {b}")
            L(f"v_rsq_f32 {b}, {b}"); L("s_nop 0")
            L(f"v_mul_f32 {RS[rb]}, {a}, {b}"); L(f"v_mul_f32 {MR[rb]}, {mu}, {RS[rb]}")
        for j in range(12):
            L(f"v_lshlrev_b32 {BF[2*j]}, 16, {B1[j]}"); L(f"v_and_b32 {BF[2*j+1]}, 0xffff0000, {B1[j]}")
        return L.L
    def gelu(pp):
        L = []
        for rb in range(2):
            for fb in (2 * pp, 2 * pp + 1):
                t = T(fb, rb)
                L += [f"v_fma_f32 {G0[r]}, -{MR[rb]}, {C1[4*fb+r]}, {BF[4*fb+r]}" for r in range(4)]
                L += [f"v_fma_f32 {t[r]}, {t[r]}, {RS[rb]}, {G0[r]}" for r in range(4)]
                L += [f"v_mul_f32 {G0[r]}, {t[r]}, {t[r]}" for r in range(4)]
                L += [f"v_fma_f32 {G0[r]}, {G0[r]}, {sk1}, {vk2}" for r in range(4)]
                L += [f"v_mul_f32 {G0[r]}, {G0[r]}, {t[r]}" for r in range(4)]
                L += [f"v_exp_f32 {G0[r]}, {G0[r]}" for r in range(4)]
                L += [f"v_add_f32 {G0[r]}, 1.0, {G0[r]}" for r in range(4)]
                L += [f"v_rcp_f32 {G0[r]}, {G0[r]}" for r in range(4)]
                L += [f"v_mul_f32 {t[r]}, {t[r]}, {G0[r]}" for r in range(4)]
            L += pack(PK[rb], T(2 * pp, rb), T(2 * pp + 1, rb))
            L.append(f"buffer_store_dwordx4 {PK[rb]}, {vl16}, {sHM}, {shm} offen offset:{rb*1024} {stflag}")
        L.append(f"s_add_u32 {shm}, {shm}, 4096")
        return L
    k.ext(reads(0))
    q = []
    for u, (fb, kq) in enumerate(units):
        if fb == 0: k(f"WAITVM h{kq} lgkm=0")
        else: k("s_waitcnt lgkmcnt(0)")
        if u == 0: k.ext(ST("go"))
        if u == 4: wload(2)
        if u in (7, 15):
            k(f"WAITVM w{(u+1)//8}"); k("s_barrier")
        mf = [f"{MF} {T(fb,rb)}, {WF[u%2].sub(4*ks,4)}, {Hf(rb,4*kq+ks)}, {'0' if kq == 0 and ks == 0 else T(fb,rb)}" for rb in range(2) for ks in range(4)]
        G = Gaps(mf, cap=16)
        if u + 1 < len(units):
            for i, x in enumerate(reads(u + 1)): G.put(i, x)
        if u == 9: q += gelu(0)
        if u == 17: q += gelu(1)
        g = 0
        while q and g < 8:
            if G.cost(g) + icost(q[0]) > G.cap: g += 1; continue
            G.g[g].append(q.pop(0))
        G.emit(k)
        if u == 7: k.ext(stats())
    k.ext(ST("mm"))
    k.ext(q)
    k("s_nop 4")
    k.ext(gelu(2))
    if dbg:
        k.ext(ST("stored")); k("s_waitcnt vmcnt(0)"); k.ext(ST("drained"))
        ST.dump(k, pWS, swave, sW, st0, t0, t1, WS_DBG)
    k.label(E); k("s_endpgm")
    k.L = resolve_waits(k.L)
    return k, (name, 256, 256, 98304), (384, 256, 100)
```

```python
MB = 1 << 20
WS_KV = 0
WS_XN = 32 * MB
WS_CTX = 34 * MB
WS_WOP = 50 * MB
WS_W2P = 54 * MB
WS_W1P = 56 * MB
WS_C1 = 58 * MB
WS_HF = 59 * MB
WS_STAT = 61 * MB
WS_HM = 62 * MB
WS_DBG = 100 * MB
import math
QSCALE = math.log2(math.e) / math.sqrt(128.0)
WS_FLG = 70 * MB
FL1, FL2, FL3, FL4 = 0, 32 * 128, 160 * 128, 224 * 128
WS_PART = 72 * MB
```

```python
import sys
from asmlib import *
import hazard, k1, k2, k345
def build(path, dbg=False, force=False):
    ks = [k1.gen_k1(dbg=dbg, touch=False), k2.gen_k2(dbg=dbg, thr=0.5 if force else 2.0**60),
          k345.gen_ksplit("outp_kernel", "out", dbg=dbg, kern=2), k345.gen_up(dbg=dbg), k345.gen_ksplit("down_kernel", "down", dbg=dbg, kern=4)]
    for k, l, r in ks: hazard.check(k.L, k.name)
    hdr = "; pre-LN MLA attention + MLP-mixer channel MLP, 5 launches (generated by my own python generator)\n"
    open(path, "w").write(build_file([(k, *r) for k, l, r in ks], [l for k, l, r in ks], hdr))
    check_file(path)
if __name__ == "__main__":
    build("t_all.s"); build("t_all_dbg.s", dbg=True)
```

```python
import re, subprocess, os, sys

KNAME = "sequential_preLN__compressed_kv_cla__mixer_channel_mlp__prompt"

def vr(b, n=1):
    return f"v{b}" if n == 1 else f"v[{b}:{b+n-1}]"
def ar(b, n=1):
    return f"a{b}" if n == 1 else f"a[{b}:{b+n-1}]"
def sr(b, n=1):
    return f"s{b}" if n == 1 else f"s[{b}:{b+n-1}]"

class Reg:
    def __init__(self, kind, base, n=1):
        self.kind, self.base, self.n = kind, base, n
    def __str__(self):
        return f"{self.kind}{self.base}" if self.n == 1 else f"{self.kind}[{self.base}:{self.base+self.n-1}]"
    __repr__ = __str__
    def __format__(self, spec):
        return str(self)
    def __getitem__(self, i):
        if isinstance(i, slice):
            a = i.start or 0
            b = self.n if i.stop is None else i.stop
            assert 0 <= a < b <= self.n, (a, b, self.n)
            return Reg(self.kind, self.base + a, b - a)
        assert 0 <= i < self.n, (i, self.n)
        return Reg(self.kind, self.base + i, 1)
    def sub(self, off, n):
        return self[off:off+n]

class Alloc:
    def __init__(self, kind, start, limit):
        self.kind, self.cur, self.limit = kind, start, limit
        self.hi = start
    def __call__(self, n=1, align=None):
        if align is None:
            align = 1 if n == 1 else (2 if n == 2 else 4)
        b = (self.cur + align - 1) // align * align
        assert b + n <= self.limit, f"out of {self.kind} regs: want {n} at {b} limit {self.limit}"
        self.cur = b + n
        self.hi = max(self.hi, self.cur)
        return Reg(self.kind, b, n)
    def mark(self):
        return self.cur
    def reset(self, m):
        self.cur = m

class Kern:
    def __init__(self, name):
        self.name = name
        self.L = []
    def __call__(self, s):
        for ln in s.split("\n"):
            ln = ln.strip()
            if ln:
                self.L.append(ln)
    def ext(self, lst):
        for x in lst:
            self(x)
    def label(self, l):
        self.L.append(l + ":")
    def text(self):
        out = [".text", f".globl {self.name}", ".p2align 8", f".type {self.name},@function", f"{self.name}:"]
        for l in self.L:
            out.append(l if l.endswith(":") else "    " + l)
        return "\n".join(out) + "\n"

def descriptor(name, nvgpr, accum, nsgpr=102):
    return f""".amdhsa_kernel {name}
  .amdhsa_next_free_vgpr {nvgpr}
  .amdhsa_next_free_sgpr {nsgpr}
  .amdhsa_accum_offset {accum}
  .amdhsa_group_segment_fixed_size 0
  .amdhsa_kernarg_size 112
  .amdhsa_user_sgpr_count 2
  .amdhsa_user_sgpr_kernarg_segment_ptr 1
  .amdhsa_system_sgpr_workgroup_id_x 1
.end_amdhsa_kernel
"""

def build_single(kern, nv, acc, ns, grid, block, lds, header=""):
    s = header + f"; @launch grid=({grid},1,1) block=({block},1,1) lds={lds}\n"
    s += '.amdgcn_target "amdgcn-amd-amdhsa--gfx950"\n' + kern.text()
    s += '.section .rodata,"a"\n.p2align 6\n' + descriptor(kern.name, nv, acc, ns)
    return s

def build_file(kerns, launches, header=""):
    s = header
    for (n, g, b, l) in launches:
        s += f"; @launch kernel={n} grid=({g},1,1) block=({b},1,1) lds={l}\n"
    s += '.amdgcn_target "amdgcn-amd-amdhsa--gfx950"\n'
    for (k, *_r) in kerns:
        s += k.text()
    s += '.section .rodata,"a"\n'
    for (k, nv, acc, ns) in kerns:
        s += ".p2align 6\n" + descriptor(k.name, nv, acc, ns)
    return s

def check_file(path):
    sys.path.insert(0, "cdna_kernels")
    import cdna_launch as cl
    asm = open(path).read()
    h = cl.with_harness_metadata(asm, KNAME + "_kernel", 14, launch_lists=True)
    hp = path[:-2] + ".harness.s_"
    open(hp, "w").write(h)
    co = path[:-2] + ".co"
    r = subprocess.run(["clang", "-x", "assembler", "-target", "amdgcn-amd-amdhsa",
                        "-mcpu=gfx950", hp, "-o", co], capture_output=True, text=True)
    if r.returncode:
        print(r.stderr[:4000]); raise SystemExit("assembly failed")
    launches = cl.launch_list_of(asm, True)
    prob = cl.address_register_problem(co, KNAME + "_kernel",
                                       None if launches is None else cl.launch_list_kernel_names(launches))
    if prob:
        print(prob); raise SystemExit("check failed")
    print("OK", path, os.path.getsize(path), "bytes")

def icost(x):
    op = x.split()[0]
    if x.endswith(":"): return 0
    if op in ("v_exp_f32", "v_rcp_f32", "v_rsq_f32", "v_log_f32"): return 8
    if op.startswith("buffer_") or op.startswith("global_"): return 8
    return 4
def ismem(x):
    return x.startswith("ds_") or x.startswith("buffer_") or x.startswith("global_")

class Gaps:
    def __init__(self, mf, cap=8):
        self.mf = mf; self.n = len(mf); self.cap = cap
        self.g = [[] for _ in mf]
    def cost(self, g): return sum(icost(x) for x in self.g[g])
    def put(self, g, x):
        self.g[g].append(x); return g
    def add(self, x, lo=0, hi=None, onemem=True):
        hi = self.n - 1 if hi is None else min(hi, self.n - 1)
        lo = min(lo, hi)
        c = icost(x)
        for g in range(lo, hi + 1):
            if self.cost(g) + c <= self.cap and not (onemem and ismem(x) and any(ismem(y) for y in self.g[g])):
                self.g[g].append(x); return g
        g = min(range(lo, hi + 1), key=lambda t: self.cost(t))
        self.g[g].append(x); return g
    def chain(self, xs, lo=0, hi=None, step=0):
        pos = []
        for x in xs:
            g = self.add(x, lo, hi); pos.append(g); lo = g + step
        return pos
    def emit(self, k, memfirst=True):
        for m, gl in zip(self.mf, self.g):
            k(m)
            for x in gl: k(x)

def resolve_waits(lines):
    out = []; ops = []; done = 0
    for ln in lines:
        if ln.startswith("WAITVM"):
            p = ln.split()
            tags = p[1].split(",")
            last = max(max((i for i, t in enumerate(ops) if t == tg), default=-1) for tg in tags)
            assert last >= 0, ("no op with tag", tags)
            n = len(ops) - 1 - last
            extra = "".join(f" lgkmcnt({q[5:]})" for q in p[2:] if q.startswith("lgkm="))
            if last + 1 <= done and not extra:
                out.append("s_nop 0"); continue
            if last + 1 <= done:
                out.append("s_waitcnt" + extra); continue
            assert n <= 63
            done = max(done, last + 1)
            out.append(f"s_waitcnt vmcnt({n}){extra}")
            continue
        if ln.startswith("VMRESET"):
            ops = []; done = 0; continue
        if ln.startswith("buffer_") or ln.startswith("global_"):
            m = re.search(r";\s*tag=(\S+)", ln)
            if len(ops) - done >= 62:
                out.append("s_waitcnt vmcnt(52)"); done = len(ops) - 52
            ops.append(m.group(1) if m else None)
        m = re.match(r"s_waitcnt.*vmcnt\((\d+)\)", ln)
        if m: done = max(done, len(ops) - int(m.group(1)))
        out.append(ln)
    return out

def srd(k, d, base, size, off=None):
    if off is None:
        k(f"s_mov_b32 {d[0]}, {base[0]}"); k(f"s_mov_b32 {d[1]}, {base[1]}")
    else:
        k(f"s_add_u32 {d[0]}, {base[0]}, {off}"); k(f"s_addc_u32 {d[1]}, {base[1]}, 0")
    k(f"s_mov_b32 {d[2]}, {size}"); k(f"s_mov_b32 {d[3]}, 0x20000")

def allreduce(k, regs, tmps, op="v_add_f32", rows_only=False, cross_only=False):
    pad = lambda: k("s_nop 1") if len(regs) < 3 else None
    if not cross_only:
        for dpp in ("quad_perm:[1,0,3,2]", "quad_perm:[2,3,0,1]", "row_half_mirror", "row_mirror"):
            k("s_nop 1")
            for r in regs: k(f"{op}_dpp {r}, {r}, {r} {dpp} row_mask:0xf bank_mask:0xf")
    if rows_only: return
    for sw in ("v_permlane16_swap_b32", "v_permlane32_swap_b32"):
        for r, t in zip(regs, tmps): k(f"v_mov_b32 {t}, {r}")
        k("s_nop 1")
        for r, t in zip(regs, tmps): k(f"{sw} {r}, {t}")
        for r, t in zip(regs, tmps): k(f"{op} {r}, {r}, {t}")

class Stamps:
    def __init__(self, on, base=72, kern=0):
        self.on, self.base, self.n, self.kern = on, base, 0, kern
        self.names = []
    def __call__(self, name):
        if not self.on: return []
        r = [f"s_memrealtime s[{self.base+2*self.n}:{self.base+2*self.n+1}]"]
        self.names.append(name); self.n += 1
        assert self.base + 2 * self.n <= 100
        return r
    def dump(self, k, pWS, swave, sD, st, v0, v1, WS_DBG):
        if not self.on: return
        k("s_waitcnt lgkmcnt(0)")
        srd(k, sD, pWS, 1 << 20, WS_DBG + self.kern * (1 << 20))
        k(f"s_lshl_b32 {st}, s2, 3"); k(f"s_add_u32 {st}, {st}, {swave}"); k(f"s_lshl_b32 {st}, {st}, 6")
        k(f"v_mov_b32 {v1}, 0")
        for i in range(self.n):
            k(f"v_mov_b32 {v0}, s{self.base+2*i}")
            k(f"buffer_store_dword {v0}, {v1}, {sD}, {st} offen offset:{4*i}")
        k("s_waitcnt vmcnt(0)")
```

```python
import re, sys
RR = re.compile(r'\b([vas])(?:(\d+)|\[(\d+):(\d+)\])')
def regs(tok):
    out = set()
    for m in RR.finditer(tok):
        k = m.group(1)
        if m.group(2) is not None: out.add((k, int(m.group(2))))
        else:
            for i in range(int(m.group(3)), int(m.group(4)) + 1): out.add((k, i))
    t = tok.strip()
    if t in ('vcc',): out |= {('s', 'vcc')}
    if t in ('vcc_lo', 'vcc_hi'): out |= {('s', 'vcc')}
    if t == 'm0': out.add(('s', 'm0'))
    if t in ('exec', 'exec_lo', 'exec_hi'): out.add(('s', 'exec'))
    return out
TRANS = ('v_exp_f32', 'v_log_f32', 'v_rcp_f32', 'v_rsq_f32', 'v_sqrt_f32', 'v_sin_f32', 'v_cos_f32')
class I:
    def __init__(s, text, idx):
        s.text = text; s.idx = idx
        t = text.split(';')[0].strip()
        p = t.split(None, 1)
        s.op = p[0]; rest = p[1] if len(p) > 1 else ''
        ops = [x.strip() for x in re.split(r',\s*(?![^\[]*\])', rest)] if rest else []
        s.ops = ops
        op = s.op
        for suf in ('_e32', '_e64', '_dpp', '_sdwa'):
            if op.endswith(suf): op = op[:-len(suf)]
        s.b = op
        s.mfma = op.startswith('v_mfma')
        s.valu = op.startswith('v_') and not s.mfma
        s.salu = op.startswith('s_')
        s.ds = op.startswith('ds_')
        s.vmem = op.startswith('buffer_') or op.startswith('global_')
        s.trans = op in TRANS
        s.dpp = any(k in text for k in ('quad_perm', 'row_shr', 'row_ror', 'row_mirror', 'row_half_mirror', 'row_bcast', 'row_shl', 'row_newbcast'))
        s.perml = op.startswith('v_permlane')
        s.w = set(); s.r = set(); s.A = s.B = s.C = set(); s.sdata = set()
        s.states = 1
        if op == 's_nop': s.states = int(ops[0], 0) + 1
        first = lambda x: x.split()[0] if x else x
        if s.mfma:
            s.w = regs(ops[0]); s.A = regs(ops[1]); s.B = regs(ops[2]); s.C = regs(first(ops[3])); s.r = s.A | s.B | s.C
            s.passes = 8 if '32x32' in op else 4
        elif s.valu:
            if op.startswith('v_cmp'):
                s.w = regs(ops[0]); s.r = set().union(*[regs(x) for x in ops[1:]])
                if op.startswith('v_cmpx'): s.w |= {('s', 'exec')}
            elif s.perml and 'swap' in op:
                s.w = regs(ops[0]) | regs(ops[1]); s.r = set(s.w)
            elif op in ('v_add_co_u32', 'v_sub_co_u32', 'v_addc_co_u32'):
                s.w = regs(ops[0]) | regs(ops[1]); s.r = set().union(*[regs(x) for x in ops[2:]])
            elif op == 'v_nop': pass
            else:
                s.w = regs(ops[0]); s.r = set().union(*[regs(first(x)) if i == len(ops) - 2 else regs(x) for i, x in enumerate(ops[1:])]) if len(ops) > 1 else set()
                if op in ('v_fmac_f32', 'v_writelane_b32') or s.dpp: s.r |= s.w
        elif s.ds:
            if op.startswith('ds_read') or op.startswith('ds_bpermute') or op.startswith('ds_swizzle') :
                s.w = regs(ops[0]); s.r = set().union(*[regs(first(x)) for x in ops[1:]])
            else:
                s.r = set().union(*[regs(first(x)) for x in ops])
        elif s.vmem:
            lds = re.search(r'\blds\b', text) is not None
            s.lds = lds
            if 'load' in op and not lds:
                s.w = regs(ops[0]); s.r = set().union(*[regs(first(x)) for x in ops[1:]])
            else:
                s.r = set().union(*[regs(first(x)) for x in ops]) if ops else set()
                if 'store' in op and ('x4' in op or 'x3' in op):
                    s.sdata = regs(ops[0]) if op.startswith('buffer') else regs(ops[1])
            if lds: s.r |= {('s', 'm0')}
        elif s.salu:
            if op.startswith('s_cmp') or op in ('s_waitcnt', 's_barrier', 's_nop', 's_endpgm', 's_setprio', 's_sleep') or 'branch' in op:
                s.r = set().union(*[regs(x) for x in ops]) if ops and op.startswith('s_cmp') else set()
            else:
                s.w = regs(ops[0]) if ops else set(); s.r = set().union(*[regs(x) for x in ops[1:]]) if len(ops) > 1 else set()
                if 'saveexec' in op: s.w |= {('s', 'exec')}
def need(p, c):
    n = 0; why = ''
    def up(v, w):
        nonlocal n, why
        if v > n: n, why = v, w
    vw = {x for x in p.w if x[0] in 'va'}; sw = {x for x in p.w if x[0] == 's'}
    if p.valu:
        if c.mfma and vw & c.r: up(2, 'valu->mfma')
        if c.valu and c.perml and vw & c.r: up(2, 'valu->permlane')
        if c.valu and c.dpp and vw & c.r: up(2, 'valu->dpp')
        if c.b in ('v_readfirstlane_b32', 'v_readlane_b32') and vw & c.r: up(1, 'valu->readlane')
        if p.trans and c.valu and not c.trans and vw & c.r: up(1, 'trans->valu')
        if p.trans and c.mfma and vw & c.r: up(2, 'trans->mfma')
        if c.vmem and sw & c.r: up(5, 'valu sgpr->vmem')
        if c.valu and sw & c.r: up(2, 'valu sgpr->valu')
        if ('s', 'exec') in sw and (c.mfma or c.perml): up(4, 'exec->mfma')
        if ('s', 'exec') in sw and c.dpp: up(5, 'exec->dpp')
    if p.mfma:
        big = p.passes == 8
        if c.mfma:
            if vw & (c.A | c.B): up(12 if big else 8, 'mfma D->mfma A/B')
            if vw & c.C and not (vw == c.C and p.passes == c.passes): up(10 if big else 6, 'mfma D->mfma C partial')
            if vw & c.w and not (vw & c.C) : up(10 if big else 6, 'mfma D->mfma D WAW(conservative)')
        elif (c.valu or c.ds or c.vmem) and vw & (c.r | c.w): up(12 if big else 8, 'mfma D->valu/mem')
        if c.valu and p.C & c.w: up(7 if big else 3, 'mfma C WAR')
    if p.salu and ('s', 'm0') in p.w and c.vmem and getattr(c, 'lds', False): up(1, 'm0->dma')
    if p.vmem and p.sdata:
        if c.valu and p.sdata & c.w: up(2, 'store data WAR valu')
        elif (c.mfma or c.ds or c.vmem) and p.sdata & c.w: up(1, 'store data WAR')
    return n, why
def check(lines, name='', maxd=13):
    ins = []; lab = {}
    for ln in lines:
        t = ln.split(';')[0].strip()
        if not t or t.startswith('.'): continue
        if t.endswith(':'): lab[t[:-1]] = len(ins); continue
        ins.append(I(t, len(ins)))
    pred = [[] for _ in range(len(ins) + 1)]
    for i, x in enumerate(ins):
        if x.b == 's_endpgm': continue
        if 'branch' in x.b:
            pred[lab[x.ops[0]]].append(i)
            if x.b == 's_branch': continue
        if x.b in ('s_setpc_b64',): continue
        pred[i + 1].append(i)
    bad = 0
    NOSCC = ('s_mov', 's_cselect', 's_waitcnt', 's_barrier', 's_nop', 's_mul_i32', 's_load', 's_branch', 's_cbranch', 's_memrealtime', 's_setprio', 's_getpc', 's_endpgm', 's_sleep', 's_movk')
    lastw = None
    for c in ins:
        if c.b == 's_addc_u32':
            ok = lastw is not None and lastw.b == 's_add_u32' and {(k_, n_ + 1) for k_, n_ in lastw.w} == c.w
        elif c.b.startswith('s_cselect'): ok = lastw is not None and lastw.b.startswith('s_cmp')
        elif c.b.startswith('s_cbranch_scc'): ok = lastw is not None and (lastw.b.startswith('s_cmp') or lastw.b in ('s_sub_u32', 's_and_b32')) and ('s', 'm0') not in lastw.w
        else: ok = True
        if not ok:
            bad += 1; print(f"SCC[{name}] {lastw.text if lastw else None}  ->  #{c.idx} {c.text}")
        if c.salu and not c.b.startswith(NOSCC): lastw = c
    for c in ins:
        stack = [(p, 0) for p in pred[c.idx]]; seen = set()
        while stack:
            pi, d = stack.pop()
            if (pi, d) in seen: continue
            seen.add((pi, d))
            p = ins[pi]
            n, why = need(p, c)
            if n > d:
                bad += 1
                if bad < 30: print(f"HAZARD[{name}] {why}: need {n} have {d}\n    #{p.idx} {p.text}\n    #{c.idx} {c.text}")
            d2 = d + p.states
            if d2 < maxd:
                for q in pred[pi]: stack.append((q, d2))
    if bad: print(f"{name}: {bad} hazards")
    return bad
```

```python
from asmlib import *
from layout import *
from k1 import f2h, MF, setup_wstream, wdma, trreads, cb_mfmas, pack
import math, re

NEGINF = "0xff800000"
SPIN = 200000

def sched(G, q, lo, hi=None, stq=None, second=False):
    hi = G.n - 1 if hi is None else hi
    g = lo
    while q and g <= hi:
        x = q[0]
        if isinstance(x, tuple):
            stq.append(x[1]); q.pop(0); continue
        full = G.cost(g) + icost(x) > G.cap
        clash = ismem(x) and len(G.g[g]) > 0 and not (second and len(G.g[g]) == 1 and G.g[g][0].startswith("ds_"))
        if full or clash:
            g += 1; continue
        G.g[g].append(x); q.pop(0)
    while q and isinstance(q[0], tuple):
        stq.append(q[0][1]); q.pop(0)

def gen(name, dbg=False, thr=2.0**60, opt=None):
    opt = opt or {}
    SC = "sc1"; STF = opt.get("stf", "sc1")
    k = Kern(name)
    tail = Kern("tail")
    v = lambda b, n=1: Reg('v', b, n)
    a = lambda b, n=1: Reg('a', b, n)
    Lb = lambda s: f"L_{s}"
    E = Lb("end")
    vlane, vl16, vl16b, t0, t1, t2, vsig, vone, vpoll, vtr, vtrb, vinf, vm0, vm1, vm2 = [v(i) for i in range(1, 16)]
    X16 = v(16, 16); ACC = v(32, 128); WFr = v(160, 32); PB = v(192, 64)
    vW = X16.sub(0, 8); vco = X16.sub(8, 4); vcr = X16.sub(12, 4)
    WF = [WFr.sub(0, 16), WFr.sub(16, 16)]
    R = a(0, 256)
    S = Alloc("s", 3, 100)
    swave = S(); sh = S(); si = S(); st0 = S(); st1 = S(); st2 = S(); ssoff = S(); sldsw = S(); sspin = S()
    srg = S(2, 1); pWS = S(2)
    sFL = S(4); sKV = S(4); sXN = S(4); ssc = S(); sdb = S()
    mark0 = S.mark()
    nst = [0]; names = []
    def stamp(nm):
        if not dbg: return []
        r = ["s_memrealtime s[100:101]", "s_waitcnt lgkmcnt(0)", f"v_writelane_b32 v0, s100, {nst[0]}"]
        nst[0] += 1; names.append(nm); return r
    def poll_issue(tag, vaddr, sd, soff, imm=0):
        return f"buffer_load_dword {vpoll}, {vaddr}, {sd}, {soff} offen offset:{imm} {SC} ; tag={tag}"
    def poll_check(tag, vaddr, sd, soff, n, imm=0):
        tail.label(Lb("spin" + tag)); tail(f"s_mov_b32 {sspin}, {SPIN}")
        tail.label(Lb("spl" + tag))
        tail(f"buffer_load_dword {vpoll}, {vaddr}, {sd}, {soff} offen offset:{imm} {SC}")
        tail("s_waitcnt vmcnt(0)"); tail(f"v_cmp_gt_u32 vcc, {n}, {vpoll}"); tail("s_nop 0")
        tail(f"s_cbranch_vccz {Lb('back'+tag)}")
        tail(f"s_sub_u32 {sspin}, {sspin}, 1"); tail(f"s_cbranch_scc0 {Lb('spl'+tag)}"); tail(f"s_branch {Lb('back'+tag)}")
        return [f"WAITVM {tag}", f"v_cmp_gt_u32 vcc, {n}, {vpoll}", "s_nop 0", f"s_cbranch_vccnz {Lb('spin'+tag)}", Lb("back" + tag) + ":"]
    def signal(sd, soff, vo=None): return f"buffer_atomic_add {vone}, {vo or vsig}, {sd}, {soff} offen"
    def emit_dma(L):
        for x in L:
            k(x)
            if "m0" in x.split(",")[0]: k("s_nop 0")

    sldsc = sdb; scr = S(4, 2); sst = S(4, 2); sxr = S(4, 1); srot = S(); spe3 = S()
    sC = S(4); sWk = S(4); sWv = S(4); sWq = S(4); sDB = S(4); sP = S(4); sPD = S(4)
    sprow = S(); spA = S(); spB = S(); spd = S(); spe1 = S(); spe2 = S(); spstr = S(); spcs = S(); spxs = S(); sxo = S()
    pD = S(2); pA = S(4); pB = S(4); pC = S(4); pE = S(2); pF = sDB[0:2]
    sX = sP
    k(f"s_cmp_ge_u32 s2, 256"); k(f"s_cbranch_scc1 {E}")
    k(f"s_load_dwordx4 {pA}, s[0:1], 0")
    k(f"s_load_dwordx4 {pB}, s[0:1], 16")
    k(f"s_load_dwordx4 {pC}, s[0:1], 32")
    k(f"s_load_dwordx2 {pD}, s[0:1], 56")
    k(f"s_load_dwordx2 {pE}, s[0:1], 72")
    k(f"s_load_dwordx2 {pF}, s[0:1], 96")
    k(f"s_load_dwordx2 {pWS}, s[0:1], 104")
    k(f"v_lshrrev_b32 {t0}, 6, v0"); k(f"v_and_b32 {vlane}, 63, v0"); k(f"v_readfirstlane_b32 {swave}, {t0}")
    k(f"v_lshlrev_b32 {vl16}, 4, {vlane}")
    k(f"s_and_b32 {st0}, s2, 7"); k(f"s_lshl_b32 {st0}, {st0}, 2"); k(f"s_lshr_b32 {sh}, s2, 6"); k(f"s_add_u32 {sh}, {sh}, {st0}")
    k(f"s_bfe_u32 {si}, s2, 0x30003")
    TV = [t0, t1, vpoll, vpoll, t0, t1, vpoll, vpoll, vpoll]; touches = []
    def tc():
        return [[f"s_lshr_b32 {sspin}, s2, 3", f"s_lshl_b32 {sspin}, {sspin}, 2", f"s_add_u32 {sspin}, {sspin}, {swave}", f"s_lshl_b32 {sspin}, {sspin}, 14",
                 f"v_lshrrev_b32 {TV[0]}, 2, {vlane}", f"v_and_b32 {TV[1]}, 3, {vlane}", f"v_lshlrev_b32 {TV[1]}, 7, {TV[1]}", f"v_lshl_add_u32 {TV[0]}, {TV[0]}, 10, {TV[1]}",
                 f"buffer_load_dword {TV[2]}, {TV[0]}, {sC}, {sspin} offen offset:256"],
                [f"v_and_b32 {TV[1]}, 2, {vlane}", f"v_lshl_or_b32 {TV[0]}, {TV[1]}, 30, {TV[0]}",
                 f"buffer_load_dword {TV[3]}, {TV[0]}, {sC}, {sspin} offen offset:768"]]
    def tw(sd, row0, nrow, n):
        return [f"v_lshrrev_b32 {TV[4]}, 1, {vlane}", f"v_and_b32 {TV[5]}, 1, {vlane}", f"v_lshlrev_b32 {TV[5]}, 7, {TV[5]}", f"v_lshl_add_u32 {TV[5]}, {TV[4]}, 13, {TV[5]}",
                f"v_and_b32 {TV[4]}, {(~(nrow-1)) & 31}, {TV[4]}", f"v_lshl_or_b32 {TV[5]}, {TV[4]}, 26, {TV[5]}",
                f"s_mul_i32 {sspin}, {srg[0]}, {nrow*8192}", f"s_add_u32 {sspin}, {sspin}, {row0*8192}",
                f"buffer_load_dword {TV[6+n]}, {TV[5]}, {sd}, {sspin} offen"]
    tt = opt.get("touch", {"q": 28.1})
    if "c" in tt: touches += [(tt["c"], x) for x in tc()]
    if "k" in tt: touches.append((tt["k"], tw(sWk, 256, 8, 0)))
    if "v" in tt: touches.append((tt["v"], tw(sWv, 0, 16, 1)))
    if "q" in tt: touches.append((tt["q"], tw(sWq, 0, 16, 2)))
    if "p" in tt:
        touches.append((tt["p"], [f"v_bfe_u32 {t0}, {vlane}, 1, 2", f"v_and_b32 {t1}, 1, {vlane}", f"v_lshlrev_b32 {t1}, 7, {t1}", f"v_mad_u32_u24 {t1}, {t0}, {spstr}, {t1}",
                 f"v_bfe_u32 {t0}, {vlane}, 3, 1", f"v_mad_u32_u24 {t1}, {t0}, {spA}, {t1}", f"v_lshrrev_b32 {t0}, 4, {vlane}", f"v_mad_u32_u24 {t1}, {t0}, {spB}, {t1}",
                 f"buffer_load_dword {vpoll}, {t1}, {sP}, {sprow} offen"]))
        assert tt["p"] >= 0
    def code_touch():
        pc = PB.sub(28, 2)
        k(f"s_getpc_b64 {sPD[0:2]}"); k.label(Lb("pc"))
        k(f"s_lshr_b32 {sspin}, s2, 3"); k(f"s_lshl_b32 {sspin}, {sspin}, 2"); k(f"s_add_u32 {sspin}, {sspin}, {swave}")
        k(f"v_lshl_add_u32 {t0}, {vlane}, 7, {sspin}"); k(f"v_lshlrev_b32 {t0}, 7, {t0}")
        k(f"v_min_u32 {t0}, {Lb('codeend')}-{Lb('pc')}-4, {t0}")
        k(f"v_mov_b32 {pc[1]}, {sPD[1]}"); k(f"v_add_co_u32 {pc[0]}, vcc, {sPD[0]}, {t0}"); k("s_nop 1"); k(f"v_addc_co_u32 {pc[1]}, vcc, 0, {pc[1]}, vcc")
        k("s_mov_b64 exec, 31"); k(f"global_load_dword {vpoll}, {pc}, off"); k("s_mov_b64 exec, -1")
    if opt.get("code", 1) == 1: code_touch()
    setup_wstream(k, vW, vtrb, vlane, swave, t0, t1, t2, st0)
    k(f"v_and_b32 {t0}, 15, {vlane}"); k(f"v_lshrrev_b32 {t1}, 4, {vlane}")
    k(f"s_lshl_b32 {sldsc}, {swave}, 14"); k(f"s_add_u32 {sldsc}, {sldsc}, {96*1024}")
    k(f"v_xor_b32 {t2}, {t0}, {t1}"); k(f"v_lshlrev_b32 {t2}, 4, {t2}")
    k(f"v_lshl_add_u32 {vco[0]}, {t1}, 10, {t2}")
    k(f"v_lshl_add_u32 {vcr[0]}, {t0}, 8, {t2}"); k(f"v_add_u32 {vcr[0]}, {sldsc}, {vcr[0]}")
    for q in range(1, 4):
        k(f"v_xor_b32 {vco[q]}, {q*64}, {vco[0]}"); k(f"v_add_u32 {vco[q]}, {q*4096 - q*1024}, {vco[q]}")
        k(f"v_xor_b32 {vcr[q]}, {q*64}, {vcr[0]}")
    k(f"s_lshl_b32 {st0}, {si}, 2"); k(f"s_add_u32 {srg[0]}, {st0}, {swave}")
    k(f"s_sub_u32 {srg[1]}, 60, {st0}"); k(f"s_add_u32 {srg[1]}, {srg[1]}, {swave}")
    ROT = opt.get("rot", 1)
    k(f"s_add_u32 {srot}, {sh if ROT == 2 else 's2'}, {si}"); k(f"s_and_b32 {srot}, {srot}, {3 if ROT else 0}")
    k(f"s_lshl_b32 {st1}, {srot}, 8"); k(f"s_lshl_b32 {srot}, {srot}, 20")
    k(f"s_lshl_b32 {scr[0]}, {srg[0]}, 16"); k(f"s_add_u32 {scr[0]}, {scr[0]}, {st1}")
    for rb in range(1, 4): k(f"s_add_u32 {scr[rb]}, {scr[0]}, {rb*16384}")
    k(f"s_lshl_b32 {sldsw}, {swave}, 13")
    k(f"s_lshl_b32 {ssc}, s2, 2"); k(f"s_add_u32 {ssc}, {ssc}, {swave}"); k(f"s_lshl_b32 {ssc}, {ssc}, 11")
    k(f"s_lshl_b32 {st0}, {sh}, 8"); k(f"s_sub_u32 {st1}, {4*MB}, {st0}")
    k(f"s_waitcnt lgkmcnt(0)")
    k.ext(stamp("start"))
    srd(k, sX, pA[0:2], 2 * MB); srd(k, sC, pA[2:4], 2 * MB)
    srd(k, sWk, pB[2:4], st1, st0)
    XR = [PB.sub(0, 4), PB.sub(4, 4)]; XF = [PB.sub(8, 8), PB.sub(16, 8)]; vs = PB.sub(24, 2); vt_ = PB.sub(26, 2)
    k(f"buffer_load_dwordx4 {XR[0]}, {vl16}, {sX}, {ssc} offen ; tag=x")
    k(f"buffer_load_dwordx4 {XR[1]}, {vl16}, {sX}, {ssc} offen offset:1024 ; tag=x")
    def cdma(ch):
        L = []
        for rb in range(4):
            L += [f"s_xor_b32 {ssc}, {scr[rb]}, {ch*256}", f"s_add_u32 m0, {sldsc}, {rb*4096}"]
            L += [f"buffer_load_dwordx4 {vco[q]}, {sC}, {ssc} offen offset:{q*1024} lds ; tag=c{ch}q{rb}" for q in range(4)]
        return L
    def creads(ch):
        return [f"ds_read_b128 {R.sub(((4*ch+ks)*4+rb)*4,4)}, {vcr[ks]} offset:{rb*4096}" for rb in range(4) for ks in range(4)]
    def wd(st):
        L = wdma(st, vW, (sWk, sWv, sWq)[st // 4], ssoff, sldsw, f"w{st}", 3)
        if st < 8: L[0] = f"s_xor_b32 {ssoff}, {srot}, {(st % 4) << 20}"
        return L
    fine = opt.get("fine")
    NC0 = opt.get("nc0", 1)
    emit_dma(wd(0)); emit_dma(cdma(0)[:6 * NC0])
    if fine: k.ext(stamp("iw0"))
    srd(k, sWv, pC[0:2], st1, st0); srd(k, sWq, pB[0:2], st1, st0)
    k(f"s_lshl_b32 {st1}, {sh}, 20")
    srd(k, sKV, pWS, MB, st1)
    srd(k, sXN, pWS, 2 * MB, WS_XN)
    srd(k, sFL, pWS, 256 * 128, WS_FLG)
    k(f"s_mov_b32 {sDB[2]}, 256"); k(f"s_mov_b32 {sDB[3]}, 0x20000")
    k(f"v_add_u32 {vl16b}, 4096, {vl16}")
    k(f"v_mov_b32 {vone}, 1")
    k(f"v_cmp_eq_u32 vcc, 0, {vlane}"); k(f"v_mov_b32 {t0}, 0x80000000"); k(f"v_mov_b32 {t1}, 0")
    k(f"v_cndmask_b32 {vsig}, {t0}, {t1}, vcc")
    k(f"s_lshl_b32 {sst[0]}, {srg[0]}, 14")
    for rb in range(1, 4): k(f"s_add_u32 {sst[rb]}, {sst[0]}, {rb*4096}")
    for g in range(2):
        k(f"s_lshl_b32 {sxr[2*g]}, {srg[g]}, 15"); k(f"s_add_u32 {sxr[2*g+1]}, {sxr[2*g]}, 16384")
    k(f"s_mul_i32 {st2}, {sh}, 7"); k(f"s_add_u32 {st2}, {st2}, {si}"); k(f"s_lshl_b32 {st2}, {st2}, 2"); k(f"s_add_u32 {st2}, {st2}, {swave}")
    k(f"s_sub_u32 {st2}, {st2}, 4"); k(f"s_cmp_eq_u32 {si}, 0"); k(f"s_cselect_b32 {st2}, 1000, {st2}")
    k(f"s_cmp_ge_u32 {st2}, 684"); k(f"s_cbranch_scc1 {Lb('pw1')}")
    k(f"s_mov_b32 {sP[2]}, {4*MB}"); k(f"s_mov_b32 {spe2}, {128*2048}"); k(f"s_mov_b32 {spe3}, {128*4096}")
    k(f"s_cmp_ge_u32 {st2}, 512")
    k(f"s_cselect_b32 {sP[0]}, {pE[0]}, {pC[2]}"); k(f"s_cselect_b32 {sP[1]}, {pE[1]}, {pC[3]}")
    k(f"s_cselect_b32 {sP[2]}, {1376*1024}, {sP[2]}"); k(f"s_cselect_b32 {spe2}, 2048, {spe2}"); k(f"s_cselect_b32 {spe3}, {43*4096}, {spe3}")
    k(f"s_cselect_b32 {spd}, {WS_W2P - WS_WOP}, 0"); k(f"s_cselect_b32 {spA}, 12, 11")
    k(f"s_and_b32 {st0}, {st2}, 511"); k(f"s_lshr_b32 {sprow}, {st0}, 2"); k(f"s_and_b32 {st0}, {st0}, 3")
    k(f"s_lshl_b32 {st1}, {sprow}, {spA}"); k(f"s_add_u32 {spd}, {spd}, {st1}")
    k(f"s_mul_i32 {st1}, {st0}, {spe3}"); k(f"s_lshl_b32 {st1}, {st1}, 1"); k(f"s_add_u32 {spd}, {spd}, {st1}")
    k(f"s_lshl_b32 {sprow}, {sprow}, 15"); k(f"s_lshl_b32 {st0}, {st0}, 8"); k(f"s_add_u32 {sprow}, {sprow}, {st0}")
    k(f"s_mov_b32 {spA}, {16*1024}"); k(f"s_mov_b32 {spB}, {4*1024}"); k(f"s_mov_b32 {spe1}, 1024")
    k(f"s_mov_b32 {spstr}, 1024"); k(f"s_mov_b32 {spcs}, 16"); k(f"s_mov_b32 {spxs}, 8")
    k(f"s_mov_b32 {sPD[2]}, {8*MB}")
    k(f"s_branch {Lb('pdone')}")
    k.label(Lb("pw1"))
    k(f"s_mov_b32 {sP[0]}, {pD[0]}"); k(f"s_mov_b32 {sP[1]}, {pD[1]}")
    k(f"s_cmp_ge_u32 {st2}, 860")
    k(f"s_cselect_b32 {sP[2]}, 0, {512*2752}"); k(f"s_cselect_b32 {sPD[2]}, 0, {8*MB}")
    k(f"s_sub_u32 {st0}, {st2}, 684"); k(f"s_and_b32 {sprow}, {st0}, 15"); k(f"s_lshr_b32 {st0}, {st0}, 4")
    k(f"s_lshl_b32 {spd}, {st0}, 17"); k(f"s_lshl_b32 {st1}, {sprow}, 10"); k(f"s_add_u32 {spd}, {spd}, {st1}")
    k(f"s_add_u32 {spd}, {spd}, {WS_W1P - WS_WOP}")
    k(f"s_mul_i32 {sprow}, {sprow}, {32*2752}")
    k(f"s_lshl_b32 {st0}, {st0}, 8"); k(f"s_add_u32 {sprow}, {sprow}, {st0}")
    k(f"s_mov_b32 {spA}, {4*2752}"); k(f"s_mov_b32 {spB}, {8*2752}"); k(f"s_mov_b32 {spe1}, 16384"); k(f"s_mov_b32 {spe2}, 32768"); k(f"s_mov_b32 {spe3}, 65536")
    k(f"s_mov_b32 {spstr}, 2752"); k(f"s_mov_b32 {spcs}, 8"); k(f"s_mov_b32 {spxs}, 32")
    k.label(Lb("pdone"))
    k(f"s_mov_b32 {sP[3]}, 0x20000")
    k(f"s_add_u32 {sPD[0]}, {pWS[0]}, {WS_WOP}"); k(f"s_addc_u32 {sPD[1]}, {pWS[1]}, 0"); k(f"s_mov_b32 {sPD[3]}, 0x20000")
    k(f"v_lshrrev_b32 {t0}, 4, {vlane}"); k(f"v_and_b32 {t1}, 15, {vlane}"); k(f"v_lshlrev_b32 {t1}, 7, {t1}")
    k(f"v_lshl_add_u32 {vm0}, {t0}, 13, {t1}"); k(f"s_lshl_b32 {st0}, {swave}, 5"); k(f"s_add_u32 {st0}, {st0}, 65536")
    k(f"v_add_u32 {vm0}, {st0}, {vm0}")
    k(f"s_add_u32 {st0}, {sldsw}, 65536"); k(f"v_add_u32 {vm1}, {st0}, {vl16}")
    k(f"v_lshrrev_b32 {t0}, 3, {vlane}"); k(f"v_and_b32 {t1}, 7, {vlane}"); k(f"v_lshlrev_b32 {t1}, 4, {t1}")
    k(f"v_lshl_add_u32 {vm2}, {t0}, 8, {t1}")
    k(f"s_lshr_b32 {sxo}, s2, 1"); k(f"s_lshl_b32 {sxo}, {sxo}, 14"); k(f"s_and_b32 {st0}, s2, 1"); k(f"s_lshl_b32 {st0}, {st0}, 7")
    k(f"s_add_u32 {sxo}, {sxo}, {st0}"); k(f"s_lshl_b32 {st0}, {swave}, 12"); k(f"s_add_u32 {sxo}, {sxo}, {st0}")
    if fine: k.ext(stamp("setup"))
    emit_dma(cdma(0)[6 * NC0:])
    if fine: k.ext(stamp("ic0"))
    k(f"v_lshlrev_b32 {t0}, 2, {vlane}"); k(f"v_lshlrev_b32 {t2}, 25, {vlane}"); k(f"v_and_b32 {t2}, 0x70000000, {t2}"); k(f"v_or_b32 {t0}, {t0}, {t2}")
    k(f"s_lshl_b32 {st0}, s2, 2"); k(f"s_add_u32 {st0}, {st0}, {swave}"); k(f"s_lshl_b32 {st0}, {st0}, 5"); k(f"v_mov_b32 {t1}, 0")
    k(f"buffer_store_dword {t1}, {t0}, {sFL}, {st0} offen {SC} ; tag=z")
    for tm, L in touches:
        if tm < 0: k.ext(L)
    mark_ln = len(k.L)
    k("WAITVM x")
    if fine: k.ext(stamp("gotx"))
    for i in range(2):
        for j in range(4):
            k(f"v_lshlrev_b32 {XF[i][2*j]}, 16, {XR[i][j]}"); k(f"v_and_b32 {XF[i][2*j+1]}, 0xffff0000, {XR[i][j]}")
        k(f"v_add_f32 {vs[i]}, {XF[i][0]}, {XF[i][1]}")
        for j in range(2, 8): k(f"v_add_f32 {vs[i]}, {vs[i]}, {XF[i][j]}")
    allreduce(k, [vs[0], vs[1]], [vt_[0], vt_[1]])
    for i in range(2):
        k(f"v_mul_f32 {vs[i]}, {f2h(1/512)}, {vs[i]}")
        for j in range(8): k(f"v_sub_f32 {XF[i][j]}, {XF[i][j]}, {vs[i]}")
        k(f"v_mul_f32 {vs[i]}, {XF[i][0]}, {XF[i][0]}")
        for j in range(1, 8): k(f"v_fmac_f32 {vs[i]}, {XF[i][j]}, {XF[i][j]}")
    allreduce(k, [vs[0], vs[1]], [vt_[0], vt_[1]])
    for i in range(2):
        k(f"v_mov_b32 {vt_[i]}, {f2h(1e-5)}"); k(f"v_fmac_f32 {vt_[i]}, {f2h(1/512)}, {vs[i]}"); k(f"v_rsq_f32 {vs[i]}, {vt_[i]}")
    k("s_nop 0")
    for i in range(2):
        k(f"v_mul_f32 {vs[i]}, {f2h(QSCALE)}, {vs[i]}")
        for j in range(8): k(f"v_mul_f32 {XF[i][j]}, {XF[i][j]}, {vs[i]}")
        for j in range(4): k(f"v_cvt_pk_bf16_f32 {XR[i][j]}, {XF[i][2*j]}, {XF[i][2*j+1]}")
        k(f"ds_write_b128 {vm0}, {XR[i]} offset:{16*i}")
    body = k.L[mark_ln:]; del k.L[mark_ln:]
    w1_ = wd(1); step = len(body) // 9
    for n, x in enumerate(body):
        k(x)
        if n % step == step - 3:
            while w1_ and not ismem(w1_[0]): k(w1_.pop(0))
        if n % step == step - 1 and w1_: k(w1_.pop(0))
    assert not w1_
    k.ext(stamp("ln"))
    k("WAITVM c0q3 lgkm=0")
    if fine: k.ext(stamp("gotc"))
    cr = creads(0)
    k.ext(cr[:8]); k("s_barrier"); k("s_waitcnt lgkmcnt(4)"); k.ext(cr[8:]); k("s_waitcnt lgkmcnt(4)")
    k.ext(trreads(0, 0, WF, vtr, vtrb, 3))
    for j in range(2): k(f"ds_read_b128 {XF[0].sub(4*j,4)}, {vm1} offset:{1024*j}")
    xnst = [f"buffer_store_dwordx4 {XF[0].sub(4*j,4)}, {vm2}, {sXN}, {sxo} offen offset:{2048*j} {SC} ; tag=z" for j in range(2)]
    k(f"s_cmp_eq_u32 {swave}, 0"); k(f"s_cselect_b32 {st0}, 0, 0x80000000"); k(f"v_or_b32 {vm0}, {st0}, {vsig}")
    k(f"s_and_b32 {st2}, s2, 1"); k(f"s_lshl_b32 {st2}, {st2}, 7")
    k(f"v_and_b32 {t0}, 1, {vlane}")
    k("s_waitcnt lgkmcnt(0)")
    k(f"v_lshlrev_b32 {vm1}, 7, {t0}")
    k.ext(stamp("go"))

    S2 = Alloc('s', sC.base, sWq.base)
    pool = [r.sub(2 * i, 2) for r in (sDB, scr, sst, pA, pB, pC, pD, pE) for i in range(r.n // 2)]
    assert all(p.base % 2 == 0 for p in pool)
    S3 = lambda n: pool.pop(0)
    skv = S2(); scnt = S2(); snS = S2(); sflag = S2(); sctx = S2(2, 1); mC = S2(2); sCT = S2(4)
    mA = [S3(2) for _ in range(4)]; mB = [S3(2) for _ in range(4)]; mT = [S3(2) for _ in range(4)]; mU = S3(2); mX = S3(2)
    SB = [WFr, PB.sub(0, 32)]; NM = PB.sub(32, 16); MK = PB.sub(48, 16); TMP = X16
    vra, vrc = vtr, vm2
    Q = a(0, 64); F = a(64, 32); LA = a(96, 16); ONES = a(112, 4)
    O = lambda grp, db, qb: ACC.sub(grp * 64 + (db * 2 + qb) * 4, 4)
    Sq = lambda par, grp, qb: SB[par].sub((grp * 2 + qb) * 8, 8)
    Qf = lambda grp, qb, ks: Q.sub(((grp * 2 + qb) * 4 + ks) * 4, 4)
    T = lambda cb, rb: ACC.sub((cb * 4 + rb) * 4, 4)
    def xloads(ch):
        L = []
        for rb in range(4):
            L.append(f"s_add_u32 {ssc}, {sxr[rb]}, {ch*4096}")
            L += [f"buffer_load_dwordx4 {R.sub(((4*ch+ks)*4+rb)*4,4)}, {vl16}, {sXN}, {ssc} offen offset:{ks*1024} {SC} ; tag=x{ch}" for ks in range(4)]
        return L
    def kvdma(j, tag):
        L = []
        for p in range(8):
            if p % 4 == 0: L.append(f"s_add_u32 m0, {sldsw}, {(j%4)*32768 + (p//4)*4096}")
            L.append(f"buffer_load_dwordx4 {vl16 if p < 4 else vl16b}, {sKV}, {skv} offen offset:{(p%4)*1024} {SC} lds ; tag={tag}")
        L.append(f"s_add_u32 {skv}, {skv}, 16384")
        return L
    presetup = []
    def prep_dma():
        L = [f"v_lshrrev_b32 {t0}, 4, {vlane}", f"v_and_b32 {t1}, 15, {vlane}", f"v_lshlrev_b32 {t1}, 4, {t1}",
             f"v_mad_u32_u24 {vco[0]}, {t0}, {spstr}, {t1}"]
        L += [f"v_bfe_u32 {t1}, {vlane}, 2, 2", f"v_lshlrev_b32 {t1}, 8, {t1}", f"v_lshl_add_u32 {t1}, {t0}, 11, {t1}",
              f"v_and_b32 {t2}, 3, {vlane}", f"v_mad_u32_u24 {t1}, {t2}, {spcs}, {t1}", f"v_add_u32 {t1}, {sldsw}, {t1}", f"v_add_u32 {vcr[0]}, 131072, {t1}"]
        L.append(f"v_add_u32 {vcr[1]}, {spxs}, {vcr[0]}")
        presetup.extend(L); L = []
        for p in range(8):
            L.append(f"s_add_u32 m0, {sldsw}, {131072 + p*1024}")
            if p % 2: L.append(f"s_add_u32 {ssoff}, {sprow}, {spA}")
            L.append(f"buffer_load_dwordx4 {vco[0]}, {sP}, {ssoff if p % 2 else sprow} offen lds ; tag=pp")
            if p % 2: L.append(f"s_add_u32 {sprow}, {sprow}, {spB}")
        return L
    def att_setup():
        L = Kern("x")
        srd(L, sCT, pWS, 16 * MB, WS_CTX)
        L(f"v_mov_b32 {vinf}, {NEGINF}")
        L(f"s_or_b32 {st0}, {sldsw}, 0x10000"); L(f"v_or_b32 {vrc}, {st0}, {vl16}")
        L(f"s_and_b32 {st0}, {swave}, 1"); L(f"s_lshl_b32 {skv}, {st0}, 13")
        L(f"s_cmp_ge_u32 {swave}, 2"); L(f"s_cselect_b32 {st1}, {512*1024-8192}, 0"); L(f"s_add_u32 {skv}, {skv}, {st1}")
        for g in range(2):
            L(f"s_lshr_b32 {st1}, {srg[g]}, 2"); L(f"s_lshl_b32 {sctx[g]}, {st1}, 20")
            L(f"s_lshl_b32 {st1}, {sh}, 15"); L(f"s_add_u32 {sctx[g]}, {sctx[g]}, {st1}")
            L(f"s_lshl_b32 {st1}, {swave}, 11"); L(f"s_add_u32 {sctx[g]}, {sctx[g]}, {st1}")
        L(f"s_lshr_b32 {snS}, {srg[0]}, 1"); L(f"s_add_u32 {snS}, {snS}, 1")
        L(f"s_mov_b32 {sflag}, 0")
        L(f"v_and_b32 {t0}, 15, {vlane}"); L(f"v_lshrrev_b32 {t1}, 4, {vlane}"); L(f"v_lshlrev_b32 {t1}, 2, {t1}"); L(f"v_sub_u32 {t0}, {t0}, {t1}")
        for r in range(4): L(f"v_cmp_le_i32 {mT[r]}, {r}, {t0}")
        L(f"s_cmp_eq_u32 {st0}, 0"); L(f"s_cselect_b64 {mC}, 0, -1")
        for r in range(4):
            L(f"s_or_b64 {mA[r]}, {mT[r]}, {mC}"); L(f"s_and_b64 {mB[r]}, {mT[r]}, {mC}")
        L(f"s_cmp_eq_u32 {snS}, 1"); L(f"s_cselect_b64 {mX}, 0, -1")
        for r in range(4): L(f"s_or_b64 {mT[r]}, {mA[r]}, {mX}")
        L(f"s_or_b64 {mU}, {mC}, {mX}")
        L(f"v_mov_b32 {t0}, 0x3f803f80")
        for j in range(4): L(f"v_accvgpr_write_b32 {ONES[j]}, {t0}")
        for j in range(16): L(f"v_accvgpr_write_b32 {LA[j]}, 0")
        return L.L
    ops = []
    def add_ops(L, times):
        pre = []; n = 0
        for x in L:
            if x.startswith("buffer_"):
                ops.append([times[n], len(ops), pre, x, []]); pre = []; n += 1
            else: pre.append(x)
        assert n == len(times), (n, len(times))
        ops[-1][4] += pre
    lin = lambda t0_, t1_, n: [t0_ + (t1_ - t0_) * i / n for i in range(n)]
    PBf = lambda n: PB.sub(4 * n, 4)
    PA = a(128, 32)
    kst = [f"buffer_store_dwordx4 {PBf(s*4+rb)}, {vl16}, {sKV}, {sst[rb]} offen offset:{s*1024} {STF} ; tag=kst" for s in range(4) for rb in range(4)]
    vst = [f"buffer_store_dwordx4 {PBf(cb*2+t)}, {vl16}, {sKV}, {sst[2*t+cb//4]} offen offset:{(cb%4)*1024} {STF} ; tag=vst" for cb in range(8) for t in range(2)]
    pst = [f"s_add_u32 {sprow}, {spd}, {spe3}"]
    for x in range(8):
        pst.append(f"buffer_store_dwordx4 {PA.sub(4*x,4)}, {vl16}, {sPD}, {spA if x % 2 else spd} offen {STF} ; tag=pst")
        if x % 2 == 0: pst.append(f"s_add_u32 {spA}, {spd}, {spe1}")
        elif x % 4 == 1: pst.append(f"s_add_u32 {spd}, {spd}, {spe2}")
        elif x == 3: pst.append(f"s_mov_b32 {spd}, {sprow}")
    sfl1 = st2
    add_ops(cdma(1), lin(0, 4, 16))
    add_ops(wd(2), lin(4, 6.4, 8)); add_ops(cdma(2), lin(6.4, 11.2, 16)); add_ops(xnst, [4.1, 5.3])
    add_ops(wd(3), lin(11.4, 14, 8)); add_ops(cdma(3), lin(14, 18.8, 16)); add_ops(wd(4), lin(19, 23.5, 8))
    add_ops([signal(sDB, st2, vm0)], [16.1])
    for st in range(3, 10): add_ops(wd(st + 2), lin(8 * st, 8 * st + opt.get("wspan", 4), 8))
    ppd = prep_dma()
    add_ops(kst, lin(opt.get("k0", 36), opt.get("k1", 56), 16))
    for tm, L in touches:
        if tm >= 0: add_ops(L, [tm])
    add_ops([poll_issue("p0", vm1, sDB, 0)], [33.3])
    xl = sum((xloads(c) for c in range(4)), [])
    xt = lin(40.3, 48, 12) + lin(48.3, 56, 10) + lin(56.3, 64, 12) + lin(64.3, 72, 9) + lin(72.3, 75.5, 5) + lin(75.6, 80, 8) + lin(80, 83.5, 8)
    add_ops(xl, xt)
    add_ops([f"s_add_u32 {sst[i]}, {sst[i]}, {512*1024}" for i in range(4)] + vst, lin(59.6, 76, 16))
    add_ops([f"s_lshl_b32 {sfl1}, {sh}, 10", f"s_add_u32 {sfl1}, {sfl1}, 12", signal(sFL, sfl1)], [79.1])
    tp1 = opt.get("tp1", 86.0)
    add_ops([f"v_mov_b32 {vm1}, 0", poll_issue("p1", vm1, sFL, sfl1)], [tp1])
    add_ops(poll_check("p1", vm1, sFL, sfl1, 32) + kvdma(0, "kv0") + kvdma(1, "kv1"), lin(tp1 + 3, 95.0, 16))
    ops.sort(key=lambda o: (o[0], o[1]))
    slots = {}; nxt = 0
    for o in ops:
        sl = max(nxt, int(o[0] * 4)); slots[sl] = o; nxt = sl + 1
    assert nxt <= 384
    drainq = []; auxq = []; carry = []; npk = [0]
    def drain_q(ta, tb, dst):
        p = PB.sub(4 * (npk[0] % 4), 4); npk[0] += 1
        return pack(p, ta, tb) + [f"v_accvgpr_write_b32 {dst[j]}, {p[j]}" for j in range(4)]
    RG = [0, 1, 2, 4, 5, 6, 8, 9]
    k(trreads(0, 1, WF, vtr, vtrb, 3)[0])
    k.ext(slots[0][2]); slots[0][2] = []
    allG = []
    for st in range(12):
        for cb in range(8):
            t = st * 8 + cb
            G = Gaps(cb_mfmas(st, cb, ACC, WF, R, swap=4 <= st < 8))
            if t < 95:
                for g, x in zip(RG, trreads((t + 1) // 8, (t + 1) % 8, WF, vtr, vtrb, 3)[1:]): G.put(g, x)
            if st < 3 and cb >= 4:
                q_ = cb - 4
                G.put(9, f"WAITVM c{st+1}q{q_}")
                for g, x in zip((10, 12, 13, 14), creads(st + 1)[4 * q_:4 * q_ + 4]): G.put(g, x)
            for i in range(4):
                if 4 * t + i in slots: G.put(4 * i + 3, slots[4 * t + i][3])
            if t < 94: G.put(10, trreads((t + 2) // 8, (t + 2) % 8, WF, vtr, vtrb, 3)[0])
            if t < 95:
                if cb == 7 and 7 <= st <= 10: G.put(15, f"WAITVM x{st-7} lgkm=0")
                else: G.put(15, "s_waitcnt lgkmcnt(0)")
            allG.append(G)
    prev = -1
    order = sorted(slots)
    def place(L, lo, hi):
        g = lo
        for x in L:
            while g < hi and allG[g // 16].cost(g % 16) + icost(x) > 8: g += 1
            allG[g // 16].put(g % 16, x)
    for n, sl in enumerate(order):
        gpos = (sl // 4) * 16 + (sl % 4) * 4 + 3
        L = (slots[order[n - 1]][4] if n else []) + slots[sl][2]
        lo = prev if n else 0
        if slots[sl][2] and slots[sl][2][0].startswith("WAITVM"): lo = max(lo, gpos - 8)
        place(L, lo, gpos - 1)
        prev = gpos
    place(slots[order[-1]][4], prev, 96 * 16 - 1)
    for st in range(12):
        if st == 10: auxq += att_setup()
        if st == 5: auxq += presetup
        for cb in range(8):
            G = allG[st * 8 + cb]
            if cb == 7 and st < 11:
                tags = f"w{st+1}" + (",z" if st == 1 else "") + (",vst" if st == 9 else "")
                k(f"WAITVM {tags}"); k("s_barrier")
            if st == 4 and cb == 6: auxq += poll_check("p0", vm1, sDB, 0, 128)
            if not (st == 10 and cb < 4): sched(G, auxq, 0, 14)
            sched(G, drainq, 1, 14)
            G.emit(k)
            if st == 3 and cb % 2 == 1:
                for rb in range(4): drainq += pack(PBf((cb // 2) * 4 + rb), T(cb - 1, rb), T(cb, rb))
            if st == 7:
                for t in range(2): drainq += pack(PBf(cb * 2 + t), T(cb, 2 * t), T(cb, 2 * t + 1))
            if st == 11 and cb % 2 == 1:
                for rb in range(4): drainq += drain_q(T(cb - 1, rb), T(cb, rb), Qf(rb // 2, rb % 2, cb // 2))
        assert not auxq, (st, auxq)
        k.ext(stamp(f"st{st}"))
    seen = {}
    for n, ln in enumerate(k.L):
        if ln.startswith("v_cvt_pk") or ln.startswith("ds_read_b64_tr"): seen[ln.split()[1].rstrip(",")] = n
        if "tag=kst" in ln or ("tag=vst" in ln and str(sKV) in ln):
            b = int(re.search(r"v\[(\d+):", ln).group(1))
            assert all(seen.pop(f"v{b+j}", None) is not None for j in range(4)), ln

    OFF = {"K0": 0, "K1": 8192, "V0": 16384, "V1": 24576}
    def rd(f, src): return f"ds_read_b128 {F.sub(4*f,4)}, {vra} offset:{OFF[src] + f*1024}"
    def ph_pv(groups, par):
        mf = []; fu = {}; lu = {}
        for db in range(8):
            for g in groups:
                for qb in range(2):
                    fu.setdefault(db, len(mf)); lu[db] = len(mf)
                    mf.append(f"{MF} {O(g,db,qb)}, {F.sub(4*db,4)}, {Sq(par,g,qb).sub(0,4)}, {O(g,db,qb)}")
        for g in groups:
            for qb in range(2):
                l = LA.sub((g * 2 + qb) * 4, 4)
                mf.append(f"{MF} {l}, {ONES}, {Sq(par,g,qb).sub(0,4)}, {l}")
        return mf, fu, lu
    def ph_qk(groups, par, cfun):
        mf = []; fu = {}; lu = {}
        for kb in range(2):
            for g in groups:
                for qb in range(2):
                    d = Sq(par, g, qb).sub(4 * kb, 4)
                    for ks in range(4):
                        f = 4 * kb + ks
                        fu.setdefault(f, len(mf)); lu[f] = len(mf)
                        mf.append(f"{MF} {d}, {F.sub(4*f,4)}, {Qf(g,qb,ks)}, {cfun(g,qb,kb) if ks == 0 else d}")
        return mf, fu, lu
    cplain = lambda g, qb, kb: NM.sub((g * 2 + qb) * 4, 4)
    def maskops(which, mtri, mc, base, mnone="none"):
        L = []; tiles = {}
        for qb in range(2):
            for kb in range(2):
                t = MK.sub((qb * 2 + kb) * 4, 4); tiles[(qb, kb)] = t
                for r in range(4):
                    if kb == qb: m = mtri[r]
                    elif kb > qb: m = mc if which == "a" else mnone
                    else: m = None if which == "a" else mc
                    if m is None: L.append(f"v_mov_b32 {t[r]}, {base(qb, r)}")
                    elif isinstance(m, str): L.append(f"v_mov_b32 {t[r]}, {vinf}")
                    else: L.append(f"v_cndmask_b32 {t[r]}, {vinf}, {base(qb, r)}, {m}")
        return L, tiles
    def build(phases, premask=None):
        mf = []; start = []
        for p in phases:
            start.append(len(mf)); mf += p[0]
        start.append(len(mf))
        G = Gaps(mf)
        for pi, (m, fu, lu, nxt) in enumerate(phases):
            if nxt:
                for f in range(8): G.put(start[pi] + lu[f], rd(f, nxt))
        for pi, (m, fu, lu, nxt) in enumerate(phases):
            G.put(start[pi] + fu[4] - 1, f"s_waitcnt lgkmcnt({4 if nxt else 0})")
            if pi > 0: G.put(start[pi] - 1, "s_waitcnt lgkmcnt(4)")
        if premask:
            for (pi, L) in premask: G.chain(L, start[pi], start[pi + 1] - 3)
        return G, start
    def softmax(G, lo, hi, par, groups):
        els = [(g, qb, kb, r) for kb in range(2) for g in groups for qb in range(2) for r in range(4)]
        free = [x for x in range(lo, hi + 1) if G.cost(x) == 0]
        n = len(els)
        if len(free) >= n:
            pos = free[:n] if len(free) <= n + 2 else [free[(i * (len(free) - 1)) // n] for i in range(n)]
        else:
            allg = list(range(lo, hi)); pos = [allg[(i * len(allg)) // n] for i in range(n)]
        gcv = lo
        for (g, qb, kb, r), p in zip(els, pos):
            s = Sq(par, g, qb)
            G.put(p, f"v_exp_f32 {s[4*kb+r]}, {s[4*kb+r]}")
        for (g, qb, kb, r), p in zip(els, pos):
            if r % 2 == 1:
                s = Sq(par, g, qb); c = 2 * kb + r // 2
                gcv = G.add(f"v_cvt_pk_bf16_f32 {s[c]}, {s[4*kb+r-1]}, {s[4*kb+r]}", max(gcv, p + 1), hi)
                gl = G.g[gcv]; w = [y for y in gl if y.startswith("s_waitcnt")]
                G.g[gcv] = [y for y in gl if not y.startswith("s_waitcnt")] + w
    def pair(pvA, qkA, smA, pvB, qkB, smB, dma=True, mask=None, loop=None, endwait=8, extra=(), prep=False, wpre=()):
        ph = []; pm = []
        def cf(which):
            if mask is None: return cplain
            L, tiles = maskops(which, mA if which == "a" else mB, mC, lambda qb, r: NM[(mask * 2 + qb) * 4 + r])
            pm.append((len(ph) - 1, L))
            return lambda g, qb, kb: tiles[(qb, kb)] if g == mask else cplain(g, qb, kb)
        ph.append(ph_pv(pvA, 0) + ("K0" if qkA else "V0",))
        if qkA: c = cf("a"); ph.append(ph_qk(qkA, 0, c) + ("V0",))
        nb = len(ph)
        ph.append(ph_pv(pvB, 1) + ("K1" if qkB else None,))
        if qkB: c = cf("b"); ph.append(ph_qk(qkB, 1, c) + ("V1",))
        G, start = build(ph, pm)
        n = G.n
        pre = ["s_barrier", f"v_xor_b32 {vra}, m0, {vrc}"] + list(extra)
        d0 = 0
        if prep:
            pre.append("s_waitcnt vmcnt(8)")
            g = 0
            for x_ in range(8):
                for hf in range(2):
                    G.g[g].insert(0, f"ds_read_b64_tr_b16 {PA.sub(4*x_+2*hf,2)}, {vcr[x_%2]} offset:{hf*1024 + 64*(x_//2)}"); g += 1
            g = start[1]
            for x in pst:
                if ismem(x):
                    g += 1
                    while G.cost(g): g += 1
                    G.put(g, x); g_ = g; g += 1
                elif g == start[1]: G.put(g, x)
                else: G.put(g_, x)
            d0 = start[nb]; assert g <= d0
        if wpre:
            g = 1; g_ = 0
            for x in wpre:
                if ismem(x):
                    g_ = min(g, n - 1); G.g[g_].insert(sum(y.startswith("ds_") for y in G.g[g_]), x); g += 4
                else: G.put(g_, x)
        if dma:
            D = [f"buffer_load_dwordx4 {vl16 if p < 4 else vl16b}, {sKV}, {skv} offen offset:{(p%4)*1024} {SC} lds" for p in range(8)]
            pos = []; lo = 0
            for p in range(8):
                g = max(lo, d0 + 1 + (p * (n - d0 - 6)) // 8)
                while g < n - 2 and not (G.cost(g) == 4 and G.g[g][0].startswith("ds_read")): g += 1
                G.put(g, D[p]); pos.append(g); lo = g + 1
                if p == 3: lo = g + 2
            later = [(f"s_add_u32 m0, m0, 4096", pos[3], pos[4] - 1),
                     (f"s_add_u32 {skv}, {skv}, 16384", pos[7], n - 1), (f"s_add_u32 m0, m0, {32768-4096}", pos[7], n - 1)]
        else:
            later = [(f"s_add_u32 m0, m0, 32768", 0, n - 1)]
        if smA: softmax(G, 0, start[nb] - 2, 1, smA)
        if smB: softmax(G, start[nb], n - 2, 0, smB)
        gl = 0
        for x, lo, hi in later: gl = G.add(x, lo, hi)
        gl = G.add("s_and_b32 m0, m0, 0x1ffff", gl, n - 1)
        if loop: G.put(n - 1, f"s_sub_u32 {scnt}, {scnt}, 1")
        k.ext(pre); G.emit(k)
        if endwait is not None: k(f"s_waitcnt vmcnt({endwait}) lgkmcnt(4)")
        if loop: k(f"s_cbranch_scc0 {loop}")
    def epilogue(kk, g, lsrc=None):
        rl = TMP.sub(0, 2)
        for qb in range(2):
            if lsrc is None: kk(f"v_accvgpr_read_b32 {rl[qb]}, {LA[(g*2+qb)*4]}")
            else: kk(f"v_mov_b32 {rl[qb]}, {lsrc[qb]}")
        if lsrc is None:
            kk(f"v_add_f32 {t1}, {rl[0]}, {rl[1]}"); kk(f"v_cmp_nlt_f32 vcc, {t1}, {TMP[2]}")
        for qb in range(2): kk(f"v_rcp_f32 {rl[qb]}, {rl[qb]}")
        if lsrc is None:
            kk(f"s_cmp_lg_u64 vcc, 0"); kk(f"s_cselect_b32 {st0}, {1 << g}, 0"); kk(f"s_or_b32 {sflag}, {sflag}, {st0}")
        else: kk("s_nop 0")
        n = 0
        for s in range(4):
            kk(f"s_add_u32 {st1}, {sctx[g]}, {s*8192}")
            for qb in range(2):
                p = TMP.sub(4 + 4 * (n % 3), 4); n += 1
                for db in (2 * s, 2 * s + 1):
                    for r in range(4): kk(f"v_mul_f32 {O(g,db,qb)[r]}, {O(g,db,qb)[r]}, {rl[qb]}")
                kk.ext(pack(p, O(g, 2 * s, qb), O(g, 2 * s + 1, qb)))
                kk(f"buffer_store_dwordx4 {p}, {vl16}, {sCT}, {st1} offen offset:{qb*1024} {SC} ; tag=cst")
    k("WAITVM kv0 lgkm=0"); k("s_barrier")
    k(f"v_mov_b32 {vra}, {vl16}")
    for f in range(8): k(rd(f, "K0"))
    k.ext(drainq); drainq = []
    k(f"v_mov_b32 {t2}, 0")
    L, tiles = maskops("a", mT, mU, lambda qb, r: t2)
    k.ext(L)
    k("s_waitcnt lgkmcnt(4)")
    G, start = build([ph_qk([0, 1], 0, lambda g, qb, kb: tiles[(qb, kb)] if g == 0 else "0") + ("K1",)])
    zq = [f"v_mov_b32 {ACC[j]}, 0" for j in range(128)]
    d2 = ppd + kvdma(2, "kv2")
    sched(G, d2, 0); assert not d2
    sched(G, zq, 0)
    G.emit(k)
    k.ext(zq)
    mx = [TMP[j] for j in range(4)]; mt = [TMP[4 + j] for j in range(4)]
    for j in range(4):
        s = SB[0].sub(8 * j, 8)
        k(f"v_max3_f32 {mx[j]}, {s[0]}, {s[1]}, {s[2]}"); k(f"v_max3_f32 {mx[j]}, {mx[j]}, {s[3]}, {s[4]}")
        k(f"v_max3_f32 {mx[j]}, {mx[j]}, {s[5]}, {s[6]}"); k(f"v_max_f32 {mx[j]}, {mx[j]}, {s[7]}")
    allreduce(k, mx, mt, op="v_max_f32", cross_only=True)
    for j in range(4):
        for r in range(4): k(f"v_sub_f32 {NM[4*j+r]}, 0, {mx[j]}")
    for r in range(4): k(f"s_or_b64 {mT[r]}, {mB[r]}, {mX}")
    L, tiles = maskops("b", mT, mU, lambda qb, r: NM[qb * 4 + r], mX)
    k.ext(L)
    for j in range(4):
        for e in range(8): k(f"v_sub_f32 {SB[0][8*j+e]}, {SB[0][8*j+e]}, {mx[j]}")
    k(f"v_mov_b32 {TMP[2]}, {f2h(thr)}")
    k("s_waitcnt lgkmcnt(4)")
    G, start = build([ph_qk([0, 1], 1, lambda g, qb, kb: tiles[(qb, kb)] if g == 0 else cplain(g, qb, kb)) + ("V1",)])
    softmax(G, 0, G.n - 1, 0, [0, 1])
    G.emit(k)
    k(f"s_add_u32 m0, {sldsw}, {3*32768}")
    k("WAITVM kv1 lgkm=4")
    k("VMRESET")
    k.ext(stamp("pro"))
    D = [0, 1]
    k(f"s_cmp_eq_u32 {snS}, 1"); k(f"s_cbranch_scc1 {Lb('T')}")
    k(f"s_cmp_eq_u32 {snS}, 2"); k(f"s_cbranch_scc1 {Lb('DM')}")
    pair(D, D, D, D, D, D, prep=True)
    k(signal(sFL, sfl1) + " offset:4")
    k(f"s_sub_u32 {scnt}, {snS}, 4"); k(f"s_cbranch_scc1 {Lb('DM')}")
    k(".p2align 6"); k.label(Lb("D"))
    pair(D, D, D, D, D, D, loop=Lb("D"))
    k.label(Lb("DM"))
    pair(D, D, D, D, D, D, mask=0)
    k.label(Lb("T"))
    pa = poll_issue("pa", vm1, sFL, 0, 16)
    sW = sXN; sow = ssc
    Wd = lambda ks, cb: a(((ks + 16) % 32) * 8 + cb * 4, 4)
    def wl(s): return [f"buffer_load_dwordx4 {Wd(2*s+c//2,c%2)}, {vl16}, {sW}, {sow} offen offset:{c*1024} {SC} ; tag=dw{s}" for c in range(4)] + [f"s_add_u32 {sow}, {sow}, 4096"]
    pair(D, [1], D, D, [1], [1], endwait=None, extra=[f"v_and_b32 {vm1}, 31, {vlane}", f"v_lshlrev_b32 {vm1}, 10, {vm1}", pa])
    epilogue(k, 0)
    srd(k, sW, pWS, 4 * MB, WS_WOP)
    k(f"s_and_b32 {st0}, {si}, 3"); k(f"s_lshl_b32 {st0}, {st0}, 2"); k(f"s_add_u32 {st0}, {st0}, {swave}"); k(f"s_lshl_b32 {sow}, {st0}, 18")
    k(f"s_bfe_u32 {st0}, s2, 0x20005"); k(f"s_lshl_b32 {st0}, {st0}, 16"); k(f"s_add_u32 {sow}, {sow}, {st0}")
    k("s_waitcnt vmcnt(16) lgkmcnt(4)")
    k.ext(stamp("sdone"))
    k(f"s_lshl_b32 {st0}, {si}, 2"); k(f"s_sub_u32 {scnt}, 26, {st0}"); k(f"s_cbranch_scc1 {Lb('SM')}")
    k(".p2align 6"); k.label(Lb("S"))
    pair([1], [1], [1], [1], [1], [1], loop=Lb("S"))
    pair([1], [1], [1], [1], [1], [1], extra=[pa])
    k.label(Lb("SM"))
    k.ext(poll_check("pa", vm1, sFL, 0, 28, 16)[1:])
    k("VMRESET")
    NW1 = opt.get("nw1", 4); NW2 = opt.get("nw2", 6)
    pair([1], [1], [1], [1], [1], [1], dma=False, mask=1, endwait=4 * NW1, wpre=sum((wl(s_) for s_ in range(NW1)), []))
    pair([1], None, [1], [1], None, None, dma=False, endwait=None, wpre=sum((wl(s_) for s_ in range(NW1, NW2)), []))
    k.ext(stamp("ldone"))
    k("s_nop 7")
    epilogue(k, 1)
    k(f"s_cmp_ge_u32 {swave}, 2"); k(f"s_cbranch_scc1 {Lb('nb')}"); k("s_barrier"); k.label(Lb("nb"))
    k(f"s_cmp_lg_u32 {sflag}, 0"); k(f"s_cbranch_scc1 {Lb('fallback')}")
    k.label(Lb("fbret"))
    f_ = tail
    f_.label(Lb("fallback"))
    f_("s_waitcnt vmcnt(0)")
    f_(f"v_and_b32 {t0}, 15, {vlane}"); f_(f"v_lshrrev_b32 {t1}, 4, {vlane}"); f_(f"v_lshlrev_b32 {t1}, 2, {t1}"); f_(f"v_sub_u32 {t0}, {t0}, {t1}")
    for r in range(4): f_(f"v_cmp_le_i32 {mA[r]}, {r}, {t0}")
    for g in range(2):
        F2 = ACC.sub(64 * (1 - g), 64)
        f_(f"s_and_b32 {st0}, {sflag}, {1 << g}"); f_(f"s_cbranch_scc0 {Lb(f'fbdone{g}')}")
        M = NM.sub(0, 2); AL = NM.sub(2, 2); LL = [NM.sub(4, 4), NM.sub(8, 4)]; MN = NM.sub(12, 2); MT = NM.sub(14, 2)
        for j in range(64): f_(f"v_mov_b32 {ACC[g*64+j]}, 0")
        for qb in range(2):
            f_(f"v_mov_b32 {M[qb]}, {vinf}")
            for r in range(4): f_(f"v_mov_b32 {LL[qb][r]}, 0")
        f_(f"v_mov_b32 {t2}, 0"); f_(f"s_mov_b32 {scnt}, 0")
        f_.label(Lb(f"fb{g}"))
        f_(f"s_lshl_b32 {st0}, {scnt}, 13"); f_(f"s_add_u32 {st1}, {st0}, {512*1024}")
        for f in range(16):
            f_(f"buffer_load_dwordx4 {F2.sub(4*f,4)}, {vl16 if f % 8 < 4 else vl16b}, {sKV}, {st0 if f < 8 else st1} offen offset:{(f%4)*1024} {SC}")
        f_(f"s_cmp_eq_u32 {scnt}, {srg[g]}"); f_(f"s_cselect_b64 {mX}, 0, -1")
        for r in range(4): f_(f"s_or_b64 {mT[r]}, {mA[r]}, {mX}")
        L, tiles = maskops("a", mT, mX, lambda qb, r: t2)
        f_.ext(L)
        f_("s_waitcnt vmcnt(0)")
        for kb in range(2):
            for qb in range(2):
                d = Sq(0, 0, qb).sub(4 * kb, 4)
                for ks in range(4):
                    f_(f"{MF} {d}, {F2.sub(4*(4*kb+ks),4)}, {Qf(g,qb,ks)}, {tiles[(qb,kb)] if ks == 0 else d}")
        f_("s_nop 7")
        for qb in range(2):
            s = Sq(0, 0, qb)
            f_(f"v_max3_f32 {MN[qb]}, {s[0]}, {s[1]}, {s[2]}"); f_(f"v_max3_f32 {MN[qb]}, {MN[qb]}, {s[3]}, {s[4]}")
            f_(f"v_max3_f32 {MN[qb]}, {MN[qb]}, {s[5]}, {s[6]}"); f_(f"v_max3_f32 {MN[qb]}, {MN[qb]}, {s[7]}, {M[qb]}")
        allreduce(f_, [MN[0], MN[1]], [MT[0], MT[1]], op="v_max_f32", cross_only=True)
        for qb in range(2):
            s = Sq(0, 0, qb)
            f_(f"v_sub_f32 {AL[qb]}, {M[qb]}, {MN[qb]}"); f_(f"v_exp_f32 {AL[qb]}, {AL[qb]}"); f_(f"v_mov_b32 {M[qb]}, {MN[qb]}")
            for e in range(8): f_(f"v_sub_f32 {s[e]}, {s[e]}, {MN[qb]}")
            for e in range(8): f_(f"v_exp_f32 {s[e]}, {s[e]}")
            for db in range(8):
                for r in range(4): f_(f"v_mul_f32 {O(g,db,qb)[r]}, {O(g,db,qb)[r]}, {AL[qb]}")
            for r in range(4): f_(f"v_mul_f32 {LL[qb][r]}, {LL[qb][r]}, {AL[qb]}")
            for c in range(4): f_(f"v_cvt_pk_bf16_f32 {s[c]}, {s[2*c]}, {s[2*c+1]}")
        f_("s_nop 1")
        for qb in range(2):
            for db in range(8):
                f_(f"{MF} {O(g,db,qb)}, {F2.sub(4*(8+db),4)}, {Sq(0,0,qb).sub(0,4)}, {O(g,db,qb)}")
            f_(f"{MF} {LL[qb]}, {ONES}, {Sq(0,0,qb).sub(0,4)}, {LL[qb]}")
        f_("s_nop 7")
        f_(f"s_add_u32 {scnt}, {scnt}, 1"); f_(f"s_cmp_le_u32 {scnt}, {srg[g]}"); f_(f"s_cbranch_scc1 {Lb(f'fb{g}')}")
        epilogue(f_, g, [LL[0][0], LL[1][0]])
        f_.label(Lb(f"fbdone{g}"))
    f_("s_waitcnt vmcnt(0)"); f_(f"s_branch {Lb('fbret')}")

    S.reset(mark0)
    smb = S(); snb = S(); sng = S(); smt = S(); soa = S(); shf = S(); sxo2 = S(); sfl = S(); shm = S(); sk1 = S()
    scl = S(); sexp = S(); sw0 = S(); so1 = S(); sexp_r = S(); skq = S(); scg = S(); spt = S()
    pX = S(2); pO = S(4); pB1 = S(2); mG = S(2)
    sAct = S(4); sXO = S(4); sHF = S(4); sST = S(4); sW1 = S(4); sB = S(4); sHM = S(4); sPT = S(4)
    vb = X16.sub(0, 4); vw = X16.sub(4, 3); vrd = X16[7]; vrow = X16[8]; vg16 = X16[9]
    DACC = v(32, 64); DF = [v(96, 16), v(112, 16), v(128, 16)]; DA = v(192, 12); PS = v(144, 24); PL = v(168, 24); RD = v(144, 48)
    XRr = v(224, 8); HP = v(240, 8); BR = v(248, 8); vs = v(232, 4); vt2 = v(236, 4)
    vbc = vsig
    vb4 = vm0; vb4s = vm2
    def wpoll_check(tag, n, imm):
        tail.label(Lb("spin" + tag)); tail(f"s_mov_b32 {sspin}, {SPIN}")
        tail.label(Lb("spl" + tag))
        tail(f"buffer_load_dword {vpoll}, {vm1}, {sFL}, {sfl} offen offset:{imm} {SC}")
        tail("s_waitcnt vmcnt(0)"); tail(f"v_readfirstlane_b32 {st0}, {vpoll}"); tail("s_nop 0")
        tail(f"s_cmp_ge_u32 {st0}, {sexp}"); tail(f"s_cbranch_scc1 {Lb('back'+tag)}")
        tail(f"s_sub_u32 {sspin}, {sspin}, 1"); tail(f"s_cbranch_scc0 {Lb('spl'+tag)}"); tail(f"s_branch {Lb('back'+tag)}")
        return [f"s_and_b32 {sexp}, {sw0}, {n}", f"WAITVM {tag}", f"v_readfirstlane_b32 {st0}, {vpoll}", "s_nop 0",
                f"s_cmp_ge_u32 {st0}, {sexp}", f"s_cbranch_scc0 {Lb('spin'+tag)}", Lb("back" + tag) + ":", "s_barrier"]
    k(f"s_load_dwordx2 {pX}, s[0:1], 0"); k(f"s_load_dwordx4 {pO}, s[0:1], 80"); k(f"s_load_dwordx2 {pB1}, s[0:1], 64")
    NA = opt.get("na", 8)
    for s in range(NW2, NA): k.ext(wl(s))
    k(f"s_bfe_u32 {sng}, s2, 0x40003"); k(f"s_and_b32 {snb}, {sng}, 7"); k(f"s_lshr_b32 {skq}, {sng}, 2")
    k(f"s_lshr_b32 {st0}, s2, 7"); k(f"s_lshl_b32 {st0}, {st0}, 3"); k(f"s_and_b32 {smt}, s2, 7"); k(f"s_add_u32 {smt}, {smt}, {st0}")
    k(f"s_lshl_b32 {smb}, {smt}, 1"); k(f"s_lshr_b32 {st0}, {sng}, 3"); k(f"s_add_u32 {smb}, {smb}, {st0}")
    k(f"s_lshl_b32 {scl}, {smt}, 11"); k(f"s_lshl_b32 {sfl}, {sng}, 7"); k(f"s_add_u32 {sfl}, {sfl}, {scl}")
    k(f"s_cmp_eq_u32 {swave}, 0"); k(f"s_cselect_b32 {sw0}, -1, 0"); k(f"s_cselect_b32 {st0}, 0, 0x80000000")
    k(f"v_or_b32 {vm1}, {st0}, {vsig}")
    k(f"v_and_b32 {t0}, 15, {vlane}"); k(f"v_lshl_or_b32 {t0}, {t0}, 7, {st0}")
    k(f"v_and_b32 {t1}, 48, {vlane}"); k(f"v_lshl_or_b32 {vbc}, {t1}, 25, {t0}")
    k(f"v_and_b32 {t1}, 60, {vlane}"); k(f"v_lshl_or_b32 {vb4}, {t1}, 25, {t0}")
    k(f"v_and_b32 {t0}, 3, {vlane}"); k(f"v_lshl_or_b32 {t0}, {t0}, 9, {st0}"); k(f"v_lshl_or_b32 {vb4s}, {t1}, 25, {t0}")
    k(f"s_lshr_b32 {st0}, {sh}, 3"); k(f"s_lshl_b32 {st0}, {st0}, 9")
    k(f"s_lshl_b32 {st1}, {si}, 11"); k(f"s_sub_u32 {st2}, {15*2048}, {st1}"); k(f"s_add_u32 {st1}, {st1}, {st0}"); k(f"s_add_u32 {st2}, {st2}, {st0}")
    k("WAITVM cst"); k("s_barrier")
    k(signal(sFL, st2, vb4)); k(signal(sFL, st1, vb4))
    k.ext(stamp("sig2"))
    NBp = opt.get("nb", 12); NCp = opt.get("nc", 16)
    for s in range(NA, NBp): k.ext(wl(s))
    k(poll_issue("p2", vm1, sFL, sfl))
    for s in range(NBp, NCp): k.ext(wl(s))
    srd(k, sW1, pWS, 88 * 16384, WS_W1P)
    k(f"s_mul_i32 {so1}, {sng}, {6*16384}"); k(f"s_add_u32 {so1}, {so1}, {sldsw}")
    srd(k, sAct, pWS, 16 * MB, WS_CTX)
    k(f"s_lshl_b32 {soa}, {smt}, 20"); k(f"s_lshl_b32 {st0}, {skq}, 18"); k(f"s_add_u32 {soa}, {soa}, {st0}"); k(f"s_add_u32 {soa}, {soa}, {sldsw}")
    for p in range(4):
        k(f"s_xor_b32 {st0}, {skq}, {p}"); k(f"s_lshl_b32 {st0}, {st0}, 11"); k(f"v_add_u32 {DA[3*p]}, {st0}, {vl16}")
        k(f"v_add_u32 {DA[3*p+1]}, 65536, {DA[3*p]}"); k(f"v_add_u32 {DA[3*p+2]}, 131072, {DA[3*p]}")
    k(f"s_and_b32 {scg}, {sng}, 3"); k(f"s_lshl_b32 {st0}, {smt}, 2"); k(f"s_add_u32 {st0}, {st0}, {scg}")
    k(f"s_mul_i32 {st0}, {st0}, {4*3*8192}"); k(f"s_add_u32 {st0}, {st0}, {WS_PART}")
    srd(k, sPT, pWS, 4 * 3 * 8192, st0)
    k(f"s_lshl_b32 {scg}, {scg}, 2"); k(f"s_add_u32 {scg}, {scg}, {swave}")
    k(f"s_lshl_b32 {spt}, {smt}, 2"); k(f"s_add_u32 {spt}, {spt}, {skq}")
    k(f"s_lshl_b32 {shf}, {spt}, 15"); k(f"s_lshl_b32 {st0}, {scg}, 6"); k(f"s_add_u32 {sxo2}, {shf}, {st0}")
    k(f"s_lshl_b32 {st0}, {scg}, 10"); k(f"s_add_u32 {shf}, {shf}, {st0}")
    k(f"v_and_b32 {t0}, 15, {vlane}"); k(f"v_lshrrev_b32 {t1}, 4, {vlane}"); k(f"v_lshlrev_b32 {vg16}, 4, {t1}")
    k(f"v_lshl_add_u32 {vrow}, {t0}, 10, {vg16}")
    k("s_waitcnt lgkmcnt(0)")
    srd(k, sXO, pX, 2 * MB); srd(k, sHF, pWS, 2 * MB, WS_HF); srd(k, sST, pWS, 256 * 1024, WS_STAT)
    k.ext(wpoll_check("p2", 8, 0))
    k.ext(stamp("got2"))
    DSL = [0, 1, 2, 3, 4, 0, 1, 2]; W1SL = [3, 4, 0]
    def sdma(slot, sd, so, tag):
        L = []
        for p in range(8):
            if p % 4 == 0: L.append(f"s_add_u32 m0, {sldsw}, {slot*32768 + (p//4)*4096}")
            L.append(f"buffer_load_dwordx4 {vl16 if p < 4 else vl16b}, {sd}, {so} offen offset:{(p%4)*1024} {SC} lds ; tag={tag}")
        return L + [f"s_add_u32 {so}, {so}, 32768"]
    cd = lambda st: sdma(DSL[st], sAct, soa, f"a{st}")
    TY = lambda rb, cb: DACC.sub((rb * 2 + cb) * 4, 4)
    dun = [(st, rb) for st in range(8) for rb in ((2, 3, 4, 5, 6, 7, 0, 1) if st == 7 else range(8))]
    def dreads(u):
        st, rb = dun[u]; o = DSL[st] * 32768
        return [f"ds_read_b128 {DF[u%3].sub(4*ks,4)}, {DA[3*(rb//2) + o // 65536]} offset:{o % 65536 + ks*8192 + (rb%2)*1024}" for ks in range(4)]
    def take_mem(src):
        L = []
        while src and not ismem(src[0]): L.append(src.pop(0))
        if src: L.append(src.pop(0))
        return L
    emit_dma(cd(0)); emit_dma(cd(1))
    k("WAITVM a0"); k("s_barrier")
    k.ext(dreads(0)); k.ext(dreads(1))
    xq = []
    for rb in range(2):
        xq += [f"s_add_u32 {st1}, {sxo2}, {rb*16384}", f"buffer_load_dwordx4 {XRr.sub(4*rb,4)}, {vrow}, {sXO}, {st1} offen ; tag=e"]
    plan = {0: cd(2) + cd(3), 1: cd(4) + xq, 2: cd(5), 3: cd(6), 4: cd(7)}
    for n in range(3): plan[5 + n] = sdma(W1SL[n], sW1, so1, "w1")
    psk = [sexp_r, shm, sk1]
    vq = []
    for pr in range(1, 4):
        vq += [f"s_xor_b32 {st0}, {skq}, {pr}", f"s_mul_i32 {st0}, {st0}, {3*8192}", f"s_lshl_b32 {st2}, {swave}, 11",
               f"s_add_u32 {st0}, {st0}, {st2}", f"s_add_u32 {psk[pr-1]}, {st0}, {(pr-1)*8192}"]
    mq = []; stq = []
    for u, (st, rb) in enumerate(dun):
        lg = 4 if u < 63 else 0
        if u % 8 == 0:
            assert not any(ismem(x) for x in mq), (u, mq)
            mq += plan.get(st, [])
            k(f"WAITVM dw{2*st+1} lgkm={lg}")
        elif u % 8 == 6 and st < 7:
            k(f"WAITVM a{st+1} lgkm={lg}"); k("s_barrier")
        else: k(f"s_waitcnt lgkmcnt({lg})")
        mf = [f"{MF} {TY(rb,cb)}, {Wd(4*st+ks,cb)}, {DF[u%3].sub(4*ks,4)}, {'0' if st == 0 and ks == 0 else TY(rb,cb)}" for cb in range(2) for ks in range(4)]
        G = Gaps(mf)
        if u < 62:
            for g, x in zip((0, 2, 4, 6), dreads(u + 2)): G.put(g, x)
        nm = sum(ismem(x) for x in plan.get(st, []))
        for g in ((1, 5) if nm > 8 else (1,)):
            L = take_mem(mq)
            for x in L: G.put(g if ismem(x) else g - 1, x)
        sched(G, vq, 4 if st == 7 else 1, 6, stq)
        if stq: G.put(7, stq.pop(0))
        G.emit(k)
        if st == 7 and rb >= 2:
            p = PS.sub(4 * (rb - 2), 4)
            vq += pack(p, TY(rb, 0), TY(rb, 1)) + [("st", f"buffer_store_dwordx4 {p}, {vl16}, {sPT}, {psk[rb//2-1]} offen offset:{(rb%2)*1024} {SC} ; tag=ps")]
    assert not vq and not stq and not any(ismem(x) for x in mq), (vq, stq, mq)
    k.ext(stamp("dmm"))
    k(f"s_and_b32 {st0}, {sng}, 3"); k(f"s_lshl_b32 {st0}, {st0}, 7"); k(f"s_add_u32 {st2}, {st0}, {scl}")
    k(f"s_mul_i32 {sdb}, {skq}, {3*8192}"); k(f"s_lshl_b32 {st1}, {swave}, 11"); k(f"s_add_u32 {sdb}, {sdb}, {st1}")
    k("WAITVM ps"); k("s_barrier")
    k(signal(sFL, st2, vb4s) + " offset:20")
    k(poll_issue("p2b", vm1, sFL, sfl, 20))
    k.ext(stamp("sigp"))
    for n in range(8):
        k(f"v_lshlrev_b32 {t0}, 16, {XRr[n]}"); k(f"v_and_b32 {t2}, 0xffff0000, {XRr[n]}")
        k(f"v_add_f32 {DACC[2*n]}, {DACC[2*n]}, {t0}"); k(f"v_add_f32 {DACC[2*n+1]}, {DACC[2*n+1]}, {t2}")
    for r in range(4):
        k(f"s_add_u32 {st0}, {swave}, {r}"); k(f"s_and_b32 {st0}, {st0}, 3"); k(f"s_lshl_b32 {st1}, {st0}, 10")
        k(f"v_add_u32 {vb[r]}, {st1}, {vl16}")
        if r:
            k(f"s_mul_i32 {st1}, {st0}, 12288"); k(f"s_add_u32 {st1}, {st1}, {32768 + (r-1)*4096}"); k(f"v_add_u32 {vw[r-1]}, {st1}, {vl16}")
    k(f"s_mul_i32 {st1}, {swave}, 12288"); k(f"s_add_u32 {st1}, {st1}, 32768"); k(f"v_add_u32 {vrd}, {st1}, {vl16}")
    k.ext(wpoll_check("p2b", 4, 20))
    for j in range(3):
        for rb in range(2): k(f"buffer_load_dwordx4 {PL.sub(8*j+4*rb,4)}, {vl16}, {sPT}, {sdb} offen offset:{rb*1024} {SC} ; tag=pl{j}")
        k(f"s_add_u32 {sdb}, {sdb}, 8192")
    k.ext(stamp("gotp"))
    k(f"s_mov_b32 {mG[0]}, 0xffff0000"); k(f"s_mov_b32 {mG[1]}, 0xffff0000")
    for j in range(3):
        k(f"WAITVM pl{j}")
        for n in range(8):
            k(f"v_lshlrev_b32 {t0}, 16, {PL[8*j+n]}"); k(f"v_and_b32 {t2}, 0xffff0000, {PL[8*j+n]}")
            k(f"v_add_f32 {DACC[2*n]}, {DACC[2*n]}, {t0}"); k(f"v_add_f32 {DACC[2*n+1]}, {DACC[2*n+1]}, {t2}")
    for rb in range(2):
        for j in range(4): k(f"v_cvt_pk_bf16_f32 {HP[4*rb+j]}, {DACC[8*rb+2*j]}, {DACC[8*rb+2*j+1]}")
        k(f"s_add_u32 {st1}, {shf}, {rb*16384}")
        k(f"buffer_store_dwordx4 {HP.sub(4*rb,4)}, {vl16}, {sHF}, {st1} offen {SC} ; tag=hst")
    for rb in range(2):
        for j in range(4):
            k(f"v_lshlrev_b32 {t0}, 16, {HP[4*rb+j]}"); k(f"v_and_b32 {t2}, 0xffff0000, {HP[4*rb+j]}")
            if j == 0: k(f"v_add_f32 {vs[2*rb]}, {t0}, {t2}"); k(f"v_mul_f32 {vs[2*rb+1]}, {t0}, {t0}")
            else: k(f"v_add_f32 {vs[2*rb]}, {vs[2*rb]}, {t0}"); k(f"v_fmac_f32 {vs[2*rb+1]}, {t0}, {t0}"); k(f"v_add_f32 {vs[2*rb]}, {vs[2*rb]}, {t2}")
            k(f"v_fmac_f32 {vs[2*rb+1]}, {t2}, {t2}")
    allreduce(k, [vs[j] for j in range(4)], [vt2[j] for j in range(4)], cross_only=True)
    k(f"v_cndmask_b32 {vs[0]}, {vs[0]}, {vs[1]}, {mG}"); k(f"v_cndmask_b32 {vs[2]}, {vs[2]}, {vs[3]}, {mG}")
    k(f"s_mov_b32 {mG[0]}, 0"); k(f"s_mov_b32 {mG[1]}, -1")
    k(f"v_lshlrev_b32 {t0}, 2, {vlane}")
    k(f"v_cndmask_b32 {vs[0]}, {vs[0]}, {vs[2]}, {mG}")
    k(f"s_lshl_b32 {st0}, {spt}, 12"); k(f"s_lshl_b32 {st1}, {scg}, 8"); k(f"s_add_u32 {st0}, {st0}, {st1}")
    k(f"buffer_store_dword {vs[0]}, {t0}, {sST}, {st0} offen {SC} ; tag=hst")
    TD = lambda cb, rb: DACC.sub((rb * 4 + cb) * 4, 4)
    def spaced(G, q, step, start=0):
        g = start
        for x in q:
            if ismem(x):
                G.put(min(g, G.n - 1), x); g += step
            else: G.put(min(max(g - step, 0), G.n - 1), x)
    def reduce_(accs, extra):
        k("s_nop 7")
        for r in range(1, 4):
            for cb in range(4): k(f"ds_write_b128 {vw[r-1]}, {TD(cb,r)} offset:{cb*1024}")
        for src in extra:
            for j in range(8):
                k(f"v_lshlrev_b32 {t0}, 16, {src[j]}"); k(f"v_and_b32 {t2}, 0xffff0000, {src[j]}")
                k(f"v_add_f32 {DACC[2*j]}, {DACC[2*j]}, {t0}"); k(f"v_add_f32 {DACC[2*j+1]}, {DACC[2*j+1]}, {t2}")
        k("s_waitcnt lgkmcnt(0)"); k("s_barrier")
        for j in range(12): k(f"ds_read_b128 {RD.sub(4*j,4)}, {vrd} offset:{j*1024}")
        for p in range(3):
            k(f"s_waitcnt lgkmcnt({8-4*p})")
            for j in range(16): k(f"v_add_f32 {DACC[j]}, {DACC[j]}, {RD[16*p+j]}")
        for j in range(8): k(f"v_cvt_pk_bf16_f32 {accs[j]}, {DACC[2*j]}, {DACC[2*j+1]}")

    W2v = v(192, 48)
    W2 = lambda s, cb: a(128 + s * 16 + cb * 4, 4) if s < 8 else W2v.sub((s - 8) * 16 + cb * 4, 4)
    sfb = so1; sfr = sexp_r
    EACC = v(32, 48); EW = [v(80, 16), v(96, 16), v(208, 16)]; C1 = v(112, 24); BF = v(136, 24); B1 = v(160, 12); SR = v(172, 8); G0 = v(180, 4); PK = [v(184, 4), v(188, 4)]; SL = v(192, 16)
    RS = X16.sub(10, 2); MR = [vm0, vm2]; ON = X16.sub(12, 4); vk2 = vinf; vhi = vtr; vl4 = vtrb
    H = a(0, 128)
    srd(k, sB, pB1, 2752)
    k(f"v_lshrrev_b32 {t2}, 1, {vg16}"); k(f"s_mul_i32 {st1}, {sng}, 192")
    for fb in range(6): k(f"buffer_load_dwordx2 {B1.sub(2*fb,2)}, {t2}, {sB}, {st1} offen offset:{fb*32} ; tag=b1")
    k(f"s_mul_i32 {st0}, {snb}, {43*4096}"); k(f"s_add_u32 {st0}, {st0}, {WS_W2P}")
    srd(k, sW, pWS, 43 * 4096, st0)
    k(f"s_mul_i32 {sfb}, {swave}, {11*4096}")
    k(f"s_lshr_b32 {sfr}, s2, 6"); k(f"s_lshl_b32 {sfr}, {sfr}, 1"); k(f"s_xor_b32 {sfr}, {sfr}, {si}"); k(f"s_lshl_b32 {sfr}, {sfr}, 12")
    if not opt.get("frot", 1): k(f"s_mov_b32 {sfr}, 0")
    def foff(d, s): return [f"s_xor_b32 {d}, {sfr}, {s*4096}", f"s_add_u32 {d}, {d}, {sfb}"] if s < 8 else [f"s_add_u32 {d}, {sfb}, {s*4096}"]
    def w2l(s): return foff(sow, s) + [f"buffer_load_dwordx4 {W2(s,c)}, {vl16}, {sW}, {sow} offen offset:{c*1024} {SC} ; tag=w2" for c in range(4)]
    k(f"s_lshl_b32 {smt}, {smt}, 2"); k(f"s_add_u32 {smt}, {smt}, {swave}")
    k(f"s_lshr_b32 {st0}, {smt}, 1"); k(f"s_mul_i32 {st0}, {st0}, {43*4096}"); k(f"s_add_u32 {st0}, {st0}, {WS_HM}")
    srd(k, sHM, pWS, 43 * 4096, st0)
    k(f"s_and_b32 {st0}, {smt}, 1"); k(f"s_lshl_b32 {st0}, {st0}, 11"); k(f"s_mul_i32 {shm}, {sng}, {3*4096}"); k(f"s_add_u32 {shm}, {shm}, {st0}")
    K1 = 2 * math.sqrt(2 / math.pi) * math.log2(math.e)
    k(f"s_mov_b32 {sk1}, {f2h(-K1 * 0.044715)}"); k(f"v_mov_b32 {vk2}, {f2h(-K1)}")
    for j in range(4): k(f"v_mov_b32 {ON[j]}, 0x3f803f80")
    k(f"v_lshlrev_b32 {vl4}, 2, {vlane}")
    k(f"s_and_b32 {sdb}, {sng}, {3 if opt.get('erot', 1) else 0}"); k(f"s_lshl_b32 {sdb}, {sdb}, 12")
    EA = v(224, 8)
    for kq in range(4):
        k(f"s_xor_b32 {st0}, {sdb}, {kq*4096}"); k(f"v_add_u32 {EA[2*kq]}, {st0}, {vl16}"); k(f"v_add_u32 {EA[2*kq+1]}, {3*32768}, {EA[2*kq]}")
    k("WAITVM hst"); k("s_barrier")
    k(signal(sFL, scl, vbc) + " offset:4")
    k.ext(stamp("sig3"))
    k(f"s_cmp_eq_u32 {sng}, 15"); k(f"s_cbranch_scc1 {Lb('noup')}")
    tail.label(Lb("noup"))
    for s in range(11): tail.ext(w2l(s))
    tail(f"s_branch {Lb('upd')}")
    TE = lambda fb, rb: EACC.sub((fb * 2 + rb) * 4, 4)
    Hf = lambda rb, ks: H.sub((rb * 16 + ks) * 4, 4)
    units = [(fb, kq) for kq in range(4) for fb in range(6)]
    def reads(u):
        fb, kq = units[u % 24]
        return [f"ds_read_b128 {EW[u%3].sub(4*ks,4)}, {EA[2*kq + (fb < 4)]} offset:{(fb % 4)*16384 + ks*1024}" for ks in range(4)]
    k.ext(reads(0)); k.ext(reads(1))
    for u, (fb, kq) in enumerate(units):
        k.ext(reads(u + 2)); k("s_waitcnt lgkmcnt(8)")
        if u == opt.get("up3", 10): k(poll_issue("p3", vm1, sFL, sfl, 4))
        c = C1.sub(4 * fb, 4)
        for ks in range(4): k(f"{MF} {c}, {EW[u%3].sub(4*ks,4)}, {ON}, {'0' if kq == 0 and ks == 0 else c}")
    k(f"s_lshl_b32 {st2}, {smt}, 15"); k(f"s_add_u32 {st2}, {st2}, {sdb}")
    k.ext(wpoll_check("p3", 16, 4))
    k.ext(stamp("got3"))
    def hl(kq):
        L = []
        for rb in range(2):
            L.append(f"s_xor_b32 {st1}, {st2}, {rb*16384 + kq*4096}")
            L += [f"buffer_load_dwordx4 {Hf(rb,4*kq+ks)}, {vl16}, {sHF}, {st1} offen offset:{ks*1024} {SC} ; tag=h{kq}" for ks in range(4)]
        return L
    k.ext(hl(0)); k.ext(hl(1))
    for j in range(12):
        k(f"v_lshlrev_b32 {BF[2*j]}, 16, {B1[j]}"); k(f"v_and_b32 {BF[2*j+1]}, 0xffff0000, {B1[j]}")
    mq = hl(2) + hl(3)
    k(f"s_lshl_b32 {st0}, {smt}, 12")
    sq_ = [f"buffer_load_dword {SL[j]}, {vl4}, {sST}, {st0} offen offset:{j*256} {SC} ; tag=st" for j in range(16)]
    w2q = sum((w2l(s) for s in range(11)), [])
    def stats():
        L = Kern("x")
        L("WAITVM st")
        for d in (8, 4, 2, 1):
            for j in range(d): L(f"v_add_f32 {SL[j]}, {SL[j]}, {SL[j+d]}")
        mu, qq, aa, bb = SL[0], SL[1], SL[2], SL[3]
        L(f"v_mul_f32 {mu}, {f2h(1/512)}, {mu}"); L(f"v_mov_b32 {qq}, {mu}"); L("s_nop 1")
        L(f"v_permlane16_swap_b32 {mu}, {qq}")
        L(f"v_fma_f32 {qq}, -{mu}, {mu}, {qq}"); L(f"v_max_f32 {qq}, 0, {qq}")
        L(f"v_add_f32 {aa}, {f2h(1e-5)}, {qq}"); L(f"v_rsq_f32 {aa}, {aa}"); L("s_nop 0")
        L(f"v_mul_f32 {bb}, {aa}, {aa}"); L(f"v_mul_f32 {bb}, {bb}, {qq}"); L(f"v_add_f32 {bb}, {f2h(1e-5)}, {bb}")
        L(f"v_rsq_f32 {bb}, {bb}"); L("s_nop 0")
        L(f"v_mul_f32 {RS[0]}, {aa}, {bb}"); L(f"v_mul_f32 {RS[1]}, {aa}, {bb}")
        L(f"v_mul_f32 {MR[0]}, {mu}, {RS[0]}"); L(f"v_mul_f32 {MR[1]}, {mu}, {RS[0]}"); L("s_nop 1")
        L(f"v_permlane32_swap_b32 {RS[0]}, {RS[1]}"); L(f"v_permlane32_swap_b32 {MR[0]}, {MR[1]}")
        return L.L
    def gelu(pp):
        L = []
        for rb in range(2):
            for fb in (2 * pp, 2 * pp + 1):
                t = TE(fb, rb)
                L += [f"v_fma_f32 {G0[r]}, -{MR[rb]}, {C1[4*fb+r]}, {BF[4*fb+r]}" for r in range(4)]
                L += [f"v_fma_f32 {t[r]}, {t[r]}, {RS[rb]}, {G0[r]}" for r in range(4)]
                L += [f"v_mul_f32 {G0[r]}, {t[r]}, {t[r]}" for r in range(4)]
                L += [f"v_fma_f32 {G0[r]}, {G0[r]}, {sk1}, {vk2}" for r in range(4)]
                L += [f"v_mul_f32 {G0[r]}, {G0[r]}, {t[r]}" for r in range(4)]
                L += [f"v_exp_f32 {G0[r]}, {G0[r]}" for r in range(4)]
                L += [f"v_add_f32 {G0[r]}, 1.0, {G0[r]}" for r in range(4)]
                L += [f"v_rcp_f32 {G0[r]}, {G0[r]}" for r in range(4)]
                L += [f"v_mul_f32 {t[r]}, {t[r]}, {G0[r]}" for r in range(4)]
            L += pack(PK[rb], TE(2 * pp, rb), TE(2 * pp + 1, rb))
            L.append(f"buffer_store_dwordx4 {PK[rb]}, {vl16}, {sHM}, {shm} offen offset:{rb*1024} {SC} ; tag=mst")
        L.append(f"s_add_u32 {shm}, {shm}, 4096")
        return L
    q = []
    for u, (fb, kq) in enumerate(units):
        lg = 4 if u < 23 else 0
        if fb == 0: k(f"WAITVM h{kq} lgkm={lg}")
        else: k(f"s_waitcnt lgkmcnt({lg})")
        mf = [f"{MF} {TE(fb,rb)}, {EW[u%3].sub(4*ks,4)}, {Hf(rb,4*kq+ks)}, {'0' if kq == 0 and ks == 0 else TE(fb,rb)}" for rb in range(2) for ks in range(4)]
        G = Gaps(mf)
        if u + 2 < len(units):
            for g, x in zip((0, 2, 4, 6), reads(u + 2)): G.put(g, x)
        for g in (1, 5):
            L = take_mem(mq if mq else w2q)
            for x in L: G.put(g if ismem(x) else g - 1, x)
        if sq_ and u >= 2: G.put(3, sq_.pop(0)); G.put(7, sq_.pop(0))
        if u == 15: q += stats()
        if u == 20: q += gelu(0)
        sched(G, q, 2 if u == 20 else 0, 7)
        G.emit(k)
    assert any("v[192:195]" in x for x in w2q)
    k.ext(stamp("emm"))
    q += gelu(1) + gelu(2)
    for n, x in enumerate(q):
        k(x)
        if n % 12 == 11: k.ext(take_mem(w2q))
    k.ext(w2q)
    k("WAITVM mst"); k("s_barrier")
    k(signal(sFL, scl, vbc) + " offset:8")
    k.label(Lb("upd"))
    k("VMRESET")
    k.ext(stamp("sig4"))

    k(poll_issue("p4", vm1, sFL, sfl, 8))
    k(f"s_mul_i32 {st0}, {smb}, {43*4096}"); k(f"s_add_u32 {st0}, {st0}, {WS_HM}")
    srd(k, sAct, pWS, 43 * 4096, st0)
    k.ext(foff(soa, 0))
    srd(k, sXO, pO[2:4], 2 * MB); srd(k, sB, pO[0:2], 1024)
    k(f"s_lshl_b32 {shf}, {smb}, 2"); k(f"s_add_u32 {shf}, {shf}, {swave}"); k(f"s_lshl_b32 {shf}, {shf}, 14")
    k(f"s_lshl_b32 {st2}, {snb}, 7"); k(f"s_add_u32 {sxo2}, {shf}, {st2}")
    k(f"s_lshl_b32 {st1}, {snb}, 11"); k(f"s_add_u32 {shf}, {shf}, {st1}")
    eq = [f"buffer_load_dwordx4 {HP.sub(4*j,4)}, {vl16}, {sHF}, {shf} offen offset:{1024*j} {SC} ; tag=fe" for j in range(2)]
    eq += [f"buffer_load_dwordx4 {BR.sub(4*j,4)}, {vg16}, {sB}, {st2} offen offset:{64*j} ; tag=fe" for j in range(2)]
    AV = v(96, 48)
    Af = lambda s, rb: a(s * 16 + rb * 4, 4) if s < 8 else AV.sub((s - 8) * 16 + rb * 4, 4)
    def fl(s): return [f"buffer_load_dwordx4 {Af(s,r)}, {vb[r]}, {sAct}, {soa} offen {SC} ; tag=fa{s}" for r in range(4)] + foff(soa, s + 1)
    k.ext(wpoll_check("p4", 15, 8))
    k.ext(stamp("got4"))
    NF = opt.get("nf", 4)
    for s in range(NF): k.ext(fl(s))
    for s in range(11):
        k(f"WAITVM fa{s}")
        G = Gaps([f"{MF} {TD(cb,rb)}, {W2(s,cb)}, {Af(s,rb)}, {'0' if s == 0 else TD(cb,rb)}" for rb in range(4) for cb in range(4)])
        if s + NF < 11: spaced(G, fl(s + NF), 4)
        elif s + NF == 11: spaced(G, eq, 4)
        G.emit(k)
    k.ext(stamp("fmm"))
    OP = v(96, 8)
    k("WAITVM fe")
    reduce_(OP, [HP, BR])
    for j in range(2): k(f"buffer_store_dwordx4 {OP.sub(4*j,4)}, {vrow}, {sXO}, {sxo2} offen offset:{64*j}")
    if dbg:
        k("s_waitcnt vmcnt(0)"); k.ext(stamp("end"))
        srd(k, sW, pWS, MB, WS_DBG)
        k(f"s_lshl_b32 {st0}, s2, 2"); k(f"s_add_u32 {st0}, {st0}, {swave}"); k(f"s_lshl_b32 {st0}, {st0}, 8")
        k(f"v_lshlrev_b32 {t0}, 2, {vlane}")
        k(f"buffer_store_dword v0, {t0}, {sW}, {st0} offen")
    k.label(E)
    k("s_endpgm")
    tail.label(Lb("codeend")); tail("s_endpgm")
    k.L = resolve_waits(k.L) + tail.L
    return k, names

def build(path, **kw):
    import hazard
    k, names = gen(KNAME + "_kernel", **kw)
    bad = hazard.check(k.L, k.name)
    hdr = "; pre-LN latent-KV causal attention + channel MLP as one persistent launch (emitted by my own python generator)\n"
    open(path, "w").write(build_single(k, 512, 256, 102, 256, 256, 163840, hdr))
    check_file(path)
    if names: open(path[:-2] + ".names", "w").write(" ".join(names))
    return bad

if __name__ == "__main__":
    build("m.s"); build("m_dbg.s", dbg=True); build("m_force.s", thr=0.5)
```

```python
import mega, sys
V = eval(open(sys.argv[1]).read())
dbg = "nodbg" not in sys.argv
fs = []
for n, o in V.items():
    bad = mega.build(f"x_{n}.s", dbg=dbg, opt=o); assert not bad
    fs.append(f"x_{n}")
print(" ".join(f + ".s" for f in fs))
print(", ".join(f'"work/{f}.s"' + (f', "work/{f}.names"' if dbg else "") for f in fs))
```

```python
import re, sys
RR = re.compile(r'\b([vas])(?:(\d+)|\[(\d+):(\d+)\])')
def regs(tok):
    out = set()
    for m in RR.finditer(tok):
        k = m.group(1)
        if m.group(2) is not None: out.add((k, int(m.group(2))))
        else:
            for i in range(int(m.group(3)), int(m.group(4)) + 1): out.add((k, i))
    t = tok.strip()
    if t in ('vcc',): out |= {('s', 'vcc')}
    if t in ('vcc_lo', 'vcc_hi'): out |= {('s', 'vcc')}
    if t == 'm0': out.add(('s', 'm0'))
    if t in ('exec', 'exec_lo', 'exec_hi'): out.add(('s', 'exec'))
    return out
TRANS = ('v_exp_f32', 'v_log_f32', 'v_rcp_f32', 'v_rsq_f32', 'v_sqrt_f32', 'v_sin_f32', 'v_cos_f32')
class I:
    def __init__(s, text, idx):
        s.text = text; s.idx = idx
        t = text.split(';')[0].strip()
        p = t.split(None, 1)
        s.op = p[0]; rest = p[1] if len(p) > 1 else ''
        ops = [x.strip() for x in re.split(r',\s*(?![^\[]*\])', rest)] if rest else []
        s.ops = ops
        op = s.op
        for suf in ('_e32', '_e64', '_dpp', '_sdwa'):
            if op.endswith(suf): op = op[:-len(suf)]
        s.b = op
        s.mfma = op.startswith('v_mfma') or op.startswith('v_smfmac')
        s.valu = op.startswith('v_') and not s.mfma
        s.salu = op.startswith('s_')
        s.ds = op.startswith('ds_')
        s.vmem = op.startswith('buffer_') or op.startswith('global_')
        s.trans = op in TRANS
        s.dpp = any(k in text for k in ('quad_perm', 'row_shr', 'row_ror', 'row_mirror', 'row_half_mirror', 'row_bcast', 'row_shl', 'row_newbcast'))
        s.perml = op.startswith('v_permlane')
        s.w = set(); s.r = set(); s.A = s.B = s.C = set(); s.sdata = set()
        s.states = 1
        if op == 's_nop': s.states = int(ops[0], 0) + 1
        first = lambda x: x.split()[0] if x else x
        if s.mfma:
            s.w = regs(ops[0]); s.A = regs(ops[1]); s.B = regs(ops[2]); s.C = regs(first(ops[3])); s.r = s.A | s.B | s.C
            s.passes = 8 if '32x32' in op or 'smfmac' in op else 4
            if 'smfmac' in op: s.A = s.A | s.C; s.C = set(s.w); s.r = s.A | s.B | s.C
        elif s.valu:
            if op.startswith('v_cmp'):
                s.w = regs(ops[0]); s.r = set().union(*[regs(x) for x in ops[1:]])
                if op.startswith('v_cmpx'): s.w |= {('s', 'exec')}
            elif s.perml and 'swap' in op:
                s.w = regs(ops[0]) | regs(ops[1]); s.r = set(s.w)
            elif op in ('v_add_co_u32', 'v_sub_co_u32', 'v_addc_co_u32'):
                s.w = regs(ops[0]) | regs(ops[1]); s.r = set().union(*[regs(x) for x in ops[2:]])
            elif op == 'v_nop': pass
            else:
                s.w = regs(ops[0]); s.r = set().union(*[regs(first(x)) if i == len(ops) - 2 else regs(x) for i, x in enumerate(ops[1:])]) if len(ops) > 1 else set()
                if op in ('v_fmac_f32', 'v_writelane_b32') or s.dpp: s.r |= s.w
        elif s.ds:
            if op.startswith('ds_read') or op.startswith('ds_bpermute') or op.startswith('ds_swizzle') :
                s.w = regs(ops[0]); s.r = set().union(*[regs(first(x)) for x in ops[1:]])
            else:
                s.r = set().union(*[regs(first(x)) for x in ops])
        elif s.vmem:
            lds = re.search(r'\blds\b', text) is not None
            s.lds = lds
            if 'load' in op and not lds:
                s.w = regs(ops[0]); s.r = set().union(*[regs(first(x)) for x in ops[1:]])
            else:
                s.r = set().union(*[regs(first(x)) for x in ops]) if ops else set()
                if 'store' in op and ('x4' in op or 'x3' in op):
                    s.sdata = regs(ops[0]) if op.startswith('buffer') else regs(ops[1])
            if lds: s.r |= {('s', 'm0')}
        elif s.salu:
            if op.startswith('s_cmp') or op.startswith('s_bitcmp') or op in ('s_waitcnt', 's_barrier', 's_nop', 's_endpgm', 's_setprio', 's_sleep') or 'branch' in op:
                s.r = set().union(*[regs(x) for x in ops]) if ops and op.startswith('s_cmp') else set()
            else:
                s.w = regs(ops[0]) if ops else set(); s.r = set().union(*[regs(x) for x in ops[1:]]) if len(ops) > 1 else set()
                if 'saveexec' in op: s.w |= {('s', 'exec')}
def need(p, c):
    n = 0; why = ''
    def up(v, w):
        nonlocal n, why
        if v > n: n, why = v, w
    vw = {x for x in p.w if x[0] in 'va'}; sw = {x for x in p.w if x[0] == 's'}
    if p.valu:
        if c.mfma and vw & c.r: up(2, 'valu->mfma')
        if c.valu and c.perml and vw & c.r: up(2, 'valu->permlane')
        if c.valu and c.dpp and vw & c.r: up(2, 'valu->dpp')
        if c.b in ('v_readfirstlane_b32', 'v_readlane_b32') and vw & c.r: up(1, 'valu->readlane')
        if p.trans and c.valu and not c.trans and vw & c.r: up(1, 'trans->valu')
        if p.trans and c.mfma and vw & c.r: up(2, 'trans->mfma')
        if c.vmem and sw & c.r: up(5, 'valu sgpr->vmem')
        if c.valu and sw & c.r: up(2, 'valu sgpr->valu')
        if ('s', 'exec') in sw and (c.mfma or c.perml): up(4, 'exec->mfma')
        if ('s', 'exec') in sw and c.dpp: up(5, 'exec->dpp')
    if p.mfma:
        big = p.passes == 8
        if c.mfma:
            if vw & (c.A | c.B): up(12 if big else 8, 'mfma D->mfma A/B')
            if vw & c.C and not (vw == c.C and p.passes == c.passes): up(10 if big else 6, 'mfma D->mfma C partial')
            if vw & c.w and not (vw & c.C) : up(10 if big else 6, 'mfma D->mfma D WAW(conservative)')
        elif (c.valu or c.ds or c.vmem) and vw & (c.r | c.w): up(12 if big else 8, 'mfma D->valu/mem')
        if c.valu and p.C & c.w: up(7 if big else 3, 'mfma C WAR')
    if p.salu and ('s', 'm0') in p.w and c.vmem and getattr(c, 'lds', False): up(1, 'm0->dma')
    if p.vmem and p.sdata:
        if c.valu and p.sdata & c.w: up(2, 'store data WAR valu')
        elif (c.mfma or c.ds or c.vmem) and p.sdata & c.w: up(1, 'store data WAR')
    return n, why
def check(lines, name='', maxd=13, collect=None):
    ins = []; lab = {}; lno = []
    for li, ln in enumerate(lines):
        t = ln.split(';')[0].strip()
        if not t or t.startswith('.'): continue
        if t.endswith(':'): lab[t[:-1]] = len(ins); continue
        ins.append(I(t, len(ins))); lno.append(li)
    pred = [[] for _ in range(len(ins) + 1)]
    for i, x in enumerate(ins):
        if x.b == 's_endpgm': continue
        if 'branch' in x.b:
            pred[lab[x.ops[0]]].append(i)
            if x.b == 's_branch': continue
        if x.b in ('s_setpc_b64',): continue
        pred[i + 1].append(i)
    bad = 0
    NOSCC = ('s_mov', 's_cselect', 's_waitcnt', 's_barrier', 's_nop', 's_mul_i32', 's_load', 's_branch', 's_cbranch', 's_memrealtime', 's_setprio', 's_getpc', 's_endpgm', 's_sleep', 's_movk')
    lastw = None
    for c in ins:
        if c.b == 's_addc_u32':
            ok = lastw is not None and lastw.b == 's_add_u32' and {(k_, n_ + 1) for k_, n_ in lastw.w} == c.w
        elif c.b.startswith('s_cselect'): ok = lastw is not None and lastw.b.startswith(('s_cmp', 's_bitcmp'))
        elif c.b.startswith('s_cbranch_scc'): ok = lastw is not None and (lastw.b.startswith('s_cmp') or lastw.b in ('s_sub_u32', 's_and_b32')) and ('s', 'm0') not in lastw.w
        else: ok = True
        if not ok:
            bad += 1; print(f"SCC[{name}] {lastw.text if lastw else None}  ->  #{c.idx} {c.text}")
        if c.salu and not c.b.startswith(NOSCC): lastw = c
    for c in ins:
        stack = [(p, 0) for p in pred[c.idx]]; seen = set()
        while stack:
            pi, d = stack.pop()
            if (pi, d) in seen: continue
            seen.add((pi, d))
            p = ins[pi]
            n, why = need(p, c)
            if n > d and collect is not None:
                collect[lno[c.idx]] = max(collect.get(lno[c.idx], 0), n - d)
            elif n > d:
                bad += 1
                if bad < 30: print(f"HAZARD[{name}] {why}: need {n} have {d}\n    #{p.idx} {p.text}\n    #{c.idx} {c.text}")
            d2 = d + p.states
            if d2 < maxd:
                for q in pred[pi]: stack.append((q, d2))
    if bad: print(f"{name}: {bad} hazards")
    return bad

def fix(lines, name=''):
    n = 0
    while True:
        c = {}
        check(lines, name, collect=c)
        if not c: return lines, n
        out = []; last = -100
        for i, ln in enumerate(lines):
            if i in c and i - last > 13:
                out.append(f"s_nop {c[i]-1}"); last = i; n += 1
            out.append(ln)
        lines = out
```

```python
from asmlib import *
from layout import *
from k1 import f2h, MF, setup_wstream, wdma, trreads, cb_mfmas, pack
import math, re

NEGINF = "0xff800000"
SPIN = 200000

def sched(G, q, lo, hi=None, stq=None, second=False):
    hi = G.n - 1 if hi is None else hi
    g = lo
    while q and g <= hi:
        x = q[0]
        if isinstance(x, tuple):
            stq.append(x[1]); q.pop(0); continue
        full = G.cost(g) + icost(x) > G.cap
        clash = ismem(x) and len(G.g[g]) > 0 and not (second and len(G.g[g]) == 1 and G.g[g][0].startswith("ds_"))
        if full or clash:
            g += 1; continue
        G.g[g].append(x); q.pop(0)
    while q and isinstance(q[0], tuple):
        stq.append(q[0][1]); q.pop(0)

def glue(L):
    out = []
    for x in L:
        if x.startswith("s_addc") or x.startswith("s_cselect"): out[-1] += "\n" + x
        else: out.append(x)
    return out

def gen(name, dbg=False, thr=2.0**60, opt=None):
    opt = opt or {}
    SC = "sc1"; STF = opt.get("stf", "sc1")
    k = Kern(name)
    tail = Kern("tail")
    v = lambda b, n=1: Reg('v', b, n)
    a = lambda b, n=1: Reg('a', b, n)
    Lb = lambda s: f"L_{s}"
    E = Lb("end")
    vlane, vl16, vl16b, t0, t1, t2, vsig, vone, vpoll, vtr, vtrb, vinf, vm0, vm1, vm2 = [v(i) for i in range(1, 16)]
    X16 = v(16, 16); ACC = v(32, 128); WFr = v(160, 32); PB = v(192, 64)
    vW = X16.sub(0, 8); vco = X16.sub(8, 4); vcr = X16.sub(12, 4)
    WF = [WFr.sub(0, 16), WFr.sub(16, 16)]
    R = a(0, 256)
    S = Alloc("s", 3, 100)
    swave = S(); sh = S(); si = S(); st0 = S(); st1 = S(); st2 = S(); ssoff = S(); sldsw = S(); sspin = S()
    srg = S(2, 1); pWS = S(2)
    sFL = S(4); sKV = S(4); sXN = S(4); ssc = S(); sdb = S()
    mark0 = S.mark()
    nst = [0]; names = []
    echo = opt.get("echo")
    def stamp(nm):
        if echo:
            if nm == "start": return ["v_writelane_b32 v0, s100, 0"] + (["s_memrealtime s[100:101]", "s_waitcnt lgkmcnt(0)", "v_writelane_b32 v0, s100, 1"] if echo == nm else [])
            return ["s_memrealtime s[100:101]", "s_waitcnt lgkmcnt(0)", "v_writelane_b32 v0, s100, 1"] if nm == echo else []
        if not dbg: return []
        r = ["s_memtime s[100:101]" if opt.get("cyc") else "s_memrealtime s[100:101]", "s_waitcnt lgkmcnt(0)", f"v_writelane_b32 v0, s100, {nst[0]}"]
        nst[0] += 1; names.append(nm); return r
    def poll_issue(tag, vaddr, sd, soff, imm=0):
        return f"buffer_load_dword {vpoll}, {vaddr}, {sd}, {soff} offen offset:{imm} {SC} ; tag={tag}"
    def poll_check(tag, vaddr, sd, soff, n, imm=0):
        tail.label(Lb("spin" + tag)); tail(f"s_mov_b32 {sspin}, {SPIN}")
        tail.label(Lb("spl" + tag))
        tail(f"buffer_load_dword {vpoll}, {vaddr}, {sd}, {soff} offen offset:{imm} {SC}")
        tail("s_waitcnt vmcnt(0)"); tail(f"v_cmp_gt_u32 vcc, {n}, {vpoll}"); tail("s_nop 0")
        tail(f"s_cbranch_vccz {Lb('back'+tag)}")
        tail(f"s_sub_u32 {sspin}, {sspin}, 1"); tail(f"s_cbranch_scc0 {Lb('spl'+tag)}"); tail(f"s_branch {Lb('back'+tag)}")
        return [f"WAITVM {tag}", f"v_cmp_gt_u32 vcc, {n}, {vpoll}", "s_nop 0", f"s_cbranch_vccnz {Lb('spin'+tag)}", Lb("back" + tag) + ":"]
    def signal(sd, soff, vo=None): return f"buffer_atomic_add {vone}, {vo or vsig}, {sd}, {soff} offen"
    def emit_dma(L):
        for x in L:
            k(x)
            if "m0" in x.split(",")[0]: k("s_nop 0")

    sldsc = sdb; scr = S(4, 2); sst = S(4, 2); sxr = S(4, 1); srot = S(); spe3 = S()
    sC = S(4); sWk = S(4); sWv = S(4); sWq = S(4); sDB = S(4); sP = S(4); sPD = S(4)
    sprow = S(); spA = S(); spB = S(); spd = S(); spe1 = S(); spe2 = S(); spstr = S(); spcs = S(); spxs = S(); sxo = S()
    pD = S(2); pA = S(4); pB = S(4); pC = S(4); pE = S(2); pF = sDB[0:2]
    sX = sP
    k(f"s_cmp_ge_u32 s2, 256"); k(f"s_cbranch_scc1 {E}")
    if echo: k("s_memrealtime s[100:101]")
    if opt.get("perm") == 1:
        k(f"s_and_b32 {st0}, s2, 7"); k(f"s_lshl_b32 {st0}, {st0}, 5"); k(f"s_lshr_b32 s2, s2, 3"); k(f"s_or_b32 s2, s2, {st0}")
    if opt.get("perm") == 2:
        k(f"s_and_b32 {st0}, s2, 7"); k(f"s_lshl_b32 {st0}, {st0}, 3"); k(f"s_bfe_u32 {st1}, s2, 0x30003"); k(f"s_and_b32 s2, s2, 0xc0"); k(f"s_or_b32 s2, s2, {st0}"); k(f"s_or_b32 s2, s2, {st1}")
    k(f"s_load_dwordx4 {pA}, s[0:1], 0")
    k(f"s_load_dwordx4 {pB}, s[0:1], 16")
    k(f"s_load_dwordx4 {pC}, s[0:1], 32")
    k(f"s_load_dwordx2 {pD}, s[0:1], 56")
    k(f"s_load_dwordx2 {pE}, s[0:1], 72")
    k(f"s_load_dwordx2 {pF}, s[0:1], 96")
    k(f"s_load_dwordx2 {pWS}, s[0:1], 104")
    k(f"v_lshrrev_b32 {t0}, 6, v0"); k(f"v_and_b32 {vlane}, 63, v0"); k(f"v_readfirstlane_b32 {swave}, {t0}")
    k(f"v_lshlrev_b32 {vl16}, 4, {vlane}")
    k(f"s_and_b32 {st0}, s2, 7"); k(f"s_lshl_b32 {st0}, {st0}, 2"); k(f"s_lshr_b32 {sh}, s2, 6"); k(f"s_add_u32 {sh}, {sh}, {st0}")
    k(f"s_bfe_u32 {si}, s2, 0x30003")
    TV = [t0, t1, vpoll, vpoll, t0, t1, vpoll, vpoll, vpoll]; touches = []
    def tc():
        return [[f"s_lshr_b32 {sspin}, s2, 3", f"s_lshl_b32 {sspin}, {sspin}, 2", f"s_add_u32 {sspin}, {sspin}, {swave}", f"s_lshl_b32 {sspin}, {sspin}, 14",
                 f"v_lshrrev_b32 {TV[0]}, 2, {vlane}", f"v_and_b32 {TV[1]}, 3, {vlane}", f"v_lshlrev_b32 {TV[1]}, 7, {TV[1]}", f"v_lshl_add_u32 {TV[0]}, {TV[0]}, 10, {TV[1]}",
                 f"buffer_load_dword {TV[2]}, {TV[0]}, {sC}, {sspin} offen offset:256"],
                [f"v_and_b32 {TV[1]}, 2, {vlane}", f"v_lshl_or_b32 {TV[0]}, {TV[1]}, 30, {TV[0]}",
                 f"buffer_load_dword {TV[3]}, {TV[0]}, {sC}, {sspin} offen offset:768"]]
    def tw(sd, row0, nrow, n):
        return [f"v_lshrrev_b32 {TV[4]}, 1, {vlane}", f"v_and_b32 {TV[5]}, 1, {vlane}", f"v_lshlrev_b32 {TV[5]}, 7, {TV[5]}", f"v_lshl_add_u32 {TV[5]}, {TV[4]}, 13, {TV[5]}",
                f"v_and_b32 {TV[4]}, {(~(nrow-1)) & 31}, {TV[4]}", f"v_lshl_or_b32 {TV[5]}, {TV[4]}, 26, {TV[5]}",
                f"s_mul_i32 {sspin}, {srg[0]}, {nrow*8192}", f"s_add_u32 {sspin}, {sspin}, {row0*8192}",
                f"buffer_load_dword {TV[6+n]}, {TV[5]}, {sd}, {sspin} offen"]
    tt = opt.get("touch", {"q": 24.0})
    if "c" in tt: touches += [(tt["c"], x) for x in tc()]
    if "k" in tt: touches.append((tt["k"], tw(sWk, 256, 8, 0)))
    if "v" in tt: touches.append((tt["v"], tw(sWv, 0, 16, 1)))
    if "q" in tt: touches.append((tt["q"], tw(sWq, 0, 16, 2)))
    if "p" in tt:
        touches.append((tt["p"], [f"v_bfe_u32 {t0}, {vlane}, 1, 2", f"v_and_b32 {t1}, 1, {vlane}", f"v_lshlrev_b32 {t1}, 7, {t1}", f"v_mad_u32_u24 {t1}, {t0}, {spstr}, {t1}",
                 f"v_bfe_u32 {t0}, {vlane}, 3, 1", f"v_mad_u32_u24 {t1}, {t0}, {spA}, {t1}", f"v_lshrrev_b32 {t0}, 4, {vlane}", f"v_mad_u32_u24 {t1}, {t0}, {spB}, {t1}",
                 f"buffer_load_dword {vpoll}, {t1}, {sP}, {sprow} offen"]))
        assert tt["p"] >= 0
    def tlb_touch(sh_):
        return [f"v_min_u32 {t2}, 39, {vlane}", f"v_lshlrev_b32 {t2}, 21, {t2}", f"v_mov_b32 {t1}, {pWS[1]}",
                f"v_add_co_u32 {t0}, vcc, {pWS[0]}, {t2}", "s_nop 1", f"v_addc_co_u32 {t1}, vcc, 0, {t1}, vcc",
                f"global_load_dword {vpoll}, v[{t0.base}:{t1.base}], off {SC}"]
    if "tlb" in tt: touches.append((tt["tlb"], tlb_touch(21)))
    def code_touch():
        pc = PB.sub(28, 2)
        k(f"s_getpc_b64 {sPD[0:2]}"); k.label(Lb("pc"))
        k(f"s_lshr_b32 {sspin}, s2, 3"); k(f"s_lshl_b32 {sspin}, {sspin}, 2"); k(f"s_add_u32 {sspin}, {sspin}, {swave}")
        k(f"v_lshl_add_u32 {t0}, {vlane}, 7, {sspin}"); k(f"v_lshlrev_b32 {t0}, 7, {t0}")
        k(f"v_min_u32 {t0}, {Lb('codeend')}-{Lb('pc')}-4, {t0}")
        k(f"v_mov_b32 {pc[1]}, {sPD[1]}"); k(f"v_add_co_u32 {pc[0]}, vcc, {sPD[0]}, {t0}"); k("s_nop 1"); k(f"v_addc_co_u32 {pc[1]}, vcc, 0, {pc[1]}, vcc")
        k("s_mov_b64 exec, 63"); k(f"global_load_dword {vpoll}, {pc}, off"); k("s_mov_b64 exec, -1")
    if opt.get("code", 1) == 1: code_touch()
    setup_wstream(k, vW, vtrb, vlane, swave, t0, t1, t2, st0)
    k(f"v_and_b32 {t0}, 15, {vlane}"); k(f"v_lshrrev_b32 {t1}, 4, {vlane}")
    k(f"s_lshl_b32 {sldsc}, {swave}, 14"); k(f"s_add_u32 {sldsc}, {sldsc}, {96*1024}")
    k(f"v_xor_b32 {t2}, {t0}, {t1}"); k(f"v_lshlrev_b32 {t2}, 4, {t2}")
    k(f"v_lshl_add_u32 {vco[0]}, {t1}, 10, {t2}")
    k(f"v_lshl_add_u32 {vcr[0]}, {t0}, 8, {t2}"); k(f"v_add_u32 {vcr[0]}, {sldsc}, {vcr[0]}")
    for q in range(1, 4):
        k(f"v_xor_b32 {vco[q]}, {q*64}, {vco[0]}"); k(f"v_add_u32 {vco[q]}, {q*4096 - q*1024}, {vco[q]}")
        k(f"v_xor_b32 {vcr[q]}, {q*64}, {vcr[0]}")
    k(f"s_lshl_b32 {st0}, {si}, 2"); k(f"s_add_u32 {srg[0]}, {st0}, {swave}")
    k(f"s_sub_u32 {srg[1]}, 60, {st0}"); k(f"s_add_u32 {srg[1]}, {srg[1]}, {swave}")
    ROT = opt.get("rot", 0)
    k(f"s_add_u32 {srot}, {sh if ROT == 2 else 's2'}, {si}"); k(f"s_and_b32 {srot}, {srot}, {3 if ROT else 0}")
    k(f"s_lshl_b32 {st1}, {srot}, 8"); k(f"s_lshl_b32 {srot}, {srot}, 20")
    k(f"s_lshl_b32 {scr[0]}, {srg[0]}, 16"); k(f"s_add_u32 {scr[0]}, {scr[0]}, {st1}")
    for rb in range(1, 4): k(f"s_add_u32 {scr[rb]}, {scr[0]}, {rb*16384}")
    k(f"s_lshl_b32 {sldsw}, {swave}, 13")
    k(f"s_lshl_b32 {ssc}, s2, 2"); k(f"s_add_u32 {ssc}, {ssc}, {swave}"); k(f"s_lshl_b32 {ssc}, {ssc}, 11")
    k(f"s_lshl_b32 {st0}, {sh}, 8"); k(f"s_sub_u32 {st1}, {4*MB}, {st0}")
    k(f"s_waitcnt lgkmcnt(0)")
    k.ext(stamp("start"))
    srd(k, sX, pA[0:2], 2 * MB); srd(k, sC, pA[2:4], 2 * MB)
    srd(k, sWk, pB[2:4], st1, st0)
    XR = [PB.sub(0, 4), PB.sub(4, 4)]; XF = [PB.sub(8, 8), PB.sub(16, 8)]; vs = PB.sub(24, 2); vt_ = PB.sub(26, 2)
    srd(k, sFL, pWS, 256 * 128, WS_FLG)
    k(f"s_cmp_lg_u32 s2, 0"); k(f"s_cbranch_scc1 {Lb('nz')}")
    for j in range(4): k(f"v_mov_b32 {XF[0][j]}, 0")
    k(f"v_lshlrev_b32 {t0}, 7, {vlane}")
    for j in range(2): k.L.append(f" buffer_store_dwordx4 {XF[0].sub(0,4)}, {t0}, {sFL}, {sldsw} offen offset:{16*j} {SC}")
    k.label(Lb("nz"))
    k(f"buffer_load_dwordx4 {XR[0]}, {vl16}, {sX}, {ssc} offen ; tag=x")
    k(f"buffer_load_dwordx4 {XR[1]}, {vl16}, {sX}, {ssc} offen offset:1024 ; tag=x")
    def cdma(ch):
        L = []
        for rb in range(4):
            L += [f"s_xor_b32 {ssc}, {scr[rb]}, {ch*256}", f"s_add_u32 m0, {sldsc}, {rb*4096}"]
            L += [f"buffer_load_dwordx4 {vco[q]}, {sC}, {ssc} offen offset:{q*1024} lds ; tag=c{ch}q{rb}" for q in range(4)]
        return L
    def creads(ch):
        return [f"ds_read_b128 {R.sub(((4*ch+ks)*4+rb)*4,4)}, {vcr[ks]} offset:{rb*4096}" for rb in range(4) for ks in range(4)]
    def wd(st):
        L = wdma(st, vW, (sWk, sWv, sWq)[st // 4], ssoff, sldsw, f"w{st}", 3)
        if st < 8: L[0] = f"s_xor_b32 {ssoff}, {srot}, {(st % 4) << 20}"
        return L
    fine = opt.get("fine")
    NC0 = opt.get("nc0", 1)
    emit_dma(wd(0)); emit_dma(cdma(0)[:6 * NC0])
    if fine: k.ext(stamp("iw0"))
    srd(k, sWv, pC[0:2], st1, st0); srd(k, sWq, pB[0:2], st1, st0)
    k(f"s_lshl_b32 {st1}, {sh}, 20")
    srd(k, sKV, pWS, MB, st1)
    srd(k, sXN, pWS, 2 * MB, WS_XN)
    k(f"s_mov_b32 {sDB[2]}, 256"); k(f"s_mov_b32 {sDB[3]}, 0x20000")
    k(f"v_add_u32 {vl16b}, 4096, {vl16}")
    k(f"v_mov_b32 {vone}, 1")
    k(f"v_cmp_eq_u32 vcc, 0, {vlane}"); k(f"v_mov_b32 {t0}, 0x80000000"); k(f"v_mov_b32 {t1}, 0")
    k(f"v_cndmask_b32 {vsig}, {t0}, {t1}, vcc")
    k(f"s_lshl_b32 {sst[0]}, {srg[0]}, 14")
    for rb in range(1, 4): k(f"s_add_u32 {sst[rb]}, {sst[0]}, {rb*4096}")
    for g in range(2):
        k(f"s_lshl_b32 {sxr[2*g]}, {srg[g]}, 15"); k(f"s_add_u32 {sxr[2*g+1]}, {sxr[2*g]}, 16384")
    k(f"s_mul_i32 {st2}, {sh}, 7"); k(f"s_add_u32 {st2}, {st2}, {si}"); k(f"s_lshl_b32 {st2}, {st2}, 2"); k(f"s_add_u32 {st2}, {st2}, {swave}")
    k(f"s_sub_u32 {st2}, {st2}, 4"); k(f"s_cmp_eq_u32 {si}, 0"); k(f"s_cselect_b32 {st2}, 1000, {st2}")
    k(f"s_cmp_ge_u32 {st2}, 684"); k(f"s_cbranch_scc1 {Lb('pw1')}")
    k(f"s_mov_b32 {sP[2]}, {4*MB}"); k(f"s_mov_b32 {spe2}, {128*2048}"); k(f"s_mov_b32 {spe3}, {128*4096}")
    k(f"s_cmp_ge_u32 {st2}, 512")
    k(f"s_cselect_b32 {sP[0]}, {pE[0]}, {pC[2]}"); k(f"s_cselect_b32 {sP[1]}, {pE[1]}, {pC[3]}")
    k(f"s_cselect_b32 {sP[2]}, {1376*1024}, {sP[2]}"); k(f"s_cselect_b32 {spe2}, 2048, {spe2}"); k(f"s_cselect_b32 {spe3}, {43*4096}, {spe3}")
    k(f"s_cselect_b32 {spd}, {WS_W2P - WS_WOP}, 0"); k(f"s_cselect_b32 {spA}, 12, 11")
    k(f"s_and_b32 {st0}, {st2}, 511"); k(f"s_lshr_b32 {sprow}, {st0}, 2"); k(f"s_and_b32 {st0}, {st0}, 3")
    k(f"s_lshl_b32 {st1}, {sprow}, {spA}"); k(f"s_add_u32 {spd}, {spd}, {st1}")
    k(f"s_mul_i32 {st1}, {st0}, {spe3}"); k(f"s_lshl_b32 {st1}, {st1}, 1"); k(f"s_add_u32 {spd}, {spd}, {st1}")
    k(f"s_lshl_b32 {sprow}, {sprow}, 15"); k(f"s_lshl_b32 {st0}, {st0}, 8"); k(f"s_add_u32 {sprow}, {sprow}, {st0}")
    k(f"s_mov_b32 {spA}, {16*1024}"); k(f"s_mov_b32 {spB}, {4*1024}"); k(f"s_mov_b32 {spe1}, 1024")
    k(f"s_mov_b32 {spstr}, 1024"); k(f"s_mov_b32 {spcs}, 16"); k(f"s_mov_b32 {spxs}, 8")
    k(f"s_mov_b32 {sPD[2]}, {8*MB}")
    k(f"s_branch {Lb('pdone')}")
    k.label(Lb("pw1"))
    k(f"s_mov_b32 {sP[0]}, {pD[0]}"); k(f"s_mov_b32 {sP[1]}, {pD[1]}")
    k(f"s_cmp_ge_u32 {st2}, 860")
    k(f"s_cselect_b32 {sP[2]}, 0, {512*2752}"); k(f"s_cselect_b32 {sPD[2]}, 0, {8*MB}")
    k(f"s_sub_u32 {st0}, {st2}, 684"); k(f"s_and_b32 {sprow}, {st0}, 15"); k(f"s_lshr_b32 {st0}, {st0}, 4")
    k(f"s_lshl_b32 {spd}, {st0}, 17"); k(f"s_lshl_b32 {st1}, {sprow}, 10"); k(f"s_add_u32 {spd}, {spd}, {st1}")
    k(f"s_add_u32 {spd}, {spd}, {WS_W1P - WS_WOP}")
    k(f"s_mul_i32 {sprow}, {sprow}, {32*2752}")
    k(f"s_lshl_b32 {st0}, {st0}, 8"); k(f"s_add_u32 {sprow}, {sprow}, {st0}")
    k(f"s_mov_b32 {spA}, {4*2752}"); k(f"s_mov_b32 {spB}, {8*2752}"); k(f"s_mov_b32 {spe1}, 16384"); k(f"s_mov_b32 {spe2}, 32768"); k(f"s_mov_b32 {spe3}, 65536")
    k(f"s_mov_b32 {spstr}, 2752"); k(f"s_mov_b32 {spcs}, 8"); k(f"s_mov_b32 {spxs}, 32")
    k.label(Lb("pdone"))
    k(f"s_mov_b32 {sP[3]}, 0x20000")
    k(f"s_add_u32 {sPD[0]}, {pWS[0]}, {WS_WOP}"); k(f"s_addc_u32 {sPD[1]}, {pWS[1]}, 0"); k(f"s_mov_b32 {sPD[3]}, 0x20000")
    k(f"v_lshrrev_b32 {t0}, 4, {vlane}"); k(f"v_and_b32 {t1}, 15, {vlane}"); k(f"v_lshlrev_b32 {t1}, 7, {t1}")
    k(f"v_lshl_add_u32 {vm0}, {t0}, 13, {t1}"); k(f"s_lshl_b32 {st0}, {swave}, 5"); k(f"s_add_u32 {st0}, {st0}, 65536")
    k(f"v_add_u32 {vm0}, {st0}, {vm0}")
    k(f"s_add_u32 {st0}, {sldsw}, 65536"); k(f"v_add_u32 {vm1}, {st0}, {vl16}")
    k(f"v_lshrrev_b32 {t0}, 3, {vlane}"); k(f"v_and_b32 {t1}, 7, {vlane}"); k(f"v_lshlrev_b32 {t1}, 4, {t1}")
    k(f"v_lshl_add_u32 {vm2}, {t0}, 8, {t1}")
    k(f"s_lshr_b32 {sxo}, s2, 1"); k(f"s_lshl_b32 {sxo}, {sxo}, 14"); k(f"s_and_b32 {st0}, s2, 1"); k(f"s_lshl_b32 {st0}, {st0}, 7")
    k(f"s_add_u32 {sxo}, {sxo}, {st0}"); k(f"s_lshl_b32 {st0}, {swave}, 12"); k(f"s_add_u32 {sxo}, {sxo}, {st0}")
    if fine: k.ext(stamp("setup"))
    emit_dma(cdma(0)[6 * NC0:])
    if fine: k.ext(stamp("ic0"))
    for tm, L in touches:
        if tm < 0: k.ext(L)
    mark_ln = len(k.L)
    k(f"s_cmp_eq_u32 s2, 0\ns_cselect_b32 {st0}, 0, 0x80000000"); k(f"v_or_b32 {t0}, {st0}, {vsig}")
    mark_ln = len(k.L)
    k("WAITVM x")
    k(signal(sDB, 0, t0))
    if fine: k.ext(stamp("gotx"))
    for i in range(2):
        for j in range(4):
            k(f"v_lshlrev_b32 {XF[i][2*j]}, 16, {XR[i][j]}"); k(f"v_and_b32 {XF[i][2*j+1]}, 0xffff0000, {XR[i][j]}")
        k(f"v_add_f32 {vs[i]}, {XF[i][0]}, {XF[i][1]}")
        for j in range(2, 8): k(f"v_add_f32 {vs[i]}, {vs[i]}, {XF[i][j]}")
    allreduce(k, [vs[0], vs[1]], [vt_[0], vt_[1]])
    for i in range(2):
        k(f"v_mul_f32 {vs[i]}, {f2h(1/512)}, {vs[i]}")
        for j in range(8): k(f"v_sub_f32 {XF[i][j]}, {XF[i][j]}, {vs[i]}")
        k(f"v_mul_f32 {vs[i]}, {XF[i][0]}, {XF[i][0]}")
        for j in range(1, 8): k(f"v_fmac_f32 {vs[i]}, {XF[i][j]}, {XF[i][j]}")
    allreduce(k, [vs[0], vs[1]], [vt_[0], vt_[1]])
    for i in range(2):
        k(f"v_mov_b32 {vt_[i]}, {f2h(1e-5)}"); k(f"v_fmac_f32 {vt_[i]}, {f2h(1/512)}, {vs[i]}"); k(f"v_rsq_f32 {vs[i]}, {vt_[i]}")
    k("s_nop 0")
    for i in range(2):
        k(f"v_mul_f32 {vs[i]}, {f2h(QSCALE)}, {vs[i]}")
        for j in range(8): k(f"v_mul_f32 {XF[i][j]}, {XF[i][j]}, {vs[i]}")
        for j in range(4): k(f"v_cvt_pk_bf16_f32 {XR[i][j]}, {XF[i][2*j]}, {XF[i][2*j+1]}")
        k(f"ds_write_b128 {vm0}, {XR[i]} offset:{16*i}")
    body = k.L[mark_ln:]; del k.L[mark_ln:]
    w1_ = wd(1); step = len(body) // 9
    for n, x in enumerate(body):
        k(x)
        if n % step == step - 3:
            while w1_ and not ismem(w1_[0]): k(w1_.pop(0))
        if n % step == step - 1 and w1_: k(w1_.pop(0))
    assert not w1_
    k.ext(stamp("ln"))
    k("WAITVM c0q3 lgkm=0")
    if fine: k.ext(stamp("gotc"))
    cr = creads(0)
    k.ext(cr[:8]); k("s_barrier"); k("s_waitcnt lgkmcnt(4)"); k.ext(cr[8:]); k("s_waitcnt lgkmcnt(4)")
    k.ext(trreads(0, 0, WF, vtr, vtrb, 3))
    for j in range(2): k(f"ds_read_b128 {XF[0].sub(4*j,4)}, {vm1} offset:{1024*j}")
    xnst = [f"buffer_store_dwordx4 {XF[0].sub(4*j,4)}, {vm2}, {sXN}, {sxo} offen offset:{2048*j} {SC} ; tag=z" for j in range(2)]
    k(f"s_cmp_eq_u32 {swave}, 0"); k(f"s_cselect_b32 {st0}, 0, 0x80000000"); k(f"v_or_b32 {vm0}, {st0}, {vsig}")
    k(f"s_lshr_b32 {st2}, s2, 4"); k(f"s_lshl_b32 {st2}, {st2}, 11")
    k(f"s_lshl_b32 {st0}, {si}, 1"); k(f"s_sub_u32 {st0}, 15, {st0}"); k(f"v_and_b32 {t0}, 1, {vlane}")
    k(f"v_mul_u32_u24 {t0}, {st0}, {t0}"); k(f"v_add_u32 {t0}, {si}, {t0}"); k(f"v_mov_b32 {vinf}, 0")
    k("s_waitcnt lgkmcnt(0)")
    k(f"v_lshlrev_b32 {vm1}, 11, {t0}")
    k.ext(stamp("go"))

    S2 = Alloc('s', sC.base, sWq.base)
    pool = [r.sub(2 * i, 2) for r in (sDB, scr, sst, pA, pB, pC, pD, pE) for i in range(r.n // 2)]
    assert all(p.base % 2 == 0 for p in pool)
    S3 = lambda n: pool.pop(0)
    skv = S2(); scnt = S2(); snS = S2(); sflag = S2(); sctx = S2(2, 1); mC = S2(2); sCT = S2(4)
    mA = [S3(2) for _ in range(4)]; mB = [S3(2) for _ in range(4)]; mT = [S3(2) for _ in range(4)]; mU = S3(2); mX = S3(2)
    SB = [WFr, PB.sub(0, 32)]; NM = PB.sub(32, 16); MK = PB.sub(48, 16); TMP = X16
    vra, vrc, vthr = vtr, vm2, vm0
    Q = a(0, 64); FK = a(64, 32); FV = a(128, 32); LA = a(96, 16); ONES = a(112, 4)
    O = lambda grp, db, qb: ACC.sub(grp * 64 + (db * 2 + qb) * 4, 4)
    Sq = lambda par, grp, qb: SB[par].sub((grp * 2 + qb) * 8, 8)
    Qf = lambda grp, qb, ks: Q.sub(((grp * 2 + qb) * 4 + ks) * 4, 4)
    T = lambda cb, rb: ACC.sub((cb * 4 + rb) * 4, 4)
    def xloads(ch):
        L = []
        for rb in range(4):
            L.append(f"s_add_u32 {ssc}, {sxr[rb]}, {ch*4096}")
            L += [f"buffer_load_dwordx4 {R.sub(((4*ch+ks)*4+rb)*4,4)}, {vl16}, {sXN}, {ssc} offen offset:{ks*1024} {SC} ; tag=x{ch}" for ks in range(4)]
        return L
    def kvdma(j, tag):
        L = []
        for p in range(8):
            if p % 4 == 0: L.append(f"s_add_u32 m0, {sldsw}, {(j%4)*32768 + (p//4)*4096}")
            L.append(f"buffer_load_dwordx4 {vl16 if p < 4 else vl16b}, {sKV}, {scnt if j == 0 else skv} offen offset:{(p%4)*1024} {SC} lds ; tag={tag}")
        L.append(f"s_add_u32 {skv}, {skv}, 16384")
        return L
    presetup = []
    def prep_dma():
        presetup.extend([f"v_lshrrev_b32 {t0}, 4, {vlane}", f"v_bfe_u32 {t1}, {vlane}, 2, 2", f"v_lshlrev_b32 {t1}, 8, {t1}", f"v_lshl_add_u32 {t1}, {t0}, 11, {t1}",
              f"v_and_b32 {t2}, 3, {vlane}", f"v_mad_u32_u24 {t1}, {t2}, {spcs}, {t1}", f"v_add_u32 {vcr[0]}, {sldsc}, {t1}", f"v_add_u32 {vcr[1]}, {spxs}, {vcr[0]}"])
        L = [f"v_lshrrev_b32 {t0}, 4, {vlane}", f"v_and_b32 {t1}, 15, {vlane}", f"v_lshlrev_b32 {t1}, 4, {t1}",
             f"v_mad_u32_u24 {vco[0]}, {t0}, {spstr}, {t1}"]
        for p in range(8):
            L.append(f"s_add_u32 m0, {sldsc}, {p*1024}")
            if p % 2: L.append(f"s_add_u32 {sxo}, {sprow}, {spA}")
            elif p: L.append(f"s_add_u32 {sprow}, {sprow}, {spB}")
            L.append(f"buffer_load_dwordx4 {vco[0]}, {sP}, {sxo if p % 2 else sprow} offen lds ; tag=pp")
        return L
    def att_setup():
        L = Kern("x")
        srd(L, sCT, pWS, 16 * MB, WS_CTX)
        L(f"v_mov_b32 {vinf}, {NEGINF}")
        L(f"s_or_b32 {st0}, {sldsw}, 0x10000"); L(f"v_or_b32 {vrc}, {st0}, {vl16}")
        L(f"s_and_b32 {st0}, {swave}, 1"); L(f"s_lshl_b32 {skv}, {st0}, 13")
        L(f"s_cmp_ge_u32 {swave}, 2"); L(f"s_cselect_b32 {st1}, {512*1024-16384}, 0"); L(f"s_add_u32 {skv}, {skv}, {st1}"); L(f"s_add_u32 {skv}, {skv}, 8192")
        L(f"s_cmp_eq_u32 {swave}, 2"); L(f"s_cselect_b32 {scnt}, 0, {skv}")
        for g in range(2):
            L(f"s_lshr_b32 {st1}, {srg[g]}, 2"); L(f"s_lshl_b32 {sctx[g]}, {st1}, 20")
            L(f"s_lshl_b32 {st1}, {sh}, 15"); L(f"s_add_u32 {sctx[g]}, {sctx[g]}, {st1}")
            L(f"s_lshl_b32 {st1}, {swave}, 11"); L(f"s_add_u32 {sctx[g]}, {sctx[g]}, {st1}")
        L(f"s_lshr_b32 {snS}, {srg[0]}, 1"); L(f"s_add_u32 {snS}, {snS}, 1")
        L(f"s_mov_b32 {sflag}, 0")
        L(f"v_and_b32 {t0}, 15, {vlane}"); L(f"v_lshrrev_b32 {t1}, 4, {vlane}"); L(f"v_lshlrev_b32 {t1}, 2, {t1}"); L(f"v_sub_u32 {t0}, {t0}, {t1}")
        for r in range(4): L(f"v_cmp_le_i32 {mT[r]}, {r}, {t0}")
        L(f"s_cmp_eq_u32 {st0}, 0"); L(f"s_cselect_b64 {mC}, 0, -1")
        for r in range(4):
            L(f"s_or_b64 {mA[r]}, {mT[r]}, {mC}"); L(f"s_and_b64 {mB[r]}, {mT[r]}, {mC}")
        L(f"v_mov_b32 {t0}, 0x3f803f80"); L(f"v_mov_b32 {t1}, 0")
        for j in range(4): L(f"v_accvgpr_write_b32 {ONES[j]}, {t0}")
        for r in range(4): L(f"v_cndmask_b32 {MK[r]}, {vinf}, {t1}, {mA[r]}")
        L(f"v_mov_b32 {vthr}, {f2h(thr)}")
        return L.L
    streams = []
    def add_ops(L, rel, dl, dma=False):
        pre = []; n = 0; out = []
        for x in L:
            if x.startswith("buffer_") or x.startswith("global_"):
                out.append(dict(rel=rel[n] * 16, dl=dl[n] * 16, pre=pre, op=x, post=[], dma=dma)); pre = []; n += 1
            else: pre.append(x)
        assert n == len(rel) == len(dl), (n, len(rel))
        out[-1]["post"] = pre
        streams.append(out)
    lin = lambda t0_, t1_, n: [t0_ + (t1_ - t0_) * i / n for i in range(n)]
    rep = lambda L, n: [x for x in L for _ in range(n)]
    PBf = lambda n: PB.sub(4 * n, 4)
    PA = a(160, 32)
    kst = [f"buffer_store_dwordx4 {PBf(s*4+rb)}, {vl16}, {sKV}, {sst[rb]} offen offset:{s*1024} {STF} ; tag=kst" for s in range(4) for rb in range(4)]
    vst = [f"buffer_store_dwordx4 {PBf(cb*2+t)}, {vl16}, {sKV}, {sst[2*t+cb//4]} offen offset:{(cb%4)*1024} {STF} ; tag=vst" for cb in range(8) for t in range(2)]
    pst = [f"s_add_u32 {sprow}, {spd}, {spe3}"]
    for x in range(8):
        pst.append(f"buffer_store_dwordx4 {PA.sub(4*x,4)}, {vl16}, {sPD}, {spA if x % 2 else spd} offen {STF} ; tag=pst")
        if x % 2 == 0: pst.append(f"s_add_u32 {spA}, {spd}, {spe1}")
        elif x % 4 == 1: pst.append(f"s_add_u32 {spd}, {spd}, {spe2}")
        elif x == 3: pst.append(f"s_mov_b32 {spd}, {sprow}")
    sfl1 = st2
    LC = opt.get("lc", 5.0); SCST = opt.get("sc", 11.0); SMIN = opt.get("smin", 14)
    add_ops(cdma(1) + cdma(2) + cdma(3), rep([0, 0, 0, 0, 5, 6, 7, 8, 13, 14, 15, 16], 4), rep([0, 1, 2, 3, 7, 8, 9, 10, 15, 16, 17, 18], 4), True)
    WL = opt.get("wl", 9)
    add_ops(sum((wd(st) for st in range(2, 12)), []), rep([max(0, 8 * st - 25) if st > 2 else 0 for st in range(3, 13)], 8),
            rep([4, 11, 19], 8) + sum((lin(8 * st - 1 - WL - 6, 8 * st - 1 - WL + 2, 8) for st in range(5, 12)), []), True)
    add_ops(xnst, [0, 0], [10.5, 10.6])
    add_ops([poll_issue("pz", vinf, sDB, 0)], [13], [13])
    add_ops(poll_check("pz", vinf, sDB, 0, 4) + [signal(sFL, st2, vm0) + " offset:24"], [23.1], [0])
    add_ops(kst, [max(27.2 + 2 * (n // 4), opt.get("k0", 27)) for n in range(16)], lin(28, opt.get("k1", 46), 16))
    for tm, L in touches:
        if tm >= 0: add_ops(L, [tm], [tm])
    add_ops([poll_issue("p0", vm1, sFL, 0, 24)], [33], [33])
    add_ops(sum((xloads(c) for c in range(4)), []), rep([40, 48, 56, 64], 16),
            lin(42, 50, 16) + lin(50, 58, 16) + lin(58, 74, 16) + lin(opt.get("x3", 74), 83, 16))
    add_ops([f"s_add_u32 {sst[i]}, {sst[i]}, {512*1024}" for i in range(4)] + vst, [58.2 + n // 2 for n in range(16)], lin(58, opt.get("v1", 73), 16))
    add_ops(["WAITVM vst", f"s_lshl_b32 {sfl1}, {sh}, 10", f"s_add_u32 {sfl1}, {sfl1}, 12", signal(sFL, sfl1)], [opt.get("ts1", 82)], [0])
    add_ops(prep_dma(), [opt.get("pp0", 24.3)] * 8, [85] * 8, True)
    tp1 = opt.get("tp1", 87.5)
    add_ops([f"v_mov_b32 {vm1}, 0", poll_issue("p1", vm1, sFL, sfl1)], [tp1], [0])
    add_ops(poll_check("p1", vm1, sFL, sfl1, 32) + kvdma(0, "kv0") + kvdma(1, "kv1"), [tp1 + 2.5] * 16, [90] * 16, True)
    slots = {}; Tp = 1.0; owner = None; lastst = -99
    while any(streams):
        cand = []
        for sm in streams:
            if not sm: continue
            o = sm[0]
            if o["dma"] and owner is not None and owner is not sm: continue
            r = o["rel"]
            if "store_dwordx4" in o["op"]: r = max(r, lastst + SMIN)
            cand.append((max(r, Tp), o["dl"], id(sm), sm))
        now = min(c[0] for c in cand)
        sm = min((c for c in cand if c[0] <= now + 1), key=lambda c: c[1])[3]
        o = sm.pop(0)
        g = int(math.ceil(max(now, o["rel"])))
        while g % 16 == 15 or g in slots: g += 1
        slots[g] = o
        big = "dwordx4" in o["op"]
        st_ = "store" in o["op"]
        Tp = max(now, g - 1) + ((SCST if st_ else LC) if big else (2 if "atomic" in o["op"] or "tag=p" in o["op"] else 8))
        if big and st_: lastst = g
        if o["dma"]: owner = sm if sm and not any("m0" in x for x in sm[0]["pre"]) else None
    assert max(slots) < 96 * 16 - 2, max(slots)
    lastv = max(79 * 16, max(g for g in slots if "tag=vst" in slots[g]["op"])); firstkv = min(g for g in slots if "tag=kv0" in slots[g]["op"])
    assert lastv < opt.get("ts1", 82) * 16 - 8
    if opt.get("showsched"):
        for g in sorted(slots):
            m_ = re.search(r"tag=(\S+)", slots[g]["op"]); print(f"{g/16:.2f}:{m_.group(1) if m_ else '-'}", end=" ")
        print()
    drainq = []; auxq = []; carry = []; npk = [0]
    def drain_q(ta, tb, dst):
        p = PB.sub(4 * (npk[0] % 4), 4); npk[0] += 1
        return pack(p, ta, tb) + [f"v_accvgpr_write_b32 {dst[j]}, {p[j]}" for j in range(4)]
    k(trreads(0, 1, WF, vtr, vtrb, 3)[0])
    order = sorted(slots)
    k.ext(slots[order[0]]["pre"]); slots[order[0]]["pre"] = []
    allG = []
    for st in range(12):
        for cb in range(8):
            t = st * 8 + cb
            G = Gaps(cb_mfmas(st, cb, ACC, WF, R, swap=4 <= st < 8))
            for g in range(16):
                if 16 * t + g in slots: G.put(g, slots[16 * t + g]["op"])
            free = [g for g in range(15) if not G.g[g]]
            extra = []; w_ = None
            if st < 3 and cb >= 4:
                q_ = cb - 4; w_ = f"WAITVM c{st+1}q{q_}"; extra = creads(st + 1)[4 * q_:4 * q_ + 4]
            if st == 11 and 3 <= cb < 7:
                if cb == 3: w_ = "WAITVM pp"
                extra = [f"ds_read_b64_tr_b16 {PA.sub(4*x_+2*hf,2)}, {vcr[x_%2]} offset:{hf*1024 + 64*(x_//2)}" for x_ in (2 * cb - 6, 2 * cb - 5) for hf in range(2)]
            pos = free[:8]
            if extra: pos = [free[0], free[0], free[1], free[1]] + free[2:6]
            if t < 95:
                for g, x in zip(pos, trreads((t + 1) // 8, (t + 1) % 8, WF, vtr, vtrb, 3)[1:]): G.put(g, x)
            if w_: G.put(pos[-1], w_)
            for g, x in zip(free[6:10], extra): G.put(g, x)
            if t < 94: G.put(15, trreads((t + 2) // 8, (t + 2) % 8, WF, vtr, vtrb, 3)[0])
            if t < 95:
                if cb == 7 and 7 <= st <= 10: G.put(15, f"WAITVM x{st-7} lgkm=0")
                else: G.put(15, "s_waitcnt lgkmcnt(0)")
            allG.append(G)
    prev = 0
    def place(L, lo, hi):
        g = lo
        for x in L:
            while g < hi and allG[g // 16].cost(g % 16) + icost(x) > 8: g += 1
            allG[g // 16].put(g % 16, x)
    for n, gpos in enumerate(order):
        L = (slots[order[n - 1]]["post"] if n else []) + slots[gpos]["pre"]
        lo = prev
        if slots[gpos]["pre"] and slots[gpos]["pre"][0].startswith("WAITVM"): lo = max(lo, gpos - 8)
        place(L, lo, gpos - 1)
        prev = gpos
    place(slots[order[-1]]["post"], prev, 96 * 16 - 1)
    for st in range(12):
        if st == 5: auxq += presetup
        for cb in range(8):
            G = allG[st * 8 + cb]
            if cb == 7 and st < 11:
                tags = f"w{st+1}" + (",z" if st == 2 else "")
                k(f"WAITVM {tags}"); k("s_barrier")
            if st * 8 + cb == lastv // 16 + 1: auxq += glue(att_setup())
            if st * 8 + cb == firstkv // 16 - 1: assert not auxq
            if st == 4 and cb == 6: auxq += poll_check("p0", vm1, sFL, 0, 16, 24)
            sched(G, auxq, 0, 14)
            sched(G, drainq, 1, 14)
            G.emit(k)
            if st == 3 and cb % 2 == 1:
                for rb in range(4): drainq += pack(PBf((cb // 2) * 4 + rb), T(cb - 1, rb), T(cb, rb))
            if st == 7:
                for t in range(2): drainq += pack(PBf(cb * 2 + t), T(cb, 2 * t), T(cb, 2 * t + 1))
            if st == 11 and cb % 2 == 1:
                for rb in range(4): drainq += drain_q(T(cb - 1, rb), T(cb, rb), Qf(rb // 2, rb % 2, cb // 2))
        k.ext(stamp(f"st{st}"))
    seen = {}
    for n, ln in enumerate(k.L):
        if ln.startswith("v_cvt_pk") or ln.startswith("ds_read_b64_tr"): seen[ln.split()[1].rstrip(",")] = n
        if "tag=kst" in ln or ("tag=vst" in ln and str(sKV) in ln):
            b = int(re.search(r"v\[(\d+):", ln).group(1))
            assert all(seen.pop(f"v{b+j}", None) is not None for j in range(4)), ln

    OFF = {"K0": 0, "K1": 8192, "V0": 16384, "V1": 24576}
    def rd(dst, f, src, va): return f"ds_read_b128 {dst.sub(4*f,4)}, {va} offset:{OFF[src] + f*1024}"
    def ph_pv(groups, par, first=False, lfirst=False):
        mf = []; lu = {}; fu = {}
        def lsum():
            for g in groups:
                for qb in range(2):
                    l = LA.sub((g * 2 + qb) * 4, 4)
                    mf.append(f"{MF} {l}, {ONES}, {Sq(par,g,qb).sub(0,4)}, {'0' if first else l}")
        if lfirst: lsum()
        for db in range(8):
            for g in groups:
                for qb in range(2):
                    fu.setdefault(db, len(mf)); lu[db] = len(mf)
                    mf.append(f"{MF} {O(g,db,qb)}, {FV.sub(4*db,4)}, {Sq(par,g,qb).sub(0,4)}, {'0' if first else O(g,db,qb)}")
        if not lfirst: lsum()
        return mf, fu, lu, FV
    def ph_qk(groups, par, cfun):
        mf = []; lu = {}; fu = {}
        for kb in range(2):
            for g in groups:
                for qb in range(2):
                    d = Sq(par, g, qb).sub(4 * kb, 4)
                    for ks in range(4):
                        f = 4 * kb + ks
                        fu.setdefault(f, len(mf)); lu[f] = len(mf)
                        mf.append(f"{MF} {d}, {FK.sub(4*f,4)}, {Qf(g,qb,ks)}, {cfun(g,qb,kb) if ks == 0 else d}")
        return mf, fu, lu, FK
    cplain = lambda g, qb, kb: NM.sub((g * 2 + qb) * 4, 4)
    def maskops(which, mtri, mc, base, full=True):
        L = []; tiles = {}
        for kb in range(2):
            for qb in range(2):
                t = MK.sub((qb * 2 + kb) * 4, 4); tiles[(qb, kb)] = t
                if kb < qb and which == "a" and not full:
                    tiles[(qb, kb)] = None; continue
                for r in range(4):
                    if kb == qb: m = mtri[r]
                    elif kb > qb: m = mc if which == "a" else "none"
                    else: m = None if which == "a" else mc
                    if m is None: L.append(f"v_mov_b32 {t[r]}, {base(qb, r)}")
                    elif isinstance(m, str): L.append(f"v_mov_b32 {t[r]}, {vinf}")
                    else: L.append(f"v_cndmask_b32 {t[r]}, {vinf}, {base(qb, r)}, {m}")
        return L, tiles
    def waits_last(G):
        for g in range(G.n):
            w = [y for y in G.g[g] if y.startswith("s_waitcnt")]
            G.g[g] = [y for y in G.g[g] if not y.startswith("s_waitcnt")] + w
    def build(phases, va):
        mf = []; start = []
        for p in phases:
            start.append(len(mf)); mf += p[0]
        start.append(len(mf))
        G = Gaps(mf)
        for pi, (m, fu, lu, regs, nxt, w) in enumerate(phases):
            if nxt:
                for f in range(8): G.put(start[pi] + lu[f], rd(regs, f, nxt, va))
            if w == "split":
                G.put(start[pi] + fu[0] - 1, "s_waitcnt lgkmcnt(4)"); G.put(start[pi] + fu[4] - 1, "s_waitcnt lgkmcnt(0)")
            elif w is not None: G.put(start[pi] - 1, f"s_waitcnt lgkmcnt({w})")
        return G, start
    def softmax(G, lo, hi, par, groups, pre=None):
        els = [(g, qb, kb, r) for kb in range(2) for g in groups for qb in range(2) for r in range(4)]
        n = len(els)
        free = [x for x in range(lo, hi) if G.cost(x) == 0]
        if len(free) >= n: pos = [free[(i * len(free)) // n] for i in range(n)]
        else:
            cand = sorted((G.cost(x) + 8 * rep, x) for x in range(lo, hi) for rep in range(2))
            pos = sorted(x for _, x in cand[:n])
        gcv = lo
        for (g, qb, kb, r), p in zip(els, pos):
            s = Sq(par, g, qb)
            G.put(p, f"v_exp_f32 {s[4*kb+r]}, {s[4*kb+r]}")
        for (g, qb, kb, r), p in zip(els, pos):
            if r % 2 == 1:
                s = Sq(par, g, qb); c = 2 * kb + r // 2
                lo_ = max(gcv, p + 1)
                gcv = G.add(f"v_cvt_pk_bf16_f32 {s[c]}, {s[4*kb+r-1]}, {s[4*kb+r]}", lo_, min(hi, lo_ + 6))
    rl = TMP.sub(0, 2)
    def recip(g):
        return [f"v_accvgpr_read_b32 {rl[qb]}, {LA[(g*2+qb)*4]}" for qb in range(2)] + [
            f"v_add_f32 {t1}, {rl[0]}, {rl[1]}", f"v_cmp_nlt_f32 vcc, {t1}, {vthr}", f"v_rcp_f32 {rl[0]}, {rl[0]}", f"v_rcp_f32 {rl[1]}, {rl[1]}"]
    def pair(pvA, qkA, smA, pvB, qkB, smB, dma=True, mask=None, loop=None, endwait=8, extra=(), prep=False, wpre=(),
             first=False, static=None, lastk=False, fin=None):
        va = static[0] if static else vra
        ph = []; pm = []
        def cf(which):
            if mask is None: return cplain
            L, tiles = maskops(which, mA if which == "a" else mB, mC, lambda qb, r: NM[(mask * 2 + qb) * 4 + r], full=False)
            pm.append((len(ph) - 1, L))
            return lambda g, qb, kb: (tiles[(qb, kb)] or cplain(g, qb, kb)) if g == mask else cplain(g, qb, kb)
        ph.append(ph_pv(pvA, 0, first) + ("V0", None))
        if qkA: c = cf("a"); ph.append(ph_qk(qkA, 0, c) + ("K0", 8))
        nb = len(ph)
        if qkB:
            ph.append(ph_pv(pvB, 1) + ("V1", 8))
            c = cf("b"); ph.append(ph_qk(qkB, 1, c) + (None if lastk else "K1", 8))
        else: ph.append(ph_pv(pvB, 1, lfirst=True) + (None, "split"))
        G, start = build(ph, va)
        n = G.n
        G.put(0, "s_barrier")
        if not static: G.put(0, f"v_xor_b32 {vra}, m0, {vrc}")
        single = len(pvA) == 1
        def putmem(x, g, own):
            if own:
                while g < n - 2 and G.cost(g) != 0: g += 1
            else:
                while g < n - 2 and not (G.cost(g) == 4 and G.g[g][0].startswith("ds_read")): g += 1
            G.put(g, x); return g
        later = []
        d0 = 0
        if prep:
            g_ = 0; c = 0
            for x in pst:
                if ismem(x): g_ = putmem(x, 2 + c * (start[nb] - 6) // 8, True); c += 1
                else: G.put(g_ if c else 1, x)
            d0 = start[nb]
        mem = list(wpre); g_ = 0; c = 0
        for x in mem:
            if ismem(x): g_ = 1 + 4 * c; G.put(g_, x); c += 1
            else: G.put(g_ + 2, x)
        if dma:
            D = [f"buffer_load_dwordx4 {vl16 if p < 4 else vl16b}, {sKV}, {skv} offen offset:{(p%4)*1024} {SC} lds" for p in range(8)]
            pos = []; lo = 2 if static else 1
            for p in range(8):
                g = putmem(D[p], max(lo, d0 + 1 + (p * (n - d0 - 6)) // 8), not single)
                pos.append(g); lo = g + (2 if p == 3 else 1)
            if static:
                G.put(0, f"s_mov_b32 m0, {static[1]}")
                later = [(f"s_add_u32 m0, {static[1]}, 4096", pos[3], pos[4] - 1), (f"s_add_u32 {skv}, {skv}, 16384", pos[7], n - 1)]
            else:
                later = [(f"s_add_u32 m0, m0, 4096", pos[3], pos[4] - 1),
                         (f"s_add_u32 {skv}, {skv}, 16384", pos[7], n - 1), (f"s_add_u32 m0, m0, {32768-4096}", pos[7], n - 1)]
        elif fin is None or qkA: later = [(f"s_add_u32 m0, m0, 32768", 1, n - 1)]
        if smA: softmax(G, 1, start[nb] - 2, 1, smA)
        if smB: softmax(G, start[nb], n - 2, 0, smB)
        for (pi, L) in pm: G.chain(L, start[pi] + 1, start[pi + 1] - 3)
        if fin is not None: G.chain(recip(fin), (start[nb + 1] if qkB else start[nb] + 2) + 4, n - 1)
        gl = 0
        for x, lo, hi in later: gl = G.add(x, lo, hi)
        if later and not static: gl = G.add("s_and_b32 m0, m0, 0x1ffff", gl, n - 1)
        if loop: G.add(f"s_sub_u32 {scnt}, {scnt}, 1", gl, n - 2)
        waits_last(G)
        k.ext(extra); G.emit(k)
        if endwait is not None: k(f"s_waitcnt vmcnt({endwait}) lgkmcnt({0 if lastk else 8})")
        if loop: k(f"s_cbranch_scc0 {loop}")
    def epilogue(kk, g, lsrc=None):
        if lsrc is None:
            kk(f"s_cmp_lg_u64 vcc, 0"); kk(f"s_cselect_b32 {st0}, {1 << g}, 0"); kk(f"s_or_b32 {sflag}, {sflag}, {st0}")
        else:
            for qb in range(2): kk(f"v_rcp_f32 {rl[qb]}, {lsrc[qb]}")
        n = 0
        for s in range(4):
            kk(f"s_add_u32 {st1}, {sctx[g]}, {s*8192}")
            for qb in range(2):
                p = TMP.sub(4 + 4 * (n % 3), 4); n += 1
                sel = "op_sel_hi:[1,0]" if qb == 0 else "op_sel:[0,1]"
                for db in (2 * s, 2 * s + 1):
                    for r in (0, 2): kk(f"v_pk_mul_f32 {O(g,db,qb).sub(r,2)}, {O(g,db,qb).sub(r,2)}, {rl} {sel}")
                kk.ext(pack(p, O(g, 2 * s, qb), O(g, 2 * s + 1, qb)))
                kk(f"buffer_store_dwordx4 {p}, {vl16}, {sCT}, {st1} offen offset:{qb*1024} {SC} ; tag=cst")
    k("WAITVM kv0"); k("s_barrier")
    for f in range(8): k(rd(FK, f, "V0", vl16))
    k.ext(drainq); drainq = []
    def prologue(masked):
        mx = [TMP[j] for j in range(4)]; mt = [TMP[4 + j] for j in range(4)]
        nmb = lambda qb, r: NM[qb * 4 + r]
        La, ta = maskops("a", mA, mC, nmb, full=False); Lb_, tb = maskops("b", mB, mC, nmb)
        def c0(g, qb, kb):
            if kb == 0: return MK.sub(0, 4) if masked and g == 0 and qb == 0 else "0"
            return ta[(qb, kb)] if masked and g == 0 else cplain(g, qb, kb)
        c1 = lambda g, qb, kb: tb[(qb, kb)] if masked and g == 0 else cplain(g, qb, kb)
        G, start = build([ph_qk([0, 1], 0, c0) + ("K0", None), ph_qk([0, 1], 1, c1) + ("K1", "split")], vl16)
        G.g[47] = [y.replace("lgkmcnt(0)", "lgkmcnt(4)") for y in G.g[47]]
        for f in range(8): G.put(f, rd(FV, f, "V1", vl16))
        G.put(15, "s_waitcnt lgkmcnt(12)")
        d2 = kvdma(2, "kv2"); g = 0
        for x in d2:
            if ismem(x): g += 1; G.put(g, x); g += 3
            else: G.put(g, x)
        for j in range(4):
            s = SB[0].sub(8 * j, 4); g = 4 * j + 6
            G.put(g, f"v_max3_f32 {mx[j]}, {s[0]}, {s[1]}, {s[2]}"); G.put(g, f"v_max_f32 {mx[j]}, {mx[j]}, {s[3]}")
            G.put(g + 1, f"v_mov_b32 {mt[j]}, {mx[j]}")
            G.put(g + 3, f"v_permlane16_swap_b32 {mx[j]}, {mt[j]}"); G.put(g + 3, f"v_max_f32 {mx[j]}, {mx[j]}, {mt[j]}")
            G.put(g + 4, f"v_mov_b32 {mt[j]}, {mx[j]}")
            G.put(g + 6, f"v_permlane32_swap_b32 {mx[j]}, {mt[j]}"); G.put(g + 6, f"v_max_f32 {mx[j]}, {mx[j]}, {mt[j]}")
            for r in range(4): G.put(g + 7 + r // 2, f"v_sub_f32 {NM[4*j+r]}, 0, {mx[j]}")
            if masked and j < 2:
                for x in La[4 + 4 * j:8 + 4 * j]: G.put(g + 8, x)
        G.chain([f"v_sub_f32 {SB[0][8*j+r]}, {SB[0][8*j+r]}, {mx[j]}" for j in range(4) for r in range(4)], 25, 31)
        if masked: G.chain(Lb_, 26, 30)
        softmax(G, 32, 63, 0, [0, 1])
        waits_last(G)
        k("s_waitcnt lgkmcnt(4)")
        G.emit(k)
        k(f"s_add_u32 m0, {sldsw}, {3*32768}")
        k("s_waitcnt vmcnt(8) lgkmcnt(8)")
    k("VMRESET")
    D = [0, 1]
    pa = poll_issue("pa", vm1, sFL, 0, 16)
    pax = [f"v_and_b32 {vm1}, 31, {vlane}", f"v_lshlrev_b32 {vm1}, 10, {vm1}", pa]
    k(f"s_cmp_eq_u32 {snS}, 1"); k(f"s_cbranch_scc1 {Lb('P1')}")
    main = k.L; k.L = []
    k.label(Lb("P1"))
    prologue(True)
    pair(D, [1], D, D, [1], [1], endwait=None, extra=pax, first=True, fin=0)
    k(f"s_branch {Lb('TE')}")
    k.label(Lb("DM0"))
    pair(D, D, D, D, D, D, mask=0, first=True)
    k(f"s_branch {Lb('T')}")
    tail.L += k.L; k.L = main
    prologue(False)
    k.ext(stamp("pro"))
    k(f"s_cmp_eq_u32 {snS}, 2"); k(f"s_cbranch_scc1 {Lb('DM0')}")
    pair(D, D, D, D, D, D, prep=True, first=True)
    k(signal(sFL, sfl1) + " offset:4")
    if opt.get("cyc"): k.ext(stamp("d1"))
    k(f"s_sub_u32 {scnt}, {snS}, 4"); k(f"s_cbranch_scc1 {Lb('DM')}")
    k(".p2align 6"); k.label(Lb("D"))
    pair(D, D, D, D, D, D, loop=Lb("D"))
    k.label(Lb("DM"))
    if opt.get("cyc"): k.ext(stamp("dm"))
    pair(D, D, D, D, D, D, mask=0)
    k.label(Lb("T"))
    if opt.get("cyc"): k.ext(stamp("t"))
    sW = sXN; sow = ssc
    Wd = lambda ks, cb: a(((ks + 20) % 32) * 8 + cb * 4, 4)
    def wl(s): return [f"buffer_load_dwordx4 {Wd(2*s+c//2,c%2)}, {vl16}, {sW}, {sow} offen offset:{c*1024} {SC} ; tag=dw{s}" for c in range(4)] + [f"s_add_u32 {sow}, {sow}, 4096"]
    pair(D, [1], D, D, [1], [1], endwait=None, extra=pax, fin=0)
    k.label(Lb("TE"))
    epilogue(k, 0)
    srd(k, sW, pWS, 4 * MB, WS_WOP)
    k(f"s_and_b32 {st0}, {si}, 3"); k(f"s_lshl_b32 {st0}, {st0}, 2"); k(f"s_add_u32 {st0}, {st0}, {swave}"); k(f"s_lshl_b32 {sow}, {st0}, 18")
    DM_ = opt.get("dmap", 1)
    k(f"s_bfe_u32 {st0}, s2, {'0x20001' if DM_ else '0x20005'}"); k(f"s_lshl_b32 {st0}, {st0}, 16"); k(f"s_add_u32 {sow}, {sow}, {st0}")
    SM0 = [mT[0][0], mT[0][1], mT[1][0], mT[1][1]]; VA = [SB[0][j] for j in range(4)]
    for j in range(4):
        if j == 0: k(f"s_mov_b32 {SM0[0]}, m0")
        else: k(f"s_add_u32 {SM0[j]}, {SM0[j-1]}, 32768"); k(f"s_and_b32 {SM0[j]}, {SM0[j]}, 0x1ffff")
        k(f"v_xor_b32 {VA[j]}, {SM0[j]}, {vrc}")
    k("s_waitcnt vmcnt(16) lgkmcnt(8)")
    k.ext(stamp("sdone"))
    k(f"s_sub_u32 {scnt}, 6, {si}"); k(f"s_cbranch_scc1 {Lb('SM')}")
    k(".p2align 6"); k.label(Lb("S"))
    for j in range(4):
        pair([1], [1], [1], [1], [1], [1], static=(VA[j], SM0[j]), loop=Lb("S") if j == 3 else None, wpre=[pa] if j == 3 else [])
    k(f"s_mov_b32 m0, {SM0[0]}")
    k.label(Lb("SM"))
    if opt.get("cyc"): k.ext(stamp("sm"))
    k.ext(poll_check("pa", vm1, sFL, 0, 28, 16)[1:])
    k("VMRESET")
    NW1 = opt.get("nw1", 4); NW2 = opt.get("nw2", 5)
    pair([1], [1], [1], [1], [1], [1], dma=False, mask=1, endwait=4 * NW1, wpre=sum((wl(s_) for s_ in range(NW1)), []), lastk=True)
    pair([1], None, [1], [1], None, None, dma=False, endwait=None, wpre=sum((wl(s_) for s_ in range(NW1, NW2)), []), fin=1)
    k.ext(stamp("ldone"))
    epilogue(k, 1)
    k(f"s_cmp_ge_u32 {swave}, 2"); k(f"s_cbranch_scc1 {Lb('nb')}"); k("s_barrier"); k.label(Lb("nb"))
    k(f"s_cmp_lg_u32 {sflag}, 0"); k(f"s_cbranch_scc1 {Lb('fallback')}")
    k.label(Lb("fbret"))
    f_ = tail
    f_.label(Lb("fallback"))
    f_("s_waitcnt vmcnt(0)")
    f_(f"v_and_b32 {t0}, 15, {vlane}"); f_(f"v_lshrrev_b32 {t1}, 4, {vlane}"); f_(f"v_lshlrev_b32 {t1}, 2, {t1}"); f_(f"v_sub_u32 {t0}, {t0}, {t1}")
    for r in range(4): f_(f"v_cmp_le_i32 {mA[r]}, {r}, {t0}")
    for g in range(2):
        F2 = ACC.sub(64 * (1 - g), 64)
        f_(f"s_and_b32 {st0}, {sflag}, {1 << g}"); f_(f"s_cbranch_scc0 {Lb(f'fbdone{g}')}")
        M = NM.sub(0, 2); AL = NM.sub(2, 2); LL = [NM.sub(4, 4), NM.sub(8, 4)]; MN = NM.sub(12, 2); MT = NM.sub(14, 2)
        for j in range(64): f_(f"v_mov_b32 {ACC[g*64+j]}, 0")
        for qb in range(2):
            f_(f"v_mov_b32 {M[qb]}, {vinf}")
            for r in range(4): f_(f"v_mov_b32 {LL[qb][r]}, 0")
        f_(f"v_mov_b32 {t2}, 0"); f_(f"s_mov_b32 {scnt}, 0")
        f_.label(Lb(f"fb{g}"))
        f_(f"s_lshl_b32 {st0}, {scnt}, 13"); f_(f"s_add_u32 {st1}, {st0}, {512*1024}")
        for f in range(16):
            f_(f"buffer_load_dwordx4 {F2.sub(4*f,4)}, {vl16 if f % 8 < 4 else vl16b}, {sKV}, {st0 if f < 8 else st1} offen offset:{(f%4)*1024} {SC}")
        f_(f"s_cmp_eq_u32 {scnt}, {srg[g]}"); f_(f"s_cselect_b64 {mX}, 0, -1")
        for r in range(4): f_(f"s_or_b64 {mT[r]}, {mA[r]}, {mX}")
        L, tiles = maskops("a", mT, mX, lambda qb, r: t2)
        f_.ext(L)
        f_("s_waitcnt vmcnt(0)")
        for kb in range(2):
            for qb in range(2):
                d = Sq(0, 0, qb).sub(4 * kb, 4)
                for ks in range(4):
                    f_(f"{MF} {d}, {F2.sub(4*(4*kb+ks),4)}, {Qf(g,qb,ks)}, {tiles[(qb,kb)] if ks == 0 else d}")
        f_("s_nop 7")
        for qb in range(2):
            s = Sq(0, 0, qb)
            f_(f"v_max3_f32 {MN[qb]}, {s[0]}, {s[1]}, {s[2]}"); f_(f"v_max3_f32 {MN[qb]}, {MN[qb]}, {s[3]}, {s[4]}")
            f_(f"v_max3_f32 {MN[qb]}, {MN[qb]}, {s[5]}, {s[6]}"); f_(f"v_max3_f32 {MN[qb]}, {MN[qb]}, {s[7]}, {M[qb]}")
        allreduce(f_, [MN[0], MN[1]], [MT[0], MT[1]], op="v_max_f32", cross_only=True)
        for qb in range(2):
            s = Sq(0, 0, qb)
            f_(f"v_sub_f32 {AL[qb]}, {M[qb]}, {MN[qb]}"); f_(f"v_exp_f32 {AL[qb]}, {AL[qb]}"); f_(f"v_mov_b32 {M[qb]}, {MN[qb]}")
            for e in range(8): f_(f"v_sub_f32 {s[e]}, {s[e]}, {MN[qb]}")
            for e in range(8): f_(f"v_exp_f32 {s[e]}, {s[e]}")
            for db in range(8):
                for r in range(4): f_(f"v_mul_f32 {O(g,db,qb)[r]}, {O(g,db,qb)[r]}, {AL[qb]}")
            for r in range(4): f_(f"v_mul_f32 {LL[qb][r]}, {LL[qb][r]}, {AL[qb]}")
            for c in range(4): f_(f"v_cvt_pk_bf16_f32 {s[c]}, {s[2*c]}, {s[2*c+1]}")
        f_("s_nop 1")
        for qb in range(2):
            for db in range(8):
                f_(f"{MF} {O(g,db,qb)}, {F2.sub(4*(8+db),4)}, {Sq(0,0,qb).sub(0,4)}, {O(g,db,qb)}")
            f_(f"{MF} {LL[qb]}, {ONES}, {Sq(0,0,qb).sub(0,4)}, {LL[qb]}")
        f_("s_nop 7")
        f_(f"s_add_u32 {scnt}, {scnt}, 1"); f_(f"s_cmp_le_u32 {scnt}, {srg[g]}"); f_(f"s_cbranch_scc1 {Lb(f'fb{g}')}")
        epilogue(f_, g, [LL[0][0], LL[1][0]])
        f_.label(Lb(f"fbdone{g}"))
    f_("s_waitcnt vmcnt(0)"); f_(f"s_branch {Lb('fbret')}")

    S.reset(mark0)
    smb = S(); snb = S(); sng = S(); smt = S(); soa = S(); shf = S(); sxo2 = S(); sfl = S(); shm = S(); sk1 = S()
    scl = S(); sexp = S(); sw0 = S(); so1 = S(); skq = S(); scg = S(); spt = S(); sfb = S(); sfr = S(); smd = S(); shl = S(); sstt = S()
    psk = S(3, 1); ssg = S()
    pX = S(2); pO = S(4); pB1 = S(2)
    sAct = S(4); sXO = S(4); sHF = S(4); sST = S(4); sW1 = S(4); sB = S(4); sHM = S(4); sPT = S(4)
    mD = [pX, pB1, sKV[0:2], sKV[2:4]]
    vb = X16.sub(0, 4); vw = X16.sub(4, 3); vrd = X16[7]; vrow = X16[8]; vg16 = X16[9]; RS = X16.sub(10, 2); ON = X16.sub(12, 4)
    DACC = v(32, 64); DF = [v(96, 16), v(112, 16), v(128, 16)]; PS = v(144, 24); PL = v(168, 24); DA = v(192, 12); EA = v(204, 8); B1 = v(212, 12)
    XRr = v(224, 8); HP = v(240, 8); SEL = v(248, 6); BR = v(248, 8)
    vbc = vsig
    vb4 = vm0; vb4s = vm2; vl4 = vtrb; vso = vtr
    def wpoll_check(tag, n, imm):
        tail.label(Lb("spin" + tag)); tail(f"s_mov_b32 {sspin}, {SPIN}")
        tail.label(Lb("spl" + tag))
        tail(f"buffer_load_dword {vpoll}, {vm1}, {sFL}, {sfl} offen offset:{imm} {SC}")
        tail("s_waitcnt vmcnt(0)"); tail(f"v_readfirstlane_b32 {st0}, {vpoll}"); tail("s_nop 0")
        tail(f"s_cmp_ge_u32 {st0}, {sexp}"); tail(f"s_cbranch_scc1 {Lb('back'+tag)}")
        tail(f"s_sub_u32 {sspin}, {sspin}, 1"); tail(f"s_cbranch_scc0 {Lb('spl'+tag)}"); tail(f"s_branch {Lb('back'+tag)}")
        return [f"s_and_b32 {sexp}, {sw0}, {n}", f"WAITVM {tag}", f"v_readfirstlane_b32 {st0}, {vpoll}", "s_nop 0",
                f"s_cmp_ge_u32 {st0}, {sexp}", f"s_cbranch_scc0 {Lb('spin'+tag)}", Lb("back" + tag) + ":", "s_barrier"]
    k(f"s_load_dwordx2 {pX}, s[0:1], 0"); k(f"s_load_dwordx4 {pO}, s[0:1], 80"); k(f"s_load_dwordx2 {pB1}, s[0:1], 64")
    k(f"s_bfe_u32 {sng}, s2, 0x40003"); k(f"s_and_b32 {snb}, {sng}, 7")
    k(f"s_lshr_b32 {st0}, s2, 7"); k(f"s_lshl_b32 {st0}, {st0}, 3"); k(f"s_and_b32 {smt}, s2, 7"); k(f"s_add_u32 {smt}, {smt}, {st0}")
    if DM_:
        k(f"s_bfe_u32 {skq}, s2, 0x20001"); k(f"s_lshr_b32 {smd}, s2, 5"); k(f"s_lshl_b32 {smd}, {smd}, 1"); k(f"s_and_b32 {st0}, s2, 1"); k(f"s_add_u32 {smd}, {smd}, {st0}")
    else:
        k(f"s_lshr_b32 {skq}, {sng}, 2"); k(f"s_mov_b32 {smd}, {smt}")
    k(f"s_lshl_b32 {scl}, {smd}, 11"); k(f"s_and_b32 {scg}, {sng}, 3"); k(f"s_lshl_b32 {ssg}, {scg}, 7"); k(f"s_add_u32 {ssg}, {ssg}, {scl}")
    k(f"s_lshl_b32 {sfl}, {skq}, 9"); k(f"s_add_u32 {sfl}, {sfl}, {ssg}")
    k(f"s_cmp_eq_u32 {swave}, 0"); k(f"s_cselect_b32 {sw0}, -1, 0"); k(f"s_cselect_b32 {st0}, 0, 0x80000000")
    k(f"v_or_b32 {vm1}, {st0}, {vsig}")
    k(f"v_and_b32 {t0}, 15, {vlane}"); k(f"v_lshl_or_b32 {t0}, {t0}, 7, {st0}")
    k(f"v_and_b32 {t1}, 48, {vlane}"); k(f"v_lshl_or_b32 {vbc}, {t1}, 25, {t0}")
    k(f"v_and_b32 {t1}, 60, {vlane}"); k(f"v_lshl_or_b32 {vb4}, {t1}, 25, {t0}")
    k(f"v_and_b32 {t0}, 3, {vlane}"); k(f"v_lshl_or_b32 {t0}, {t0}, 9, {st0}"); k(f"v_lshl_or_b32 {vb4s}, {t1}, 25, {t0}")
    srd(k, sAct, pWS, 16 * MB, WS_CTX)
    k(f"s_lshl_b32 {soa}, {smd}, 20"); k(f"s_lshl_b32 {st0}, {skq}, 18"); k(f"s_add_u32 {soa}, {soa}, {st0}"); k(f"s_add_u32 {soa}, {soa}, {sldsw}")
    vda = [t2, vinf]
    k(f"s_lshl_b32 {st0}, {skq}, 11"); k(f"s_and_b32 {st1}, {st0}, 4096"); k(f"v_or_b32 {vda[0]}, {st1}, {vl16}"); k(f"v_xor_b32 {vda[1]}, 4096, {vda[0]}")
    k(f"s_and_b32 {st1}, {st0}, 2048")
    for p in range(2):
        if p == 0: k(f"v_or_b32 {DA[0]}, {st1}, {vl16}")
        else: k(f"v_xor_b32 {DA[3]}, 2048, {DA[0]}")
        k(f"v_add_u32 {DA[3*p+1]}, 65536, {DA[3*p]}"); k(f"v_add_u32 {DA[3*p+2]}, 131072, {DA[3*p]}")
    k(f"s_lshr_b32 {st0}, {sh}, 3"); k(f"s_lshl_b32 {st0}, {st0}, 9")
    k(f"s_lshl_b32 {st1}, {si}, 11"); k(f"s_sub_u32 {st2}, {15*2048}, {st1}"); k(f"s_add_u32 {st1}, {st1}, {st0}"); k(f"s_add_u32 {st2}, {st2}, {st0}")
    NA = opt.get("na", NW2); NBp = opt.get("nb", NA); NCp = opt.get("nc", NBp + 3)
    for s in range(NW2, NA): k.ext(wl(s))
    k("WAITVM cst"); k("s_barrier")
    k(signal(sFL, st2, vb4)); k(signal(sFL, st1, vb4))
    k.ext(stamp("sig2"))
    for s in range(NA, NBp): k.ext(wl(s))
    k(poll_issue("p2", vm1, sFL, sfl))
    for s in range(NBp, NCp): k.ext(wl(s))
    k("s_waitcnt lgkmcnt(0)")
    k.ext(wpoll_check("p2", 8, 0))
    k.ext(stamp("got2"))
    DSL = [0, 1, 2, 3, 4, 0, 1, 2]; W1SL = [3, 4, 0]
    def sdma(slot, sd, so, tag, va):
        L = []
        for p in range(8):
            if p % 4 == 0: L.append(f"s_add_u32 m0, {sldsw}, {slot*32768 + (p//4)*4096}")
            L.append(f"buffer_load_dwordx4 {va[p//4]}, {sd}, {so} offen offset:{(p%4)*1024} {SC} lds ; tag={tag}{'ab'[p//4]}")
        return L + [f"s_add_u32 {so}, {so}, 32768"]
    cd = lambda st: sdma(DSL[st], sAct, soa, f"a{st}", vda)
    w1d = lambda n: sdma(W1SL[n], sW1, so1, "w1", [vl16, vl16b])
    TY = lambda rb, cb: DACC.sub((rb * 2 + cb) * 4, 4)
    dun = [(st, rb) for st in range(8) for rb in ((2, 3, 4, 5, 6, 7, 0, 1) if st == 7 else range(8))]
    def dreads(u):
        st, rb = dun[u]; o = DSL[st] * 32768
        return [f"ds_read_b128 {DF[u%3].sub(4*ks,4)}, {DA[3*((rb//2)%2) + o // 65536]} offset:{o % 65536 + ks*8192 + (rb//4)*4096 + (rb%2)*1024}" for ks in range(4)]
    def take_mem(src):
        L = []
        while src and not ismem(src[0]): L.append(src.pop(0))
        if src: L.append(src.pop(0))
        return L
    c1_ = cd(1)
    emit_dma(cd(0)); emit_dma(c1_[:5])
    U = Kern("x")
    U(f"s_lshl_b32 {smb}, {smt}, 1"); U(f"s_lshr_b32 {st0}, {sng}, 3"); U(f"s_add_u32 {smb}, {smb}, {st0}")
    U(f"s_lshl_b32 {st0}, {smd}, 2"); U(f"s_add_u32 {st0}, {st0}, {scg}")
    U(f"s_mul_i32 {st0}, {st0}, {4*3*8192}"); U(f"s_add_u32 {st0}, {st0}, {WS_PART}")
    srd(U, sPT, pWS, 4 * 3 * 8192, st0)
    U(f"s_lshl_b32 {scg}, {scg}, 2"); U(f"s_add_u32 {scg}, {scg}, {swave}")
    U(f"s_lshl_b32 {spt}, {smd}, 2"); U(f"s_add_u32 {spt}, {spt}, {skq}")
    U(f"s_lshl_b32 {shf}, {spt}, 15"); U(f"s_lshl_b32 {st0}, {scg}, 6"); U(f"s_add_u32 {sxo2}, {shf}, {st0}")
    U(f"s_lshl_b32 {st0}, {scg}, 10"); U(f"s_add_u32 {shf}, {shf}, {st0}")
    U(f"s_lshl_b32 {sstt}, {spt}, 12"); U(f"s_lshl_b32 {st0}, {scg}, 8"); U(f"s_add_u32 {sstt}, {sstt}, {st0}")
    U(f"v_and_b32 {t0}, 15, {vlane}"); U(f"v_lshrrev_b32 {t1}, 4, {vlane}"); U(f"v_lshlrev_b32 {vg16}, 4, {t1}")
    U(f"v_lshl_add_u32 {vrow}, {t0}, 10, {vg16}")
    srd(U, sXO, pX, 2 * MB); srd(U, sB, pB1, 2752)
    k.ext(U.L)
    k("WAITVM a0a"); k("s_barrier")
    k.ext(dreads(0)); k.ext(dreads(1))
    U = Kern("x")
    srd(U, sHF, pWS, 2 * MB, WS_HF); srd(U, sST, pWS, 256 * 1024, WS_STAT); srd(U, sW1, pWS, 88 * 16384, WS_W1P)
    U(f"s_mul_i32 {so1}, {sng}, {6*16384}"); U(f"s_add_u32 {so1}, {so1}, {sldsw}")
    U(f"s_lshl_b32 {st2}, {swave}, 11")
    for pr in range(1, 4):
        U(f"s_xor_b32 {st0}, {skq}, {pr}"); U(f"s_mul_i32 {st0}, {st0}, {3*8192}"); U(f"s_add_u32 {st0}, {st0}, {st2}"); U(f"s_add_u32 {psk[pr-1]}, {st0}, {(pr-1)*8192}")
    U(f"s_mul_i32 {sdb}, {skq}, {3*8192}"); U(f"s_add_u32 {sdb}, {sdb}, {st2}")
    U(f"v_bfe_u32 {t0}, {vlane}, 2, 2"); U(f"v_lshrrev_b32 {t1}, 4, {vlane}"); U(f"v_sub_u32 {t1}, {t1}, {t0}"); U(f"v_and_b32 {t1}, 3, {t1}")
    U(f"v_and_b32 {t0}, 1, {vlane}"); U(f"v_lshlrev_b32 {t0}, 4, {t0}"); U(f"v_mov_b32 {SEL[0]}, 0x3f80"); U(f"v_lshlrev_b32 {t0}, {t0}, {SEL[0]}")
    U(f"v_bfe_u32 {SEL[1]}, {vlane}, 1, 1"); U(f"v_lshl_or_b32 {SEL[1]}, {t1}, 1, {SEL[1]}")
    U(f"v_cmp_eq_u32 vcc, 0, {SEL[1]}\ns_nop 1\nv_cndmask_b32 {SEL[2]}, 0, {t0}, vcc")
    U(f"v_cmp_eq_u32 vcc, 1, {SEL[1]}\ns_nop 1\nv_cndmask_b32 {SEL[3]}, 0, {t0}, vcc")
    for j in (0, 1, 4, 5): U(f"v_mov_b32 {SEL[j]}, 0")
    U(f"v_and_b32 {t0}, 15, {vlane}"); U(f"v_lshlrev_b32 {t0}, 2, {t0}"); U(f"v_xor_b32 {vso}, 1, {t1}"); U(f"v_and_b32 {vso}, 1, {vso}")
    U(f"v_lshl_or_b32 {t0}, {vso}, 6, {t0}"); U(f"v_lshrrev_b32 {t1}, 1, {t1}"); U(f"v_lshl_or_b32 {vso}, {t1}, 31, {t0}")
    for j, c in enumerate((0x22222222, 0x44444444, 0x88888888)): U(f"s_mov_b32 {mD[j][0]}, {c}"); U(f"s_mov_b32 {mD[j][1]}, {c}")
    U(f"s_mov_b32 {mD[3][0]}, 0x00f0000f"); U(f"s_mov_b32 {mD[3][1]}, 0xf0000f00")
    for j in range(4): U(f"v_mov_b32 {ON[j]}, 0x3f803f80")
    U(f"v_lshlrev_b32 {vl4}, 2, {vlane}")
    U(f"s_lshl_b32 {smt}, {smt}, 2"); U(f"s_add_u32 {smt}, {smt}, {swave}")
    U(f"s_lshr_b32 {st0}, {smt}, 1"); U(f"s_mul_i32 {st0}, {st0}, {43*4096}"); U(f"s_add_u32 {st0}, {st0}, {WS_HM}")
    srd(U, sHM, pWS, 43 * 4096, st0)
    U(f"s_and_b32 {st0}, {smt}, 1"); U(f"s_lshl_b32 {st0}, {st0}, 11"); U(f"s_mul_i32 {shm}, {sng}, {3*4096}"); U(f"s_add_u32 {shm}, {shm}, {st0}")
    U(f"s_and_b32 {st2}, {sng}, {3 if opt.get('erot', 1) else 0}"); U(f"s_lshl_b32 {st2}, {st2}, 12")
    for kq in range(4):
        U(f"s_xor_b32 {st0}, {st2}, {kq*4096}"); U(f"v_add_u32 {EA[2*kq]}, {st0}, {vl16}"); U(f"v_add_u32 {EA[2*kq+1]}, {3*32768}, {EA[2*kq]}")
    U(f"s_lshl_b32 {shl}, {smt}, 15"); U(f"s_add_u32 {shl}, {shl}, {st2}")
    for r in range(4):
        U(f"s_add_u32 {st0}, {swave}, {r}"); U(f"s_and_b32 {st0}, {st0}, 3"); U(f"s_lshl_b32 {st2}, {st0}, 10")
        U(f"v_add_u32 {vb[r]}, {st2}, {vl16}")
        if r:
            U(f"s_mul_i32 {st2}, {st0}, 12288"); U(f"s_add_u32 {st2}, {st2}, {32768 + (r-1)*4096}"); U(f"v_add_u32 {vw[r-1]}, {st2}, {vl16}")
    U(f"s_mul_i32 {st2}, {swave}, 12288"); U(f"s_add_u32 {st2}, {st2}, 32768"); U(f"v_add_u32 {vrd}, {st2}, {vl16}")
    U(f"s_mul_i32 {sfb}, {swave}, {11*4096}")
    U(f"s_lshr_b32 {sfr}, s2, 6"); U(f"s_lshl_b32 {sfr}, {sfr}, 1"); U(f"s_xor_b32 {sfr}, {sfr}, {si}"); U(f"s_lshl_b32 {sfr}, {sfr}, 12")
    vq = glue(U.L)
    xq = []
    for rb in range(2):
        xq += [f"s_add_u32 {st1}, {sxo2}, {rb*16384}", f"buffer_load_dwordx4 {XRr.sub(4*rb,4)}, {vrow}, {sXO}, {st1} offen ; tag=e"]
    bq = [f"v_lshrrev_b32 {vpoll}, 1, {vg16}", f"s_mul_i32 {st1}, {sng}, 192"]
    bq += [f"buffer_load_dwordx2 {B1.sub(2*fb,2)}, {vpoll}, {sB}, {st1} offen offset:{fb*32} ; tag=e" for fb in range(6)]
    lw = [wl(s) for s in range(NCp, 16)]
    plan = {0: c1_[5:] + cd(2)}
    for st in range(1, 6): plan[st] = cd(st + 2)
    for n, L in enumerate(lw):
        g_ = NCp + n; st = max(1, min(g_ // 2 - 2, 1 + (5 * n) // len(lw)))
        plan[st] = plan[st] + L
    plan[6] = xq + bq + w1d(0)
    if opt.get("wt") is not None:
        tq = [f"v_lshlrev_b32 {vpoll}, 7, {vlane}", f"s_lshr_b32 {st1}, s2, 3", f"s_lshl_b32 {st1}, {st1}, 2", f"s_add_u32 {st1}, {st1}, {swave}", f"s_mul_i32 {st1}, {st1}, {86*128}"]
        dd = DA[6]
        tq += [f"s_add_u32 {st1}, {st1}, {WS_W2P - WS_CTX}", f"s_mov_b32 {sAct[2]}, {24*MB}", f"buffer_load_dword {dd}, {vpoll}, {sAct}, {st1} offen {SC}",
               f"s_add_u32 {st1}, {st1}, {WS_W1P - WS_W2P}", f"buffer_load_dword {dd}, {vpoll}, {sAct}, {st1} offen {SC}",
               f"v_and_b32 {DA[7]}, 31, {vlane}", f"v_min_u32 {DA[7]}, 21, {DA[7]}", f"v_lshlrev_b32 {DA[7]}, 7, {DA[7]}", f"v_lshrrev_b32 {vpoll}, 5, {vlane}",
               f"v_lshl_add_u32 {vpoll}, {vpoll}, 21, {DA[7]}", f"s_add_u32 {st1}, {st1}, {(8192 - (WS_W1P - WS_W2P)) & 0xffffffff}",
               f"buffer_load_dword {dd}, {vpoll}, {sAct}, {st1} offen {SC}"]
        plan[opt["wt"]] = plan[opt["wt"]] + tq
    mq = []; stq = []
    for u, (st, rb) in enumerate(dun):
        lg = 4 if u < 63 else 0
        if u % 8 == 0:
            assert not any(ismem(x) for x in mq), (u, mq)
            mq += plan.get(st, [])
            nm = sum(ismem(x) for x in mq); assert nm <= 16, (st, nm)
            at = [(16 * i_) // nm for i_ in range(nm)]
            k(f"WAITVM dw{2*st+1} lgkm={lg}")
        elif u == 2:
            k(f"WAITVM a0b lgkm={lg}"); k("s_barrier")
        elif u % 8 == 6 and st < 7:
            k(f"WAITVM a{st+1}b lgkm={lg}"); k("s_barrier")
        else: k(f"s_waitcnt lgkmcnt({lg})")
        mf = [f"{MF} {TY(rb,cb)}, {Wd(4*st+ks,cb)}, {DF[u%3].sub(4*ks,4)}, {'0' if st == 0 and ks == 0 else TY(rb,cb)}" for cb in range(2) for ks in range(4)]
        G = Gaps(mf)
        if u < 62:
            for g, x in zip((0, 2, 4, 6), dreads(u + 2)): G.put(g, x)
        for h_, g in enumerate((1, 5)):
            if 2 * (u % 8) + h_ in at:
                for x in take_mem(mq): G.put(g if ismem(x) else g - 1, x)
        if stq: G.put(1, stq.pop(0))
        sched(G, vq, 4 if st == 7 else 0, 6, stq)
        G.emit(k)
        if st == 7 and rb >= 2:
            p = PS.sub(4 * (rb - 2), 4)
            vq += pack(p, TY(rb, 0), TY(rb, 1)) + [("st", f"buffer_store_dwordx4 {p}, {vl16}, {sPT}, {psk[rb//2-1]} offen offset:{(rb%2)*1024} {SC} ; tag=ps")]
        if u == 40: assert not vq
    assert not vq and not stq and not any(ismem(x) for x in mq), (vq, stq, mq)
    k.ext(mq)
    k.ext(stamp("dmm"))
    SELm = [SEL.sub(2, 4), SEL.sub(0, 4)]
    def addfrag(fr, rb): return [f"{MF} {TY(rb,cb)}, {SELm[cb]}, {fr}, {TY(rb,cb)}" for cb in range(2)]
    W2v = v(96, 48)
    W2 = lambda s, cb: a(128 + s * 16 + cb * 4, 4) if s < 8 else W2v.sub((s - 8) * 16 + cb * 4, 4)
    def foff(d, s): return [f"s_xor_b32 {d}, {sfr}, {s*4096}", f"s_add_u32 {d}, {d}, {sfb}"] if s < 8 else [f"s_add_u32 {d}, {sfb}, {s*4096}"]
    def w2l(s): return foff(sow, s) + [f"buffer_load_dwordx4 {W2(s,c)}, {vl16}, {sW}, {sow} offen offset:{c*1024} {SC} ; tag=w2" for c in range(4)]
    k("WAITVM e")
    for rb in range(2): k.ext(addfrag(XRr.sub(4 * rb, 4), rb))
    emit_dma(w1d(1))
    k(f"s_mul_i32 {st0}, {snb}, {43*4096}"); k(f"s_add_u32 {st0}, {st0}, {WS_W2P}")
    srd(k, sW, pWS, 43 * 4096, st0)
    k("WAITVM ps"); k("s_barrier")
    k(signal(sFL, ssg, vb4s) + " offset:20")
    k(poll_issue("p2b", vm1, sFL, sfl, 20))
    k.ext(stamp("sigp"))
    emit_dma(w1d(2))
    C1 = v(48, 24); BF = v(72, 24); EW = DF; EACC = v(144, 48); SL = v(32, 16); G0 = v(224, 8); PK = [v(232, 4), v(236, 4)]; STT = v(224, 16)
    for j in range(12):
        k(f"v_lshlrev_b32 {BF[2*j]}, 16, {B1[j]}"); k(f"v_and_b32 {BF[2*j+1]}, 0xffff0000, {B1[j]}")
    k.ext(wpoll_check("p2b", 4, 20))
    for j in range(3):
        for rb in range(2): k(f"buffer_load_dwordx4 {PL.sub(8*j+4*rb,4)}, {vl16}, {sPT}, {sdb} offen offset:{rb*1024} {SC} ; tag=pl{j}")
        k(f"s_add_u32 {sdb}, {sdb}, 8192")
    k.ext(stamp("gotp"))
    w2o = [2, 3, 4, 5, 6, 7, 0, 1, 8, 9, 10]; SH = opt.get("sh", (0, 0, 0))
    for _ in range(SH[0]): k.ext(w2l(w2o.pop(0)))
    k(f"s_add_u32 {st1}, {shf}, 16384")
    for j in range(3):
        k(f"WAITVM pl{j}")
        for rb in range(2): k.ext(addfrag(PL.sub(8 * j + 4 * rb, 4), rb))
    for rb in range(2):
        k.ext(pack(HP.sub(4 * rb, 4), TY(rb, 0), TY(rb, 1)))
        k(f"buffer_store_dwordx4 {HP.sub(4*rb,4)}, {vl16}, {sHF}, {st1 if rb else shf} offen {SC} ; tag=hst")
    for rb in range(2):
        h_ = HP.sub(4 * rb, 4)
        k(f"{MF} {STT.sub(8*rb,4)}, {h_}, {h_}, 0"); k(f"{MF} {STT.sub(8*rb+4,4)}, {ON}, {h_}, 0")
    for rb in range(2):
        for j in range(3): k(f"v_cndmask_b32 {STT[8*rb]}, {STT[8*rb]}, {STT[8*rb+1+j]}, {mD[j]}")
        k(f"v_cndmask_b32 {STT[8*rb]}, {STT[8*rb+4]}, {STT[8*rb]}, {mD[3]}")
        k(f"buffer_store_dword {STT[8*rb]}, {vso}, {sST}, {sstt} offen offset:{128*rb} {SC} ; tag=hst")
    for _ in range(SH[1]): k.ext(w2l(w2o.pop(0)))
    k("WAITVM hst"); k("s_barrier")
    k(signal(sFL, scl, vbc) + " offset:4")
    k(f"s_lshr_b32 {scl}, {smt}, 2"); k(f"s_lshl_b32 {scl}, {scl}, 11"); k(f"s_lshl_b32 {sfl}, {sng}, 7"); k(f"s_add_u32 {sfl}, {sfl}, {scl}")
    k.ext(stamp("sig3"))

    MR = v(254, 2); KC = v(244, 4)
    H = a(0, 128)
    k(f"s_cmp_eq_u32 {sng}, 15"); k(f"s_cbranch_scc1 {Lb('noup')}")
    tail.label(Lb("noup"))
    for s in w2o: tail.ext(w2l(s))
    tail(f"s_branch {Lb('upd')}")
    TE = lambda fb, rb: EACC.sub((fb * 2 + rb) * 4, 4)
    Hf = lambda rb, ks: H.sub((rb * 16 + ks) * 4, 4)
    units = [(fb, kq) for kq in range(4) for fb in range(6)]
    def reads(u):
        fb, kq = units[u % 24]
        return [f"ds_read_b128 {EW[u%3].sub(4*ks,4)}, {EA[2*kq + (fb < 4)]} offset:{(fb % 4)*16384 + ks*1024}" for ks in range(4)]
    def hl(kq):
        L = []
        for rb in range(2):
            L.append(f"s_xor_b32 {st1}, {shl}, {rb*16384 + kq*4096}")
            L += [f"buffer_load_dwordx4 {Hf(rb,4*kq+ks)}, {vl16}, {sHF}, {st1} offen offset:{ks*1024} {SC} ; tag=h{kq}" for ks in range(4)]
        return L
    k.ext(reads(0)); k.ext(reads(1))
    mq = sum((w2l(w2o.pop(0)) for _ in range(SH[2])), [])
    UP = opt.get("up3", 3); UC = opt.get("uc3", 12)
    for u, (fb, kq) in enumerate(units):
        if u == UC:
            k.ext(mq)
            k.ext(wpoll_check("p3", 16, 4))
            k.ext(stamp("got3"))
            mq = hl(0) + hl(1) + hl(2) + hl(3)
            for _ in range(4): k.ext(take_mem(mq))
        k.ext(reads(u + 2)); k("s_waitcnt lgkmcnt(8)")
        c = C1.sub(4 * fb, 4)
        for ks in range(4):
            k(f"{MF} {c}, {EW[u%3].sub(4*ks,4)}, {ON}, {'0' if kq == 0 and ks == 0 else c}")
            if ks == 0 and u == UP: k(poll_issue("p3", vm1, sFL, sfl, 4))
            if ks == 1 and u > UP: k.ext(take_mem(mq))
    K1 = 2 * math.sqrt(2 / math.pi) * math.log2(math.e)
    k(f"v_mov_b32 {KC[0]}, {f2h(-K1 * 0.044715)}"); k(f"v_mov_b32 {KC[1]}, {f2h(-K1)}"); k(f"v_mov_b32 {KC[2]}, 1.0")
    k(f"s_lshl_b32 {st0}, {smt}, 12")
    sq_ = [f"buffer_load_dword {SL[j]}, {vl4}, {sST}, {st0} offen offset:{j*256} {SC} ; tag=st" for j in range(16)]
    w2q = sum((w2l(s) for s in w2o), [])
    def stats():
        L = Kern("x")
        L("WAITVM st")
        for d in (8, 4, 2, 1):
            for j in range(d): L(f"v_add_f32 {SL[j]}, {SL[j]}, {SL[j+d]}")
        mu, qq, aa, bb = SL[0], SL[1], SL[2], SL[3]
        L(f"v_mul_f32 {mu}, {f2h(1/512)}, {mu}"); L(f"v_mov_b32 {qq}, {mu}")
        L(f"v_permlane16_swap_b32 {mu}, {qq}")
        L(f"v_fma_f32 {qq}, -{mu}, {mu}, {qq}"); L(f"v_max_f32 {qq}, 0, {qq}")
        L(f"v_add_f32 {aa}, {f2h(1e-5)}, {qq}"); L(f"v_rsq_f32 {aa}, {aa}")
        L(f"v_mul_f32 {bb}, {aa}, {aa}"); L(f"v_mul_f32 {bb}, {bb}, {qq}"); L(f"v_add_f32 {bb}, {f2h(1e-5)}, {bb}")
        L(f"v_rsq_f32 {bb}, {bb}")
        L(f"v_mul_f32 {RS[0]}, {aa}, {bb}"); L(f"v_mul_f32 {RS[1]}, {aa}, {bb}")
        L(f"v_mul_f32 {MR[0]}, -{mu}, {RS[0]}"); L(f"v_mul_f32 {MR[1]}, -{mu}, {RS[0]}")
        L(f"v_permlane32_swap_b32 {RS[0]}, {RS[1]}"); L(f"v_permlane32_swap_b32 {MR[0]}, {MR[1]}")
        return L.L
    def gelu(pp, rb):
        ts = [TE(fb, rb).sub(r, 2) for fb in (2 * pp, 2 * pp + 1) for r in (0, 2)]
        cs = [(C1.sub(4 * fb + r, 2), BF.sub(4 * fb + r, 2)) for fb in (2 * pp, 2 * pp + 1) for r in (0, 2)]
        g = [G0.sub(2 * j, 2) for j in range(4)]
        b0 = "op_sel_hi:[0,1,1]" if rb == 0 else "op_sel:[1,0,0]"
        L = [f"v_pk_fma_f32 {g[j]}, {MR}, {cs[j][0]}, {cs[j][1]} {b0}" for j in range(4)]
        L += [f"v_pk_fma_f32 {ts[j]}, {RS}, {ts[j]}, {g[j]} {b0}" for j in range(4)]
        L += [f"v_pk_mul_f32 {g[j]}, {ts[j]}, {ts[j]}" for j in range(4)]
        L += [f"v_pk_fma_f32 {g[j]}, {g[j]}, {KC.sub(0,2)}, {KC.sub(0,2)} op_sel:[0,0,1] op_sel_hi:[1,0,1]" for j in range(4)]
        L += [f"v_pk_mul_f32 {g[j]}, {g[j]}, {ts[j]}" for j in range(4)]
        L += [f"v_exp_f32 {G0[j]}, {G0[j]}" for j in range(8)]
        L += [f"v_pk_add_f32 {g[j]}, {g[j]}, {KC.sub(2,2)} op_sel_hi:[1,0]" for j in range(4)]
        L += [f"v_rcp_f32 {G0[j]}, {G0[j]}" for j in range(8)]
        L += [f"v_pk_mul_f32 {ts[j]}, {ts[j]}, {g[j]}" for j in range(4)]
        L += pack(PK[rb], TE(2 * pp, rb), TE(2 * pp + 1, rb))
        L.append(f"buffer_store_dwordx4 {PK[rb]}, {vl16}, {sHM}, {shm} offen offset:{rb*1024} {SC} ; tag=mst")
        if rb: L.append(f"s_add_u32 {shm}, {shm}, 4096")
        return L
    q = []
    for u, (fb, kq) in enumerate(units):
        lg = 4 if u < 23 else 0
        if fb == 0: k(f"WAITVM h{kq} lgkm={lg}")
        else: k(f"s_waitcnt lgkmcnt({lg})")
        mf = [f"{MF} {TE(fb,rb)}, {EW[u%3].sub(4*ks,4)}, {Hf(rb,4*kq+ks)}, {'0' if kq == 0 and ks == 0 else TE(fb,rb)}" for rb in range(2) for ks in range(4)]
        G = Gaps(mf)
        if u + 2 < len(units):
            for g, x in zip((0, 2, 4, 6), reads(u + 2)): G.put(g, x)
        for g in (1, 5):
            if mq: L = take_mem(mq)
            elif sq_: L = [sq_.pop(0)]; G.put(g + 2, sq_.pop(0))
            elif w2q and "a[" in "".join(w2q[:3]): L = take_mem(w2q)
            else: L = []
            for x in L: G.put(g if ismem(x) else g - 1, x)
        if u == 17: q += stats()
        sched(G, q, 0, 7)
        G.emit(k)
    assert not q and not sq_ and not mq
    k.ext(stamp("emm"))
    q = sum((gelu(pp, rb) for pp in range(3) for rb in range(2)), [])
    for n, x in enumerate(q):
        k(x)
        if n % 16 == 7: k.ext(take_mem(w2q))
    k.ext(w2q)
    k("WAITVM mst"); k("s_barrier")
    k(signal(sFL, scl, vbc) + " offset:8")
    k.label(Lb("upd"))
    k("VMRESET")
    k.ext(stamp("sig4"))

    srd(k, sXO, pO[2:4], 2 * MB); srd(k, sB, pO[0:2], 1024)
    k(f"s_lshl_b32 {st2}, {snb}, 7")
    k(poll_issue("p4", vm1, sFL, sfl, 8))
    BRr = v(192, 8)
    for j in range(2): k(f"buffer_load_dwordx4 {BRr.sub(4*j,4)}, {vg16}, {sB}, {st2} offen offset:{64*j} ; tag=fb")
    k(f"s_mul_i32 {st0}, {smb}, {43*4096}"); k(f"s_add_u32 {st0}, {st0}, {WS_HM}")
    srd(k, sAct, pWS, 43 * 4096, st0)
    k.ext(foff(soa, 0))
    k(f"s_lshl_b32 {shf}, {smb}, 2"); k(f"s_add_u32 {shf}, {shf}, {swave}"); k(f"s_lshl_b32 {shf}, {shf}, 14")
    k(f"s_add_u32 {sxo2}, {shf}, {st2}")
    k(f"s_lshl_b32 {st1}, {snb}, 11"); k(f"s_add_u32 {shf}, {shf}, {st1}")
    AV = v(144, 48); RD = v(192, 48)
    TD = lambda cb, rb: DACC.sub((rb * 4 + cb) * 4, 4)
    Af = lambda s, rb: a(s * 16 + rb * 4, 4) if s < 8 else AV.sub((s - 8) * 16 + rb * 4, 4)
    def fl(s): return [f"buffer_load_dwordx4 {Af(s,r)}, {vb[r]}, {sAct}, {soa} offen {SC} ; tag=fa{s}" for r in range(4)] + foff(soa, s + 1)
    k.ext(wpoll_check("p4", 15, 8))
    k.ext(stamp("got4"))
    NF = opt.get("nf", 3)
    for s in range(NF): k.ext(fl(s))
    for j in range(2): k(f"buffer_load_dwordx4 {HP.sub(4*j,4)}, {vl16}, {sHF}, {shf} offen offset:{1024*j} {SC} ; tag=fe")
    for s in range(11):
        k(f"WAITVM fa{s}")
        rbs = (1, 2, 3, 0) if s == 10 else range(4)
        mf = [f"{MF} {TD(cb,rb)}, {W2(s,cb)}, {Af(s,rb)}, {'0' if s == 0 else TD(cb,rb)}" for rb in rbs for cb in range(4)]
        if s == 10:
            mf += [f"{MF} {TD(cb,0)}, {SELm[cb%2]}, {src.sub(4*(cb//2),4)}, {TD(cb,0)}" for src in (HP, BRr) for cb in range(4)]
        G = Gaps(mf)
        if s + NF < 11:
            g = 0
            for x in fl(s + NF):
                if ismem(x): G.put(g, x); g += 4
                else: G.put(g - 3, x)
        if s == 10:
            for r in range(1, 4):
                for cb in range(4): G.put(4 * r + 4 + cb, f"ds_write_b128 {vw[r-1]}, {TD(cb,r)} offset:{cb*1024}")
        G.emit(k)
    k.ext(stamp("fmm"))
    k("s_waitcnt lgkmcnt(0)"); k("s_barrier")
    for j in range(12): k(f"ds_read_b128 {RD.sub(4*j,4)}, {vrd} offset:{j*1024}")
    for p in range(3):
        k(f"s_waitcnt lgkmcnt({8-4*p})")
        for j in range(0, 16, 2): k(f"v_pk_add_f32 {DACC.sub(j,2)}, {DACC.sub(j,2)}, {RD.sub(16*p+j,2)}")
    OP = v(144, 8)
    for j in range(2):
        k.ext(pack(OP.sub(4 * j, 4), TD(2 * j, 0), TD(2 * j + 1, 0)))
        k(f"buffer_store_dwordx4 {OP.sub(4*j,4)}, {vrow}, {sXO}, {sxo2} offen offset:{64*j} {opt.get('of', '')}")
    if echo:
        k("s_waitcnt vmcnt(0)"); k.ext(stamp("end"))
        k("s_nop 4"); k(f"v_readlane_b32 {st0}, v0, 0"); k(f"v_readlane_b32 {st1}, v0, 1"); k("s_nop 4")
        k(f"s_sub_u32 {st0}, {st1}, {st0}"); k(f"s_lshl_b32 {st0}, {st0}, 2"); k(f"s_min_u32 {st0}, {st0}, 100000")
        k("s_memrealtime s[100:101]"); k("s_waitcnt lgkmcnt(0)"); k(f"s_mov_b32 {st1}, s100")
        k.label(Lb("echo"))
        k("s_memrealtime s[100:101]"); k("s_waitcnt lgkmcnt(0)"); k(f"s_sub_u32 {st2}, s100, {st1}")
        k(f"s_cmp_lt_u32 {st2}, {st0}"); k(f"s_cbranch_scc1 {Lb('echo')}")
    if dbg:
        k("s_waitcnt vmcnt(0)"); k.ext(stamp("end"))
        srd(k, sW, pWS, MB, WS_DBG)
        k(f"s_lshl_b32 {st0}, s2, 2"); k(f"s_add_u32 {st0}, {st0}, {swave}"); k(f"s_lshl_b32 {st0}, {st0}, 8")
        k(f"v_lshlrev_b32 {t0}, 2, {vlane}")
        k(f"buffer_store_dword v0, {t0}, {sW}, {st0} offen")
    k.label(E)
    k("s_endpgm")
    tail.label(Lb("codeend")); tail("s_endpgm")
    k.L = resolve_waits(k.L) + tail.L
    return k, names

def build(path, **kw):
    import hazard
    k, names = gen(KNAME + "_kernel", **kw)
    k.L, nfix = hazard.fix(k.L, k.name)
    if nfix: print("padded", nfix, "hazards")
    bad = hazard.check(k.L, k.name)
    hdr = "; pre-LN latent-KV causal attention + channel MLP as one persistent launch (emitted by my own python generator)\n"
    open(path, "w").write(build_single(k, 512, 256, 102, 256, 256, 163840, hdr))
    check_file(path)
    if names: open(path[:-2] + ".names", "w").write(" ".join(names))
    return bad

if __name__ == "__main__":
    build("m.s"); build("m_dbg.s", dbg=True); build("m_force.s", thr=0.5)
```

```python
import re, subprocess, os, sys

KNAME = "sequential_preLN__compressed_kv_cla__mixer_channel_mlp__prompt"

def vr(b, n=1):
    return f"v{b}" if n == 1 else f"v[{b}:{b+n-1}]"
def ar(b, n=1):
    return f"a{b}" if n == 1 else f"a[{b}:{b+n-1}]"
def sr(b, n=1):
    return f"s{b}" if n == 1 else f"s[{b}:{b+n-1}]"

class Reg:
    def __init__(self, kind, base, n=1):
        self.kind, self.base, self.n = kind, base, n
    def __str__(self):
        return f"{self.kind}{self.base}" if self.n == 1 else f"{self.kind}[{self.base}:{self.base+self.n-1}]"
    __repr__ = __str__
    def __format__(self, spec):
        return str(self)
    def __getitem__(self, i):
        if isinstance(i, slice):
            a = i.start or 0
            b = self.n if i.stop is None else i.stop
            assert 0 <= a < b <= self.n, (a, b, self.n)
            return Reg(self.kind, self.base + a, b - a)
        assert 0 <= i < self.n, (i, self.n)
        return Reg(self.kind, self.base + i, 1)
    def sub(self, off, n):
        return self[off:off+n]

class Alloc:
    def __init__(self, kind, start, limit):
        self.kind, self.cur, self.limit = kind, start, limit
        self.hi = start
    def __call__(self, n=1, align=None):
        if align is None:
            align = 1 if n == 1 else (2 if n == 2 else 4)
        b = (self.cur + align - 1) // align * align
        assert b + n <= self.limit, f"out of {self.kind} regs: want {n} at {b} limit {self.limit}"
        self.cur = b + n
        self.hi = max(self.hi, self.cur)
        return Reg(self.kind, b, n)
    def mark(self):
        return self.cur
    def reset(self, m):
        self.cur = m

class Kern:
    def __init__(self, name):
        self.name = name
        self.L = []
    def __call__(self, s):
        for ln in s.split("\n"):
            ln = ln.strip()
            if ln:
                self.L.append(ln)
    def ext(self, lst):
        for x in lst:
            self(x)
    def label(self, l):
        self.L.append(l + ":")
    def text(self):
        out = [".text", f".globl {self.name}", ".p2align 8", f".type {self.name},@function", f"{self.name}:"]
        for l in self.L:
            out.append(l if l.endswith(":") else "    " + l)
        return "\n".join(out) + "\n"

def descriptor(name, nvgpr, accum, nsgpr=102):
    return f""".amdhsa_kernel {name}
  .amdhsa_next_free_vgpr {nvgpr}
  .amdhsa_next_free_sgpr {nsgpr}
  .amdhsa_accum_offset {accum}
  .amdhsa_group_segment_fixed_size 0
  .amdhsa_kernarg_size 112
  .amdhsa_user_sgpr_count 2
  .amdhsa_user_sgpr_kernarg_segment_ptr 1
  .amdhsa_system_sgpr_workgroup_id_x 1
.end_amdhsa_kernel
"""

def build_single(kern, nv, acc, ns, grid, block, lds, header=""):
    s = header + f"; @launch grid=({grid},1,1) block=({block},1,1) lds={lds}\n"
    s += '.amdgcn_target "amdgcn-amd-amdhsa--gfx950"\n' + kern.text()
    s += '.section .rodata,"a"\n.p2align 6\n' + descriptor(kern.name, nv, acc, ns)
    return s

def build_file(kerns, launches, header=""):
    s = header
    for (n, g, b, l) in launches:
        s += f"; @launch kernel={n} grid=({g},1,1) block=({b},1,1) lds={l}\n"
    s += '.amdgcn_target "amdgcn-amd-amdhsa--gfx950"\n'
    for (k, *_r) in kerns:
        s += k.text()
    s += '.section .rodata,"a"\n'
    for (k, nv, acc, ns) in kerns:
        s += ".p2align 6\n" + descriptor(k.name, nv, acc, ns)
    return s

def check_file(path):
    sys.path.insert(0, "cdna_kernels")
    import cdna_launch as cl
    asm = open(path).read()
    h = cl.with_harness_metadata(asm, KNAME + "_kernel", 14, launch_lists=True)
    hp = path[:-2] + ".harness.s_"
    open(hp, "w").write(h)
    co = path[:-2] + ".co"
    r = subprocess.run(["clang", "-x", "assembler", "-target", "amdgcn-amd-amdhsa",
                        "-mcpu=gfx950", hp, "-o", co], capture_output=True, text=True)
    if r.returncode:
        print(r.stderr[:4000]); raise SystemExit("assembly failed")
    launches = cl.launch_list_of(asm, True)
    prob = cl.address_register_problem(co, KNAME + "_kernel",
                                       None if launches is None else cl.launch_list_kernel_names(launches))
    if prob:
        print(prob); raise SystemExit("check failed")
    print("OK", path, os.path.getsize(path), "bytes")

def icost(x):
    op = x.split()[0]
    if x.endswith(":"): return 0
    if op in ("v_exp_f32", "v_rcp_f32", "v_rsq_f32", "v_log_f32"): return 8
    if op.startswith("buffer_") or op.startswith("global_"): return 8
    return 4
def ismem(x):
    return x.startswith("ds_") or x.startswith("buffer_") or x.startswith("global_")

class Gaps:
    def __init__(self, mf, cap=8):
        self.mf = mf; self.n = len(mf); self.cap = cap
        self.g = [[] for _ in mf]
    def cost(self, g): return sum(icost(x) for x in self.g[g])
    def put(self, g, x):
        self.g[g].append(x); return g
    def add(self, x, lo=0, hi=None, onemem=True):
        hi = self.n - 1 if hi is None else min(hi, self.n - 1)
        lo = min(lo, hi)
        c = icost(x)
        for g in range(lo, hi + 1):
            if self.cost(g) + c <= self.cap and not (onemem and ismem(x) and any(ismem(y) for y in self.g[g])):
                self.g[g].append(x); return g
        g = min(range(lo, hi + 1), key=lambda t: self.cost(t))
        self.g[g].append(x); return g
    def chain(self, xs, lo=0, hi=None, step=0):
        pos = []
        for x in xs:
            g = self.add(x, lo, hi); pos.append(g); lo = g + step
        return pos
    def emit(self, k, memfirst=True):
        for m, gl in zip(self.mf, self.g):
            k(m)
            for x in gl: k(x)

def resolve_waits(lines):
    out = []; ops = []; done = 0; waited = set()
    for ln in lines:
        if ln.startswith("WAITVM"):
            p = ln.split()
            tags = p[1].split(","); waited |= set(tags)
            for tg in tags: assert tg in ops, ("wait on tag never issued", tg)
            last = max(max((i for i, t in enumerate(ops) if t == tg), default=-1) for tg in tags)
            assert last >= 0, ("no op with tag", tags)
            n = len(ops) - 1 - last
            extra = "".join(f" lgkmcnt({q[5:]})" for q in p[2:] if q.startswith("lgkm="))
            if last + 1 <= done and not extra:
                out.append("s_nop 0"); continue
            if last + 1 <= done:
                out.append("s_waitcnt" + extra); continue
            assert n <= 63
            done = max(done, last + 1)
            out.append(f"s_waitcnt vmcnt({n}){extra}")
            continue
        if ln.startswith("NOCOUNT "):
            out.append(ln[8:]); continue
        if ln.startswith("VMRESET"):
            ops = []; done = 0; waited = set(); continue
        if ln.startswith("buffer_") or ln.startswith("global_"):
            m = re.search(r";\s*tag=(\S+)", ln)
            if len(ops) - done >= 62:
                out.append("s_waitcnt vmcnt(52)"); done = len(ops) - 52
            assert not (m and m.group(1) in waited), ("op issued after its wait", ln)
            ops.append(m.group(1) if m else None)
        m = re.match(r"s_waitcnt.*vmcnt\((\d+)\)", ln)
        if m: done = max(done, len(ops) - int(m.group(1)))
        out.append(ln)
    return out

def srd(k, d, base, size, off=None):
    if off is None:
        k(f"s_mov_b32 {d[0]}, {base[0]}"); k(f"s_mov_b32 {d[1]}, {base[1]}")
    else:
        k(f"s_add_u32 {d[0]}, {base[0]}, {off}"); k(f"s_addc_u32 {d[1]}, {base[1]}, 0")
    k(f"s_mov_b32 {d[2]}, {size}"); k(f"s_mov_b32 {d[3]}, 0x20000")

def allreduce(k, regs, tmps, op="v_add_f32", rows_only=False, cross_only=False):
    pad = lambda: k("s_nop 1") if len(regs) < 3 else None
    if not cross_only:
        for dpp in ("quad_perm:[1,0,3,2]", "quad_perm:[2,3,0,1]", "row_half_mirror", "row_mirror"):
            k("s_nop 1")
            for r in regs: k(f"{op}_dpp {r}, {r}, {r} {dpp} row_mask:0xf bank_mask:0xf")
    if rows_only: return
    for sw in ("v_permlane16_swap_b32", "v_permlane32_swap_b32"):
        for r, t in zip(regs, tmps): k(f"v_mov_b32 {t}, {r}")
        k("s_nop 1")
        for r, t in zip(regs, tmps): k(f"{sw} {r}, {t}")
        for r, t in zip(regs, tmps): k(f"{op} {r}, {r}, {t}")

class Stamps:
    def __init__(self, on, base=72, kern=0):
        self.on, self.base, self.n, self.kern = on, base, 0, kern
        self.names = []
    def __call__(self, name):
        if not self.on: return []
        r = [f"s_memrealtime s[{self.base+2*self.n}:{self.base+2*self.n+1}]"]
        self.names.append(name); self.n += 1
        assert self.base + 2 * self.n <= 100
        return r
    def dump(self, k, pWS, swave, sD, st, v0, v1, WS_DBG):
        if not self.on: return
        k("s_waitcnt lgkmcnt(0)")
        srd(k, sD, pWS, 1 << 20, WS_DBG + self.kern * (1 << 20))
        k(f"s_lshl_b32 {st}, s2, 3"); k(f"s_add_u32 {st}, {st}, {swave}"); k(f"s_lshl_b32 {st}, {st}, 6")
        k(f"v_mov_b32 {v1}, 0")
        for i in range(self.n):
            k(f"v_mov_b32 {v0}, s{self.base+2*i}")
            k(f"buffer_store_dword {v0}, {v1}, {sD}, {st} offen offset:{4*i}")
        k("s_waitcnt vmcnt(0)")
```

```python
from asmlib import *
from layout import *
from k1 import f2h, MF, setup_wstream, wdma, trreads, cb_mfmas, pack
import math, re

NEGINF = "0xff800000"
SPIN = 200000

def sched(G, q, lo, hi=None, stq=None, second=False):
    hi = G.n - 1 if hi is None else hi
    g = lo
    while q and g <= hi:
        x = q[0]
        if isinstance(x, tuple):
            stq.append(x[1]); q.pop(0); continue
        full = G.cost(g) + icost(x) > G.cap
        clash = ismem(x) and len(G.g[g]) > 0 and not (second and len(G.g[g]) == 1 and G.g[g][0].startswith("ds_"))
        if full or clash:
            g += 1; continue
        G.g[g].append(x); q.pop(0)
    while q and isinstance(q[0], tuple):
        stq.append(q[0][1]); q.pop(0)

def glue(L):
    out = []
    for x in L:
        if x.startswith("s_addc") or x.startswith("s_cselect"): out[-1] += "\n" + x
        else: out.append(x)
    return out

def gen(name, dbg=False, thr=2.0**60, opt=None):
    opt = opt or {}
    SC = "sc1"; STF = opt.get("stf", "sc1")
    k = Kern(name)
    tail = Kern("tail")
    v = lambda b, n=1: Reg('v', b, n)
    a = lambda b, n=1: Reg('a', b, n)
    Lb = lambda s: f"L_{s}"
    E = Lb("end")
    vlane, vl16, vl16b, t0, t1, t2, vsig, vone, vpoll, vtr, vtrb, vinf, vm0, vm1, vm2 = [v(i) for i in range(1, 16)]
    X16 = v(16, 16); ACC = v(32, 128); WFr = v(160, 32); PB = v(192, 64)
    vW = X16.sub(0, 8); vco = X16.sub(8, 4); vcr = X16.sub(12, 4)
    WF = [WFr.sub(0, 16), WFr.sub(16, 16)]
    R = a(0, 256)
    S = Alloc("s", 3, 100)
    swave = S(); sh = S(); si = S(); st0 = S(); st1 = S(); st2 = S(); ssoff = S(); sldsw = S(); sspin = S()
    srg = S(2, 1); pWS = S(2)
    sFL = S(4); sKV = S(4); sXN = S(4); ssc = S(); sdb = S()
    mark0 = S.mark()
    nst = [0]; names = []
    echo = opt.get("echo")
    def stamp(nm):
        if echo:
            if nm == "start": return ["v_writelane_b32 v0, s100, 0"] + (["s_memrealtime s[100:101]", "s_waitcnt lgkmcnt(0)", "v_writelane_b32 v0, s100, 1"] if echo == nm else [])
            return ["s_memrealtime s[100:101]", "s_waitcnt lgkmcnt(0)", "v_writelane_b32 v0, s100, 1"] if nm == echo else []
        if not dbg or (opt.get("mini") and nm not in ("start", "st11", "ldone", "dmm", "end")): return []
        r = ["s_memtime s[100:101]" if opt.get("cyc") else "s_memrealtime s[100:101]", "s_waitcnt lgkmcnt(0)", f"v_writelane_b32 v0, s100, {nst[0]}"]
        nst[0] += 1; names.append(nm); return r
    def poll_issue(tag, vaddr, sd, soff, imm=0):
        return f"buffer_load_dword {vpoll}, {vaddr}, {sd}, {soff} offen offset:{imm} {SC} ; tag={tag}"
    def poll_check(tag, vaddr, sd, soff, n, imm=0):
        tail.label(Lb("spin" + tag)); tail(f"s_mov_b32 {sspin}, {SPIN}")
        tail.label(Lb("spl" + tag))
        tail(f"buffer_load_dword {vpoll}, {vaddr}, {sd}, {soff} offen offset:{imm} {SC}")
        tail("s_waitcnt vmcnt(0)"); tail(f"v_cmp_gt_u32 vcc, {n}, {vpoll}"); tail("s_nop 0")
        tail(f"s_cbranch_vccz {Lb('back'+tag)}")
        tail(f"s_sub_u32 {sspin}, {sspin}, 1"); tail(f"s_cbranch_scc0 {Lb('spl'+tag)}"); tail(f"s_branch {Lb('back'+tag)}")
        return [f"WAITVM {tag}", f"v_cmp_gt_u32 vcc, {n}, {vpoll}", "s_nop 0", f"s_cbranch_vccnz {Lb('spin'+tag)}", Lb("back" + tag) + ":"]
    def signal(sd, soff, vo=None): return f"buffer_atomic_add {vone}, {vo or vsig}, {sd}, {soff} offen"
    nsig = [0]
    def csignal(cond, ops, after=()):
        nsig[0] += 1; l = Lb(f"sg{nsig[0]}")
        return "\n".join([f"s_cmp_lg_u32 {cond}, 0", f"s_cbranch_scc1 {l}"] + ["NOCOUNT " + x for x in ops] + list(after) + [l + ":", "s_nop 0"])
    def emit_dma(L):
        for x in L:
            k(x)
            if "m0" in x.split(",")[0]: k("s_nop 0")

    sldsc = sdb; scr = S(4, 2); sst = S(4, 2); sxr = S(4, 1); srot = S(); spe3 = S()
    sC = S(4); sWk = S(4); sWv = S(4); sWq = S(4); sDB = S(4); sP = S(4); sPD = S(4)
    sprow = S(); spA = S(); spB = S(); spd = S(); spe1 = S(); spe2 = S(); spstr = S(); spcs = S(); spxs = S(); sxo = S()
    pD = S(2); pA = S(4); pB = S(4); pC = S(4); pE = S(2); pF = sDB[0:2]
    sX = sXN
    k(f"s_cmp_ge_u32 s2, 256"); k(f"s_cbranch_scc1 {E}")
    if echo or opt.get("entry"): k("s_memrealtime s[100:101]")
    if opt.get("perm") == 1:
        k(f"s_and_b32 {st0}, s2, 7"); k(f"s_lshl_b32 {st0}, {st0}, 5"); k(f"s_lshr_b32 s2, s2, 3"); k(f"s_or_b32 s2, s2, {st0}")
    if opt.get("perm") == 2:
        k(f"s_and_b32 {st0}, s2, 7"); k(f"s_lshl_b32 {st0}, {st0}, 3"); k(f"s_bfe_u32 {st1}, s2, 0x30003"); k(f"s_and_b32 s2, s2, 0xc0"); k(f"s_or_b32 s2, s2, {st0}"); k(f"s_or_b32 s2, s2, {st1}")
    k(f"s_load_dwordx4 {pA}, s[0:1], 0")
    k(f"s_load_dwordx4 {pB}, s[0:1], 16")
    k(f"s_load_dwordx4 {pC}, s[0:1], 32")
    k(f"s_load_dwordx2 {pD}, s[0:1], 56")
    k(f"s_load_dwordx2 {pE}, s[0:1], 72")
    k(f"s_load_dwordx2 {pF}, s[0:1], 96")
    k(f"s_load_dwordx2 {pWS}, s[0:1], 104")
    k(f"v_lshrrev_b32 {t0}, 6, v0"); k(f"v_and_b32 {vlane}, 63, v0"); k(f"v_readfirstlane_b32 {swave}, {t0}")
    k(f"v_lshlrev_b32 {vl16}, 4, {vlane}")
    k(f"s_and_b32 {st0}, s2, 7"); k(f"s_lshl_b32 {st0}, {st0}, 2"); k(f"s_lshr_b32 {sh}, s2, 6"); k(f"s_add_u32 {sh}, {sh}, {st0}")
    k(f"s_bfe_u32 {si}, s2, 0x30003")
    TV = [t0, t1, vpoll, vpoll, t0, t1, vpoll, vpoll, vpoll]; touches = []
    def tc():
        return [[f"s_lshr_b32 {sspin}, s2, 3", f"s_lshl_b32 {sspin}, {sspin}, 2", f"s_add_u32 {sspin}, {sspin}, {swave}", f"s_lshl_b32 {sspin}, {sspin}, 14",
                 f"v_lshrrev_b32 {TV[0]}, 2, {vlane}", f"v_and_b32 {TV[1]}, 3, {vlane}", f"v_lshlrev_b32 {TV[1]}, 7, {TV[1]}", f"v_lshl_add_u32 {TV[0]}, {TV[0]}, 10, {TV[1]}",
                 f"buffer_load_dword {TV[2]}, {TV[0]}, {sC}, {sspin} offen offset:256"],
                [f"v_and_b32 {TV[1]}, 2, {vlane}", f"v_lshl_or_b32 {TV[0]}, {TV[1]}, 30, {TV[0]}",
                 f"buffer_load_dword {TV[3]}, {TV[0]}, {sC}, {sspin} offen offset:768"]]
    def tw(sd, row0, nrow, n):
        return [f"v_lshrrev_b32 {TV[4]}, 1, {vlane}", f"v_and_b32 {TV[5]}, 1, {vlane}", f"v_lshlrev_b32 {TV[5]}, 7, {TV[5]}", f"v_lshl_add_u32 {TV[5]}, {TV[4]}, 13, {TV[5]}",
                f"v_and_b32 {TV[4]}, {(~(nrow-1)) & 31}, {TV[4]}", f"v_lshl_or_b32 {TV[5]}, {TV[4]}, 26, {TV[5]}",
                f"s_mul_i32 {sspin}, {srg[0]}, {nrow*8192}", f"s_add_u32 {sspin}, {sspin}, {row0*8192}",
                f"buffer_load_dword {TV[6+n]}, {TV[5]}, {sd}, {sspin} offen"]
    tt = opt.get("touch", {"v": 3.5, "q": 10.4})
    if "c" in tt: touches += [(tt["c"], x) for x in tc()]
    if "k" in tt: touches.append((tt["k"], tw(sWk, 256, 8, 0)))
    if "v" in tt: touches.append((tt["v"], tw(sWv, 0, 16, 1)))
    if "q" in tt: touches.append((tt["q"], tw(sWq, 0, 16, 2)))
    if "p" in tt:
        touches.append((tt["p"], [f"v_bfe_u32 {t0}, {vlane}, 1, 2", f"v_and_b32 {t1}, 1, {vlane}", f"v_lshlrev_b32 {t1}, 7, {t1}", f"v_mad_u32_u24 {t1}, {t0}, {spstr}, {t1}",
                 f"v_bfe_u32 {t0}, {vlane}, 3, 1", f"v_mad_u32_u24 {t1}, {t0}, {spA}, {t1}", f"v_lshrrev_b32 {t0}, 4, {vlane}", f"v_mad_u32_u24 {t1}, {t0}, {spB}, {t1}",
                 f"buffer_load_dword {vpoll}, {t1}, {sP}, {sprow} offen"]))
        assert tt["p"] >= 0
    def tlb_touch(sh_):
        return [f"v_min_u32 {t2}, 39, {vlane}", f"v_lshlrev_b32 {t2}, 21, {t2}", f"v_mov_b32 {t1}, {pWS[1]}",
                f"v_add_co_u32 {t0}, vcc, {pWS[0]}, {t2}", "s_nop 1", f"v_addc_co_u32 {t1}, vcc, 0, {t1}, vcc",
                f"global_load_dword {vpoll}, v[{t0.base}:{t1.base}], off {SC}"]
    if "tlb" in tt: touches.append((tt["tlb"], tlb_touch(21)))
    def code_touch():
        pc = PB.sub(28, 2)
        k(f"s_getpc_b64 {sPD[0:2]}"); k.label(Lb("pc"))
        k(f"s_lshr_b32 {sspin}, s2, 3"); k(f"s_lshl_b32 {sspin}, {sspin}, 2"); k(f"s_add_u32 {sspin}, {sspin}, {swave}")
        k(f"v_lshl_add_u32 {t0}, {vlane}, 7, {sspin}"); k(f"v_lshlrev_b32 {t0}, 7, {t0}")
        k(f"v_min_u32 {t0}, {Lb('codeend')}-{Lb('pc')}-4, {t0}")
        k(f"v_mov_b32 {pc[1]}, {sPD[1]}"); k(f"v_add_co_u32 {pc[0]}, vcc, {sPD[0]}, {t0}"); k("s_nop 1"); k(f"v_addc_co_u32 {pc[1]}, vcc, 0, {pc[1]}, vcc")
        k("s_mov_b64 exec, 63"); k(f"global_load_dword {vpoll}, {pc}, off"); k("s_mov_b64 exec, -1")
    if opt.get("code", 1) == 1: code_touch()
    setup_wstream(k, vW, vtrb, vlane, swave, t0, t1, t2, st0)
    k(f"v_and_b32 {t0}, 15, {vlane}"); k(f"v_lshrrev_b32 {t1}, 4, {vlane}")
    k(f"s_lshl_b32 {sldsc}, {swave}, 14"); k(f"s_add_u32 {sldsc}, {sldsc}, {96*1024}")
    k(f"v_xor_b32 {t2}, {t0}, {t1}"); k(f"v_lshlrev_b32 {t2}, 4, {t2}")
    k(f"v_lshl_add_u32 {vco[0]}, {t1}, 10, {t2}")
    k(f"v_lshl_add_u32 {vcr[0]}, {t0}, 8, {t2}"); k(f"v_add_u32 {vcr[0]}, {sldsc}, {vcr[0]}")
    for q in range(1, 4):
        k(f"v_xor_b32 {vco[q]}, {q*64}, {vco[0]}"); k(f"v_add_u32 {vco[q]}, {q*4096 - q*1024}, {vco[q]}")
        k(f"v_xor_b32 {vcr[q]}, {q*64}, {vcr[0]}")
    k(f"s_lshl_b32 {st0}, {si}, 2"); k(f"s_add_u32 {srg[0]}, {st0}, {swave}")
    k(f"s_sub_u32 {srg[1]}, 60, {st0}"); k(f"s_add_u32 {srg[1]}, {srg[1]}, {swave}")
    ROT = opt.get("rot", 1)
    if opt.get("w5", 1): WSL = [0, 1, 2, 0, 1, 2, 3, 0, 4, 1, 2, 3]; WREL = [8, 7, 15, 23, 31, 31, 31, 39, 47, 55]
    else: WSL = [0, 1, 2] * 4; WREL = [8] + [8 * s_ - 17 for s_ in range(3, 12)]
    k(f"s_add_u32 {srot}, {sh if ROT == 2 else 's2'}, {si}"); k(f"s_and_b32 {srot}, {srot}, {3 if ROT else 0}")
    k(f"s_lshl_b32 {st1}, {srot}, 8"); k(f"s_lshl_b32 {srot}, {srot}, 20")
    k(f"s_lshl_b32 {scr[0]}, {srg[0]}, 16"); k(f"s_add_u32 {scr[0]}, {scr[0]}, {st1}")
    for rb in range(1, 4): k(f"s_add_u32 {scr[rb]}, {scr[0]}, {rb*16384}")
    k(f"s_lshl_b32 {sldsw}, {swave}, 13")
    k(f"s_lshl_b32 {ssc}, s2, 2"); k(f"s_add_u32 {ssc}, {ssc}, {swave}"); k(f"s_lshl_b32 {ssc}, {ssc}, 11")
    k(f"s_lshl_b32 {st0}, {sh}, 8"); k(f"s_sub_u32 {st1}, {4*MB}, {st0}")
    k(f"s_waitcnt lgkmcnt(0)")
    if opt.get("entry"): k(f"v_writelane_b32 v0, s100, {nst[0]}"); nst[0] += 1; names.append("entry")
    k.ext(stamp("start"))
    srd(k, sX, pA[0:2], 2 * MB); srd(k, sC, pA[2:4], 2 * MB)
    srd(k, sWk, pB[2:4], st1, st0)
    XR = [PB.sub(0, 4), PB.sub(4, 4)]; XF = [PB.sub(8, 8), PB.sub(16, 8)]; vs = PB.sub(24, 2); vt_ = PB.sub(26, 2)
    srd(k, sFL, pWS, 512 * 128, WS_FLG)
    k(f"s_cmp_ge_u32 s2, 11"); k(f"s_cselect_b32 {sspin}, 1, 0"); k(f"s_cbranch_scc1 {Lb('nz')}")
    for j in range(4): k(f"v_mov_b32 {XF[0][j]}, 0")
    k(f"s_lshr_b32 {ssoff}, {ssc}, 1")
    k(f"NOCOUNT buffer_store_dwordx4 {XF[0].sub(0,4)}, {vl16}, {sFL}, {ssoff} offen {SC}")
    k.label(Lb("nz"))
    k(f"v_add_u32 {vinf}, {ssc}, {vl16}")
    def cdma(ch):
        L = []
        for rb in range(4):
            L += [f"s_xor_b32 {ssc}, {scr[rb]}, {ch*256}", f"s_add_u32 m0, {sldsc}, {rb*4096}"]
            L += [f"buffer_load_dwordx4 {vco[q]}, {sC}, {ssc} offen offset:{q*1024} lds ; tag=c{ch}q{rb}" for q in range(4)]
        return L
    def creads(ch):
        return [f"ds_read_b128 {R.sub(((4*ch+ks)*4+rb)*4,4)}, {vcr[ks]} offset:{rb*4096}" for rb in range(4) for ks in range(4)]
    def wd(st):
        L = wdma(st, vW, (sWk, sWv, sWq)[st // 4], ssoff, sldsw, f"w{st}", WSL)
        if st < 8: L[0] = f"s_xor_b32 {ssoff}, {srot}, {(st % 4) << 20}"
        if st == 8 and opt.get("xrot", 1):
            L = [f"s_and_b32 {srot}, {sh}, 3", f"s_lshl_b32 {srot}, {srot}, 18"] + [f"v_xor_b32 {vW[p]}, {srot}, {vW[p]}" for p in range(8)] + L
        return L
    fine = opt.get("fine")
    NC0 = opt.get("nc0", 0)
    emit_dma(wd(0)); emit_dma(cdma(0)[:6 * NC0])
    if fine: k.ext(stamp("iw0"))
    srd(k, sWv, pC[0:2], st1, st0); srd(k, sWq, pB[0:2], st1, st0)
    k(f"s_lshl_b32 {st1}, {sh}, 20")
    srd(k, sKV, pWS, MB, st1)
    k(f"s_mov_b32 {sDB[2]}, 256"); k(f"s_mov_b32 {sDB[3]}, 0x20000")
    k(f"v_add_u32 {vl16b}, 4096, {vl16}")
    k(f"v_mov_b32 {vone}, 1")
    k(f"v_cmp_eq_u32 vcc, 0, {vlane}"); k(f"v_mov_b32 {t0}, 0x80000000"); k(f"v_mov_b32 {t1}, 0")
    k(f"v_cndmask_b32 {vsig}, {t0}, {t1}, vcc")
    k(f"s_lshl_b32 {sst[0]}, {srg[0]}, 14")
    for rb in range(1, 4): k(f"s_add_u32 {sst[rb]}, {sst[0]}, {rb*4096}")
    for g in range(2):
        k(f"s_lshl_b32 {sxr[2*g]}, {srg[g]}, 15")
        if opt.get("xrot", 1): k(f"s_and_b32 {st0}, {sh}, 3"); k(f"s_lshl_b32 {st0}, {st0}, 10"); k(f"s_add_u32 {sxr[2*g]}, {sxr[2*g]}, {st0}")
        k(f"s_add_u32 {sxr[2*g+1]}, {sxr[2*g]}, 16384")
    k(f"s_mul_i32 {st2}, {sh}, 7"); k(f"s_add_u32 {st2}, {st2}, {si}"); k(f"s_lshl_b32 {st2}, {st2}, 2"); k(f"s_add_u32 {st2}, {st2}, {swave}")
    k(f"s_sub_u32 {st2}, {st2}, 4"); k(f"s_cmp_eq_u32 {si}, 0"); k(f"s_cselect_b32 {st2}, 1000, {st2}")
    k(f"s_cmp_ge_u32 {st2}, 684"); k(f"s_cbranch_scc1 {Lb('pw1')}")
    k(f"s_mov_b32 {sP[2]}, {4*MB}"); k(f"s_mov_b32 {spe2}, {128*2048}"); k(f"s_mov_b32 {spe3}, {128*4096}")
    k(f"s_cmp_ge_u32 {st2}, 512")
    k(f"s_cselect_b32 {sP[0]}, {pE[0]}, {pC[2]}"); k(f"s_cselect_b32 {sP[1]}, {pE[1]}, {pC[3]}")
    k(f"s_cselect_b32 {sP[2]}, {1376*1024}, {sP[2]}"); k(f"s_cselect_b32 {spe2}, 2048, {spe2}"); k(f"s_cselect_b32 {spe3}, {43*4096}, {spe3}")
    k(f"s_cselect_b32 {spd}, {WS_W2P - WS_WOP}, 0"); k(f"s_cselect_b32 {spA}, 12, 11")
    k(f"s_and_b32 {st0}, {st2}, 511"); k(f"s_lshr_b32 {sprow}, {st0}, 2"); k(f"s_and_b32 {st0}, {st0}, 3")
    k(f"s_lshl_b32 {st1}, {sprow}, {spA}"); k(f"s_add_u32 {spd}, {spd}, {st1}")
    k(f"s_mul_i32 {st1}, {st0}, {spe3}"); k(f"s_lshl_b32 {st1}, {st1}, 1"); k(f"s_add_u32 {spd}, {spd}, {st1}")
    k(f"s_lshl_b32 {sprow}, {sprow}, 15"); k(f"s_lshl_b32 {st0}, {st0}, 8"); k(f"s_add_u32 {sprow}, {sprow}, {st0}")
    k(f"s_mov_b32 {spA}, {16*1024}"); k(f"s_mov_b32 {spB}, {4*1024}"); k(f"s_mov_b32 {spe1}, 1024")
    k(f"s_mov_b32 {spstr}, 1024"); k(f"s_mov_b32 {spcs}, 16"); k(f"s_mov_b32 {spxs}, 8")
    k(f"s_mov_b32 {sPD[2]}, {8*MB}")
    k(f"s_branch {Lb('pdone')}")
    k.label(Lb("pw1"))
    k(f"s_mov_b32 {sP[0]}, {pD[0]}"); k(f"s_mov_b32 {sP[1]}, {pD[1]}")
    k(f"s_cmp_ge_u32 {st2}, 860")
    k(f"s_cselect_b32 {sP[2]}, 0, {512*2752}"); k(f"s_cselect_b32 {sPD[2]}, 0, {8*MB}")
    k(f"s_sub_u32 {st0}, {st2}, 684"); k(f"s_and_b32 {sprow}, {st0}, 15"); k(f"s_lshr_b32 {st0}, {st0}, 4")
    k(f"s_lshl_b32 {spd}, {st0}, 17"); k(f"s_lshl_b32 {st1}, {sprow}, 10"); k(f"s_add_u32 {spd}, {spd}, {st1}")
    k(f"s_add_u32 {spd}, {spd}, {WS_W1P - WS_WOP}")
    k(f"s_mul_i32 {sprow}, {sprow}, {32*2752}")
    k(f"s_lshl_b32 {st0}, {st0}, 8"); k(f"s_add_u32 {sprow}, {sprow}, {st0}")
    k(f"s_mov_b32 {spA}, {4*2752}"); k(f"s_mov_b32 {spB}, {8*2752}"); k(f"s_mov_b32 {spe1}, 16384"); k(f"s_mov_b32 {spe2}, 32768"); k(f"s_mov_b32 {spe3}, 65536")
    k(f"s_mov_b32 {spstr}, 2752"); k(f"s_mov_b32 {spcs}, 8"); k(f"s_mov_b32 {spxs}, 32")
    k.label(Lb("pdone"))
    k(f"s_mov_b32 {sP[3]}, 0x20000")
    k(f"s_add_u32 {sPD[0]}, {pWS[0]}, {WS_WOP}"); k(f"s_addc_u32 {sPD[1]}, {pWS[1]}, 0"); k(f"s_mov_b32 {sPD[3]}, 0x20000")
    k(f"v_lshrrev_b32 {t0}, 4, {vlane}"); k(f"v_and_b32 {t1}, 15, {vlane}"); k(f"v_lshlrev_b32 {t1}, 7, {t1}")
    k(f"v_lshl_add_u32 {vm0}, {t0}, 13, {t1}"); k(f"s_lshl_b32 {st0}, {swave}, 5"); k(f"s_add_u32 {st0}, {st0}, 65536")
    k(f"v_add_u32 {vm0}, {st0}, {vm0}")
    k(f"s_add_u32 {st0}, {sldsw}, 65536"); k(f"v_add_u32 {vm1}, {st0}, {vl16}")
    k(f"v_lshrrev_b32 {t0}, 3, {vlane}"); k(f"v_and_b32 {t1}, 7, {vlane}"); k(f"v_lshlrev_b32 {t1}, 4, {t1}")
    k(f"v_lshl_add_u32 {vm2}, {t0}, 8, {t1}")
    k(f"s_lshr_b32 {sxo}, s2, 1"); k(f"s_lshl_b32 {sxo}, {sxo}, 14"); k(f"s_and_b32 {st0}, s2, 1"); k(f"s_lshl_b32 {st0}, {st0}, 7")
    k(f"s_add_u32 {sxo}, {sxo}, {st0}"); k(f"s_lshl_b32 {st0}, {swave}, 12"); k(f"s_add_u32 {sxo}, {sxo}, {st0}")
    WARM = opt.get("warm", ("P1", "D1", "T", "TE", "DM", "DMP", "DM7"))
    for t_ in WARM:
        k(f"s_branch {Lb('wu'+t_)}"); k.label(Lb("wb" + t_))
    def target(t_, fall=False):
        if t_ in WARM:
            if fall: k(f"s_branch {Lb(t_)}")
            k(".p2align 6"); k.label(Lb("wu" + t_)); k(f"s_branch {Lb('wb'+t_)}")
        k.label(Lb(t_))
    if fine: k.ext(stamp("setup"))
    emit_dma(cdma(0)[6 * NC0:])
    if fine: k.ext(stamp("ic0"))
    for tm, L in touches:
        if tm < 0: k.ext(L)
    for j in range(2): k(f"buffer_load_dwordx4 {XR[j]}, {vinf}, {sX}, 0 offen offset:{1024*j} ; tag=x")
    srd(k, sXN, pWS, 2 * MB, WS_XN)
    mark_ln = len(k.L)
    k("WAITVM x")
    for i in range(2):
        for j in range(4):
            k(f"v_lshlrev_b32 {XF[i][2*j]}, 16, {XR[i][j]}"); k(f"v_and_b32 {XF[i][2*j+1]}, 0xffff0000, {XR[i][j]}")
        k(f"v_add_f32 {vs[i]}, {XF[i][0]}, {XF[i][1]}")
        for j in range(2, 8): k(f"v_add_f32 {vs[i]}, {vs[i]}, {XF[i][j]}")
    allreduce(k, [vs[0], vs[1]], [vt_[0], vt_[1]])
    for i in range(2):
        k(f"v_mul_f32 {vs[i]}, {f2h(1/512)}, {vs[i]}")
        for j in range(8): k(f"v_sub_f32 {XF[i][j]}, {XF[i][j]}, {vs[i]}")
        k(f"v_mul_f32 {vs[i]}, {XF[i][0]}, {XF[i][0]}")
        for j in range(1, 8): k(f"v_fmac_f32 {vs[i]}, {XF[i][j]}, {XF[i][j]}")
    allreduce(k, [vs[0], vs[1]], [vt_[0], vt_[1]])
    for i in range(2):
        k(f"v_mov_b32 {vt_[i]}, {f2h(1e-5)}"); k(f"v_fmac_f32 {vt_[i]}, {f2h(1/512)}, {vs[i]}"); k(f"v_rsq_f32 {vs[i]}, {vt_[i]}")
    k("s_nop 0")
    for i in range(2):
        k(f"v_mul_f32 {vs[i]}, {f2h(QSCALE)}, {vs[i]}")
        for j in range(8): k(f"v_mul_f32 {XF[i][j]}, {XF[i][j]}, {vs[i]}")
        for j in range(4): k(f"v_cvt_pk_bf16_f32 {XR[i][j]}, {XF[i][2*j]}, {XF[i][2*j+1]}")
        k(f"ds_write_b128 {vm0}, {XR[i]} offset:{16*i}")
    lnq = [x for x in k.L[mark_ln:] if not x.startswith("s_nop")]; del k.L[mark_ln:]
    w1_ = wd(1); cr = creads(0)
    for q in range(4):
        for _ in range(2):
            while not ismem(w1_[0]): k(w1_.pop(0))
            k(w1_.pop(0))
        k(f"WAITVM c0q{q}" + (" lgkm=4" if q == 3 else "")); k.ext(cr[4 * q:4 * q + 4])
    k(csignal(sspin, [signal(sDB, 0)]))
    k.ext(stamp("ln"))
    k("s_barrier"); k("s_waitcnt lgkmcnt(4)")
    k.ext(trreads(0, 0, WF, vtr, vtrb, WSL))
    xnrd = [f"ds_read_b128 {XF[0].sub(4*j,4)}, {vm1} offset:{1024*j}" for j in range(2)]
    xnst = [f"buffer_store_dwordx4 {XF[0].sub(4*j,4)}, {vm2}, {sXN}, {sxo} offen offset:{2048*j} {SC} ; tag=z" for j in range(2)]
    k(f"s_lshr_b32 {st2}, s2, 4"); k(f"s_lshl_b32 {st2}, {st2}, 7"); k(f"s_add_u32 {st2}, {st2}, {320*128}")
    k(f"s_lshl_b32 {st0}, {si}, 1"); k(f"s_sub_u32 {st0}, 15, {st0}"); k(f"v_and_b32 {t2}, 1, {vlane}")
    k(f"v_mul_u32_u24 {t2}, {st0}, {t2}"); k(f"v_add_u32 {t2}, {si}, {t2}"); k(f"v_mov_b32 {vinf}, 0")
    p0adr = [f"v_lshlrev_b32 {vm1}, 7, {t2}", f"v_add_u32 {vm1}, {320*128}, {vm1}"]
    k("s_waitcnt lgkmcnt(0)")
    k.ext(stamp("go"))

    S2 = Alloc('s', sC.base, sWq.base)
    pool = [r.sub(2 * i, 2) for r in (sDB, scr, sst, pA, pB, pC, pD, pE) for i in range(r.n // 2)]
    assert all(p.base % 2 == 0 for p in pool)
    S3 = lambda n: pool.pop(0)
    skv = S2(); scnt = S2(); snS = S2(); sflag = S2(); sctx = S2(2, 1); mC = S2(2); sCT = S2(4)
    mA = [S3(2) for _ in range(4)]; mB = [S3(2) for _ in range(4)]; mT = [S3(2) for _ in range(4)]; mU = S3(2); mX = S3(2)
    SB = [WFr, PB.sub(0, 32)]; NM = PB.sub(32, 16); MK = PB.sub(48, 16); TMP = X16
    vra, vrc, vthr = vtr, vm2, vm0
    Q = a(0, 64); FK = a(64, 32); FV = a(128, 32); LA = a(96, 16); ONES = a(112, 4)
    O = lambda grp, db, qb: ACC.sub(grp * 64 + (db * 2 + qb) * 4, 4)
    Sq = lambda par, grp, qb: SB[par].sub((grp * 2 + qb) * 8, 8)
    St = lambda par, grp, qb, kb: SB[par].sub(grp * 16 + kb * 8 + qb * 4, 4)
    SMF = opt.get("smf", 1); SPA = a(116, 4); vidx = t2
    Qf = lambda grp, qb, ks: Q.sub(((grp * 2 + qb) * 4 + ks) * 4, 4)
    T = lambda cb, rb: ACC.sub((cb * 4 + rb) * 4, 4)
    XR_ = opt.get("xrot", 1)
    def xloads(ch):
        L = []
        if XR_:
            for ks in range(4):
                for rb in range(4):
                    L += [f"s_xor_b32 {ssc}, {sxr[rb]}, {ch*4096 + ks*1024}", f"buffer_load_dwordx4 {R.sub(((4*ch+ks)*4+rb)*4,4)}, {vl16}, {sXN}, {ssc} offen {SC} ; tag=x{ch}"]
            return L
        for rb in range(4):
            L.append(f"s_add_u32 {ssc}, {sxr[rb]}, {ch*4096}")
            L += [f"buffer_load_dwordx4 {R.sub(((4*ch+ks)*4+rb)*4,4)}, {vl16}, {sXN}, {ssc} offen offset:{ks*1024} {SC} ; tag=x{ch}" for ks in range(4)]
        return L
    def kvdma(j, tag):
        L = []
        for p in range(8):
            if p % 4 == 0: L.append(f"s_add_u32 m0, {sldsw}, {(j%4)*32768 + (p//4)*4096}")
            L.append(f"buffer_load_dwordx4 {vl16 if p < 4 else vl16b}, {sKV}, {scnt if j == 0 else skv} offen offset:{(p%4)*1024} {SC} lds ; tag={tag}")
        L.append(f"s_add_u32 {skv}, {skv}, 16384")
        return L
    presetup = []
    def prep_dma():
        presetup.extend([f"v_lshrrev_b32 {t0}, 4, {vlane}", f"v_bfe_u32 {t1}, {vlane}, 2, 2", f"v_and_b32 {t2}, 3, {vlane}",
              f"v_mul_u32_u24 {vcr[0]}, {spcs}, {t2}", f"v_add_u32 {vcr[1]}, {spxs}, {vcr[0]}",
              f"v_and_b32 {t2}, 1, {t0}", f"v_lshl_or_b32 {t2}, {t2}, 2, {t1}", f"v_lshlrev_b32 {t2}, 5, {t2}",
              f"v_lshl_or_b32 {t2}, {t1}, 8, {t2}", f"v_lshl_or_b32 {t2}, {t0}, 11, {t2}",
              f"s_add_u32 {sldsc}, {sldsw}, 131072", f"v_or_b32 {t2}, {sldsc}, {t2}",
              f"v_xor_b32 {vcr[0]}, {vcr[0]}, {t2}", f"v_xor_b32 {vcr[1]}, {vcr[1]}, {t2}",
              f"v_and_b32 {t1}, 15, {vlane}", f"v_lshlrev_b32 {t2}, 1, {t0}", f"v_xor_b32 {t1}, {t1}, {t2}", f"v_lshlrev_b32 {t1}, 4, {t1}",
              f"v_mad_u32_u24 {vco[0]}, {t0}, {spstr}, {t1}", f"v_xor_b32 {t1}, 128, {t1}", f"v_mad_u32_u24 {vco[1]}, {t0}, {spstr}, {t1}"])
        L = []
        for p in range(8):
            L.append(f"s_add_u32 m0, {sldsc}, {p*1024}")
            if p % 2: L.append(f"s_add_u32 {sxo}, {sprow}, {spA}")
            elif p: L.append(f"s_add_u32 {sprow}, {sprow}, {spB}")
            L.append(f"buffer_load_dwordx4 {vco[(p >> 1) & 1]}, {sP}, {sxo if p % 2 else sprow} offen lds ; tag=pp")
        return L
    def att_setup():
        L = Kern("x")
        srd(L, sCT, pWS, 16 * MB, WS_CTX)
        L(f"v_mov_b32 {vinf}, {NEGINF}")
        L(f"s_or_b32 {st0}, {sldsw}, 0x10000"); L(f"v_or_b32 {vrc}, {st0}, {vl16}")
        L(f"s_and_b32 {st0}, {swave}, 1"); L(f"s_lshl_b32 {skv}, {st0}, 13")
        L(f"s_cmp_ge_u32 {swave}, 2"); L(f"s_cselect_b32 {st1}, {512*1024-16384}, 0"); L(f"s_add_u32 {skv}, {skv}, {st1}"); L(f"s_add_u32 {skv}, {skv}, 8192")
        L(f"s_cmp_eq_u32 {swave}, 2"); L(f"s_cselect_b32 {scnt}, 0, {skv}")
        for g in range(2):
            L(f"s_lshr_b32 {st1}, {srg[g]}, 1"); L(f"s_lshl_b32 {sctx[g]}, {st1}, 19")
            L(f"s_lshl_b32 {st1}, {sh}, 14"); L(f"s_add_u32 {sctx[g]}, {sctx[g]}, {st1}")
            L(f"s_lshl_b32 {st1}, {st0}, 11"); L(f"s_add_u32 {sctx[g]}, {sctx[g]}, {st1}")
        L(f"s_lshr_b32 {snS}, {srg[0]}, 1"); L(f"s_add_u32 {snS}, {snS}, 1")
        L(f"s_mov_b32 {sflag}, 0")
        L(f"v_and_b32 {t0}, 15, {vlane}"); L(f"v_lshrrev_b32 {t1}, 4, {vlane}"); L(f"v_lshlrev_b32 {t1}, 2, {t1}"); L(f"v_sub_u32 {t0}, {t0}, {t1}")
        for r in range(4): L(f"v_cmp_le_i32 {mT[r]}, {r}, {t0}")
        L(f"s_cmp_eq_u32 {st0}, 0"); L(f"s_cselect_b64 {mC}, 0, -1")
        for r in range(4):
            L(f"s_or_b64 {mA[r]}, {mT[r]}, {mC}"); L(f"s_and_b64 {mB[r]}, {mT[r]}, {mC}")
        L(f"v_mov_b32 {t0}, 0x3f803f80"); L(f"v_mov_b32 {t1}, 0")
        for j in range(4): L(f"v_accvgpr_write_b32 {ONES[j]}, {t0}")
        for r in range(4): L(f"v_cndmask_b32 {MK[r]}, {vinf}, {t1}, {mA[r]}")
        L(f"v_mov_b32 {vthr}, {f2h(thr)}")
        if SMF:
            L(f"v_lshrrev_b32 {t1}, 4, {vlane}"); L(f"v_xor_b32 {t1}, {t1}, {vlane}"); L(f"v_bfe_u32 {t1}, {t1}, 1, 1"); L(f"v_add_u32 {t1}, -1, {t1}"); L(f"v_and_b32 {t1}, {t0}, {t1}")
            for j in range(4): L(f"v_accvgpr_write_b32 {SPA[j]}, {t1}")
            for j in range(8): L(f"v_accvgpr_write_b32 {LA[j]}, 0")
            L(f"v_and_b32 {t1}, 1, {vlane}"); L(f"v_mul_u32_u24 {t1}, 0xaaaa, {t1}"); L(f"v_add_u32 {vidx}, 0x4444, {t1}")
        return L.L
    streams = []
    def add_ops(L, rel, dl, dma=False):
        pre = []; n = 0; out = []
        for x in L:
            if x.startswith("buffer_") or x.startswith("global_"):
                out.append(dict(rel=rel[n] * 16, dl=dl[n] * 16, pre=pre, op=x, post=[], dma=dma)); pre = []; n += 1
            else: pre.append(x)
        assert n == len(rel) == len(dl), (n, len(rel))
        out[-1]["post"] = pre
        streams.append(out)
    lin = lambda t0_, t1_, n: [t0_ + (t1_ - t0_) * i / n for i in range(n)]
    rep = lambda L, n: [x for x in L for _ in range(n)]
    PBf = lambda n: PB.sub(4 * n, 4)
    PA = a(160, 32)
    kst = [f"buffer_store_dwordx4 {PBf(s*4+rb)}, {vl16}, {sKV}, {sst[rb]} offen offset:{s*1024} {STF} ; tag=kst" for s in range(4) for rb in range(4)]
    vst = [f"buffer_store_dwordx4 {PBf(cb*2+t)}, {vl16}, {sKV}, {sst[2*t+cb//4]} offen offset:{(cb%4)*1024} {STF} ; tag=vst" for cb in range(8) for t in range(2)]
    pst = [f"s_add_u32 {sprow}, {spd}, {spe3}"]
    for x in range(8):
        pst.append(f"buffer_store_dwordx4 {PA.sub(4*x,4)}, {vl16}, {sPD}, {spA if x % 2 else spd} offen {STF} ; tag=pst")
        if x % 2 == 0: pst.append(f"s_add_u32 {spA}, {spd}, {spe1}")
        elif x % 4 == 1: pst.append(f"s_add_u32 {spd}, {spd}, {spe2}")
        elif x == 3: pst.append(f"s_mov_b32 {spd}, {sprow}")
    sfl1 = st2
    LC = opt.get("lc", 4.5); SCST = opt.get("sc", 11.5); SMIN = opt.get("smin", 14)
    add_ops(cdma(1) + cdma(2) + cdma(3), rep([0, 0, 0, 0, 5, 6, 7, 8, 13, 14, 15, 16], 4), rep([0, 1, 2, 3, 7, 8, 9, 10, 15, 16, 17, 18], 4), True)
    WL = opt.get("wl", 9)
    add_ops(sum((wd(st) for st in range(2, 12)), []), rep(WREL, 8),
            rep([4, 11, 19], 8) + sum((lin(8 * st - 1 - WL - 6, 8 * st - 1 - WL + 2, 8) for st in range(5, 12)), []), True)
    add_ops(xnst, [8, 8], [10.5, 10.6])
    add_ops([poll_issue("pz", vinf, sDB, 0)], [13], [13])
    add_ops(kst, [max(27.2 + 2 * (n // 4), opt.get("k0", 27)) for n in range(16)], lin(28, opt.get("k1", 42), 16))
    for tm, L in touches:
        if tm >= 0: add_ops(L, [tm], [tm])
    add_ops([poll_issue("p0", vm1, sFL, 0)], [33], [33])
    add_ops(sum((xloads(c) for c in range(4)), []), rep([40, 48, 56, 64], 16),
            lin(42, 50, 16) + lin(50, 58, 16) + lin(58, 74, 16) + lin(opt.get("x3", 74), 83, 16))
    add_ops([f"s_add_u32 {sst[i]}, {sst[i]}, {512*1024}" for i in range(4)] + vst, [58.2 + n // 2 for n in range(16)], lin(58, opt.get("v1", 77), 16))
    add_ops(["WAITVM vst", f"s_lshl_b32 {sfl1}, {sh}, 8", f"s_add_u32 {sfl1}, {sfl1}, 32768", signal(sFL, sfl1)], [opt.get("ts1", 84.5)], [0])
    ppd = prep_dma()
    tp1 = opt.get("tp1", 88)
    add_ops([f"v_mov_b32 {vm1}, 0", poll_issue("p1", vm1, sFL, sfl1)], [tp1], [0])
    add_ops(poll_check("p1", vm1, sFL, sfl1, 32) + kvdma(0, "kv0") + kvdma(1, "kv1"), [tp1 + 2.5] * 16, [90] * 16, True)
    slots = {}; Tp = 1.0; owner = None; lastst = -99
    while any(streams):
        cand = []
        for sm in streams:
            if not sm: continue
            o = sm[0]
            if o["dma"] and owner is not None and owner is not sm: continue
            r = o["rel"]
            if "store_dwordx4" in o["op"]: r = max(r, lastst + SMIN)
            cand.append((max(r, Tp), o["dl"], id(sm), sm))
        now = min(c[0] for c in cand)
        sm = min((c for c in cand if c[0] <= now + 1), key=lambda c: c[1])[3]
        o = sm.pop(0)
        g = int(math.ceil(max(now, o["rel"])))
        while g % 16 == 15 or g in slots: g += 1
        slots[g] = o
        big = "dwordx4" in o["op"]
        st_ = "store" in o["op"]
        lc_ = opt.get("lc2", 5.0) if 40 * 16 <= g < 88 * 16 else LC
        Tp = max(now, g - 1) + ((SCST if st_ else lc_) if big else (2 if "atomic" in o["op"] or "tag=p" in o["op"] else 8))
        if big and st_: lastst = g
        if o["dma"]: owner = sm if sm and not any("m0" in x for x in sm[0]["pre"]) else None
    assert max(slots) < 96 * 16 - 2, max(slots)
    lastv = max(79 * 16, max(g for g in slots if "tag=vst" in slots[g]["op"])); firstkv = min(g for g in slots if "tag=kv0" in slots[g]["op"])
    assert lastv < opt.get("ts1", 84.5) * 16 - 8
    if opt.get("showsched"):
        for g in sorted(slots):
            m_ = re.search(r"tag=(\S+)", slots[g]["op"]); print(f"{g/16:.2f}:{m_.group(1) if m_ else '-'}", end=" ")
        print()
    sW = sXN; sow = ssc; s7 = mU[0]
    Wd = lambda ks, cb: a(160 + ks * 8 + cb * 4, 4) if ks < 12 else v(32 + (ks - 12) * 8 + cb * 4, 4) if ks < 20 else a((ks - 20) * 8 + cb * 4, 4)
    def wl(s): return [f"buffer_load_dwordx4 {Wd(2*s+c//2,c%2)}, {vl16}, {sW}, {sow} offen offset:{c*1024} {SC} ; tag=dw{s}" for c in range(4)] + [f"s_xor_b32 {sow}, {sow}, {(s ^ (s + 1)) * 4096}"]
    U = Kern("x")
    srd(U, sW, pWS, 4 * MB, WS_WOP)
    U(f"s_and_b32 {st0}, {si}, 3"); U(f"s_lshl_b32 {st0}, {st0}, 2"); U(f"s_add_u32 {st0}, {st0}, {swave}"); U(f"s_lshl_b32 {sow}, {st0}, 18")
    U(f"s_bfe_u32 {st0}, s2, 0x20001"); U(f"s_lshl_b32 {st0}, {st0}, 16"); U(f"s_add_u32 {sow}, {sow}, {st0}")
    DR = 3 if opt.get("drot", 0) else 0
    U(f"s_and_b32 {st0}, {si}, {DR}"); U(f"s_lshl_b32 {st0}, {st0}, 14"); U(f"s_add_u32 {sow}, {sow}, {st0}")
    U(f"v_and_b32 {vm1}, 31, {vlane}"); U(f"v_lshlrev_b32 {vm1}, 8, {vm1}"); U(f"v_add_u32 {vm1}, 32768, {vm1}"); U(f"s_mov_b32 {s7}, 1")
    wset = glue(U.L)
    drainq = []; auxq = []; carry = []; npk = [0]
    def drain_q(ta, tb, dst):
        p = PB.sub(4 * (npk[0] % 4), 4); npk[0] += 1
        return pack(p, ta, tb) + [f"v_accvgpr_write_b32 {dst[j]}, {p[j]}" for j in range(4)]
    k(trreads(0, 1, WF, vtr, vtrb, WSL)[0])
    order = sorted(slots)
    k.ext(slots[order[0]]["pre"]); slots[order[0]]["pre"] = []
    allG = []
    for st in range(12):
        for cb in range(8):
            t = st * 8 + cb
            G = Gaps(cb_mfmas(st, cb, ACC, WF, R, swap=4 <= st < 8))
            for g in range(16):
                if 16 * t + g in slots: G.put(g, slots[16 * t + g]["op"])
            free = [g for g in range(15) if not G.g[g]]
            extra = []; w_ = None
            if st < 3 and cb >= 4:
                q_ = cb - 4; w_ = f"WAITVM c{st+1}q{q_}"; extra = creads(st + 1)[4 * q_:4 * q_ + 4]
            pos = free[:8]
            if extra: pos = [free[0], free[0], free[1], free[1]] + free[2:6]
            if t < 95:
                for g, x in zip(pos, trreads((t + 1) // 8, (t + 1) % 8, WF, vtr, vtrb, WSL)[1:]): G.put(g, x)
            if w_: G.put(pos[-1], w_)
            for g, x in zip(free[6:10], extra): G.put(g, x)
            if t < 94: G.put(15, trreads((t + 2) // 8, (t + 2) % 8, WF, vtr, vtrb, WSL)[0])
            if t < 95:
                if cb == 7 and 7 <= st <= 10: G.put(15, f"WAITVM x{st-7} lgkm=0")
                else: G.put(15, "s_waitcnt lgkmcnt(0)")
            allG.append(G)
    prev = 0
    def place(L, lo, hi):
        g = lo
        for x in L:
            while g < hi and allG[g // 16].cost(g % 16) + icost(x) > 8: g += 1
            allG[g // 16].put(g % 16, x)
    for n, gpos in enumerate(order):
        L = (slots[order[n - 1]]["post"] if n else []) + slots[gpos]["pre"]
        lo = prev
        if slots[gpos]["pre"] and slots[gpos]["pre"][0].startswith("WAITVM"): lo = max(lo, gpos - 8)
        place(L, lo, gpos - 1)
        prev = gpos
    place(slots[order[-1]]["post"], prev, 96 * 16 - 1)
    for st in range(12):
        if st == 5: auxq += presetup
        for cb in range(8):
            G = allG[st * 8 + cb]
            if cb == 7 and st < 11:
                tags = f"w{st+1}" + (",z" if st == 2 else "")
                k(f"WAITVM {tags}"); k("s_barrier")
                if st == 2: auxq += poll_check("pz", vinf, sDB, 0, 44) + [csignal(swave, [signal(sFL, st2)])]
            if st * 8 + cb == lastv // 16 + 1: auxq += glue(att_setup())
            if st * 8 + cb == firstkv // 16 - 1: assert not auxq
            if st * 8 + cb == firstkv // 16 + 1: auxq += wset
            if st == 4 and cb == 6: auxq += poll_check("p0", vm1, sFL, 0, 16)
            if st == 0 and cb < 7 and cb >= opt.get("ln0", 2):
                nper = -(-len(lnq) // (7 - cb)); g = 0
                for n_ in range(nper):
                    G.put((n_ * 15) // nper, lnq.pop(0))
            if st == 0 and cb == 7:
                assert not lnq
                for g_, x in zip((12, 13), xnrd): G.put(g_, x)
            if st == 1 and cb == 0: auxq += p0adr
            sched(G, auxq, 0, 14)
            sched(G, drainq, 1, 14)
            G.emit(k)
            if st == 3 and cb % 2 == 1:
                for rb in range(4): drainq += pack(PBf((cb // 2) * 4 + rb), T(cb - 1, rb), T(cb, rb))
            if st == 7:
                for t in range(2): drainq += pack(PBf(cb * 2 + t), T(cb, 2 * t), T(cb, 2 * t + 1))
            if st == 11 and cb % 2 == 1:
                for rb in range(4): drainq += drain_q(T(cb - 1, rb), T(cb, rb), Qf(rb // 2, rb % 2, cb // 2))
        k.ext(stamp(f"st{st}"))
    assert not auxq
    seen = {}
    for n, ln in enumerate(k.L):
        if ln.startswith("v_cvt_pk") or ln.startswith("ds_read_b64_tr"): seen[ln.split()[1].rstrip(",")] = n
        if "tag=kst" in ln or ("tag=vst" in ln and str(sKV) in ln):
            b = int(re.search(r"v\[(\d+):", ln).group(1))
            assert all(seen.pop(f"v{b+j}", None) is not None for j in range(4)), ln

    OFF = {"K0": 0, "K1": 8192, "V0": 16384, "V1": 24576}
    def rd(dst, f, src, va): return f"ds_read_b128 {dst.sub(4*f,4)}, {va} offset:{OFF[src] + f*1024}"
    def ph_pv(groups, par, first=False, lfirst=False):
        mf = []; lu = {}; fu = {}
        def lsum():
            for g in groups:
                if SMF:
                    mf.append(f"v_smfmac_f32_16x16x64_bf16 {LA.sub(4*g,4)}, {SPA}, {SB[par].sub(16*g,8)}, {vidx}"); continue
                for qb in range(2):
                    l = LA.sub((g * 2 + qb) * 4, 4)
                    mf.append(f"{MF} {l}, {ONES}, {St(par,g,qb,0)}, {'0' if first else l}")
        if lfirst: lsum()
        for db in range(8):
            for g in groups:
                for qb in range(2):
                    fu.setdefault(db, len(mf)); lu[db] = len(mf)
                    mf.append(f"{MF} {O(g,db,qb)}, {FV.sub(4*db,4)}, {St(par,g,qb,0)}, {'0' if first else O(g,db,qb)}")
        if not lfirst: lsum()
        return mf, fu, lu, FV
    def ph_qk(groups, par, cfun):
        mf = []; lu = {}; fu = {}
        for kb in range(2):
            for g in groups:
                for qb in range(2):
                    d = St(par, g, qb, kb)
                    for ks in range(4):
                        f = 4 * kb + ks
                        fu.setdefault(f, len(mf)); lu[f] = len(mf)
                        mf.append(f"{MF} {d}, {FK.sub(4*f,4)}, {Qf(g,qb,ks)}, {cfun(g,qb,kb) if ks == 0 else d}")
        return mf, fu, lu, FK
    cplain = lambda g, qb, kb: NM.sub((g * 2 + qb) * 4, 4)
    def maskops(which, mtri, mc, base, full=True):
        L = []; tiles = {}
        for kb in range(2):
            for qb in range(2):
                t = MK.sub((qb * 2 + kb) * 4, 4); tiles[(qb, kb)] = t
                if kb < qb and which == "a" and not full:
                    tiles[(qb, kb)] = None; continue
                for r in range(4):
                    if kb == qb: m = mtri[r]
                    elif kb > qb: m = mc if which == "a" else "none"
                    else: m = None if which == "a" else mc
                    if m is None: L.append(f"v_mov_b32 {t[r]}, {base(qb, r)}")
                    elif isinstance(m, str): L.append(f"v_mov_b32 {t[r]}, {vinf}")
                    else: L.append(f"v_cndmask_b32 {t[r]}, {vinf}, {base(qb, r)}, {m}")
        return L, tiles
    def waits_last(G):
        for g in range(G.n):
            w = [y for y in G.g[g] if y.startswith("s_waitcnt")]
            G.g[g] = [y for y in G.g[g] if not y.startswith("s_waitcnt")] + w
    def build(phases, va):
        mf = []; start = []
        for p in phases:
            start.append(len(mf)); mf += p[0]
        start.append(len(mf))
        G = Gaps(mf)
        for g, m in enumerate(mf):
            if m.startswith("v_smfmac"): G.put(g, "; (longer issue)")
        for pi, (m, fu, lu, regs, nxt, w) in enumerate(phases):
            if nxt:
                for f in range(8): G.put(start[pi] + lu[f], rd(regs, f, nxt, va))
            if w == "split":
                G.put(start[pi] + fu[0] - 1, "s_waitcnt lgkmcnt(4)"); G.put(start[pi] + fu[4] - 1, "s_waitcnt lgkmcnt(0)")
            elif w is not None: G.put(start[pi] - 1, f"s_waitcnt lgkmcnt({w})")
        return G, start
    def softmax(G, lo, hi, par, groups, pre=None):
        els = [(g, qb, kb, r) for kb in range(2) for g in groups for qb in range(2) for r in range(4)]
        n = len(els)
        free = [x for x in range(lo, hi) if G.cost(x) == 0]
        if len(free) >= n: pos = [free[(i * len(free)) // n] for i in range(n)]
        else:
            cand = sorted((G.cost(x) + 8 * rep, x) for x in range(lo, hi) for rep in range(2))
            pos = sorted(x for _, x in cand[:n])
        gcv = lo
        for (g, qb, kb, r), p in zip(els, pos):
            s = St(par, g, qb, kb)
            G.put(p, f"v_exp_f32 {s[r]}, {s[r]}")
        for (g, qb, kb, r), p in zip(els, pos):
            if r % 2 == 1:
                s = St(par, g, qb, kb); c = 2 * kb + r // 2
                lo_ = max(gcv, p + 1)
                gcv = G.add(f"v_cvt_pk_bf16_f32 {St(par,g,qb,0)[c]}, {s[r-1]}, {s[r]}", lo_, min(hi, lo_ + opt.get("cvl", 10)))
    rl = TMP.sub(0, 2)
    def recip(g):
        rd_ = [f"v_accvgpr_read_b32 {rl[qb]}, {LA[(g*2+qb)*4]}" for qb in range(2)]
        if SMF:
            rd_ = [f"v_accvgpr_read_b32 {TMP[(j%2)*2 + j//2]}, {LA[4*g+j]}" for j in range(4)] + [f"v_add_f32 {rl[qb]}, {rl[qb]}, {TMP[2+qb]}" for qb in range(2)]
        return rd_ + [
            f"v_add_f32 {t1}, {rl[0]}, {rl[1]}", f"v_cmp_nlt_f32 vcc, {t1}, {vthr}", f"v_rcp_f32 {rl[0]}, {rl[0]}", f"v_rcp_f32 {rl[1]}, {rl[1]}"]
    def pair(pvA, qkA, smA, pvB, qkB, smB, dma=True, mask=None, loop=None, endwait=8, extra=(), prep=False, wpre=(),
             first=False, static=None, lastk=False, fin=None, wmix=(), head=()):
        va = static[0] if static else vra
        ph = []; pm = []
        def cf(which):
            if mask is None: return cplain
            L, tiles = maskops(which, mA if which == "a" else mB, mC, lambda qb, r: NM[(mask * 2 + qb) * 4 + r], full=False)
            pm.append((len(ph) - 1, L))
            return lambda g, qb, kb: (tiles[(qb, kb)] or cplain(g, qb, kb)) if g == mask else cplain(g, qb, kb)
        ph.append(ph_pv(pvA, 0, first) + ("V0", None))
        if qkA: c = cf("a"); ph.append(ph_qk(qkA, 0, c) + ("K0", 8))
        nb = len(ph)
        if qkB:
            ph.append(ph_pv(pvB, 1) + ("V1", 8))
            c = cf("b"); ph.append(ph_qk(qkB, 1, c) + (None if lastk else "K1", 8))
        else: ph.append(ph_pv(pvB, 1, lfirst=True) + (None, "split"))
        G, start = build(ph, va)
        n = G.n
        packed = static and opt.get("pack", 1)
        if packed:
            for pi in range(4):
                rds = [(g, x) for g in range(start[pi], start[pi + 1]) for x in G.g[g] if x.startswith("ds_read")]
                for g, x in rds: G.g[g].remove(x)
                for f, (g, x) in enumerate(rds): G.put(rds[f | 1][0], x)
            G.g[start[2] - 1].remove("s_waitcnt lgkmcnt(8)"); G.put(start[2] - 2, "s_waitcnt lgkmcnt(6)")
            G.put(n - 2, f"s_waitcnt vmcnt({endwait}) lgkmcnt(6)"); endwait = None
        G.put(0, "s_barrier")
        if not static: G.put(0, f"v_xor_b32 {vra}, m0, {vrc}")
        for x in head: G.put(1, x); G.put(1, "; (several)")
        single = len(pvA) == 1
        def putmem(x, g, own):
            if own:
                while g < n - 2 and G.cost(g) != 0: g += 1
            else:
                while g < n - 2 and not (G.cost(g) == 4 and G.g[g][0].startswith("ds_read")): g += 1
            G.put(g, x); return g
        later = []
        d0 = 0
        d1 = n
        if prep == 1:
            g_ = 0; c = 0; hl_ = [f"s_mov_b32 {st0}, m0"]
            for x in ppd:
                if ismem(x):
                    g_ = putmem(x, max(g_ + 2, 2 + c * opt.get("pps", 9)), True); c += 1
                    for y in hl_: G.put(g_ - 1, y)
                    hl_ = []
                else: hl_.append(x)
            G.put(g_ + 1, f"s_mov_b32 m0, {st0}")
            d0 = g_ + 4
        if prep == 2:
            G.put(1, "s_waitcnt vmcnt(8)"); g = 2
            for x_ in range(8):
                if g % 4 == 3: g += 1
                for hf in range(2): G.put(g, f"ds_read_b64_tr_b16 {PA.sub(4*x_+2*hf,2)}, {vcr[x_%2]} offset:{hf*1024}")
                if x_ < 6: G.put(g, f"v_xor_b32 {vcr[x_%2]}, {64*((x_//2) ^ (x_//2+1))}, {vcr[x_%2]}")
                g += 1
            g_ = 0; c = 0
            G.put(20, "s_waitcnt lgkmcnt(2)")
            for x in pst:
                if ismem(x): g_ = putmem(x, 21 + c * opt.get("pss", 9), True); c += 1
                else: G.put(g_ + 1 if c else 2, x)
            d0 = g_ + 2
        mem = list(wpre); g_ = 0; c = 0
        for x in mem:
            if ismem(x): g_ = 1 + 4 * c; G.put(g_, x); c += 1; d0 = 1 if packed else d0
            else: G.put(g_ + 2, x)
        if dma:
            D = [f"buffer_load_dwordx4 {vl16 if p < 4 else vl16b}, {sKV}, {skv} offen offset:{(p%4)*1024} {SC} lds" for p in range(8)]
            pos = []; lo = 2 if static else 1
            for p in range(8):
                g = putmem(D[p], max(lo, d0 + 1 + (p * (d1 - d0 - 6)) // 8), not single or packed)
                pos.append(g); lo = g + (2 if p == 3 else 1)
            nm_ = sum(ismem(x) for x in wmix); c = 0; g_ = 1
            for x in wmix:
                if ismem(x): g_ = putmem(x, max(g_ + 2, 4 + (c * (n - 12)) // nm_), True); c += 1; assert g_ < n - 2
                else: G.put(g_ + 1, x)
            if static:
                G.put(0, f"s_mov_b32 m0, {static[1]}")
                later = [(f"s_add_u32 m0, {static[1]}, 4096", pos[3], pos[4] - 1), (f"s_add_u32 {skv}, {skv}, 16384", pos[7], n - 1)]
            else:
                later = [(f"s_add_u32 m0, m0, 4096", pos[3], pos[4] - 1),
                         (f"s_add_u32 {skv}, {skv}, 16384", pos[7], d1 - 1), (f"s_add_u32 m0, m0, {32768-4096}", pos[7], d1 - 1)]
        elif fin is None or qkA: later = [(f"s_add_u32 m0, m0, 32768", 1, n - 1)]
        if smA: softmax(G, 1, start[nb] - 2, 1, smA)
        if smB: softmax(G, start[nb], n - 2, 0, smB)
        for (pi, L) in pm: G.chain(L, start[pi] + 1, start[pi + 1] - 3)
        if fin is not None: G.chain(recip(fin), (start[nb + 1] if qkB else start[nb] + 2) + 4, n - 1)
        if fin == 0: G.chain(tset, start[nb], n - 1)
        gl = 0
        for x, lo, hi in later: gl = G.add(x, lo, hi)
        if later and not static: gl = G.add("s_and_b32 m0, m0, 0x1ffff", gl, d1 - 1)
        if loop: G.add(f"s_sub_u32 {scnt}, {scnt}, 1", gl, n - 2)
        waits_last(G)
        k.ext(extra); G.emit(k)
        if endwait is not None: k(f"s_waitcnt vmcnt({endwait}) lgkmcnt({0 if lastk else 8})")
        if loop: k(f"s_cbranch_scc0 {loop}")
    def epilogue(kk, g, lsrc=None):
        if lsrc is None:
            kk(f"s_cmp_lg_u64 vcc, 0"); kk(f"s_cselect_b32 {st0}, {1 << g}, 0"); kk(f"s_or_b32 {sflag}, {sflag}, {st0}")
        else:
            for qb in range(2): kk(f"v_rcp_f32 {rl[qb]}, {lsrc[qb]}")
        n = 0
        for s in range(4):
            kk(f"s_add_u32 {st1}, {sctx[g]}, {s*4096}")
            for qb in range(2):
                p = TMP.sub(4 + 4 * (n % 3), 4); n += 1
                sel = "op_sel_hi:[1,0]" if qb == 0 else "op_sel:[0,1]"
                for db in (2 * s, 2 * s + 1):
                    for r in (0, 2): kk(f"v_pk_mul_f32 {O(g,db,qb).sub(r,2)}, {O(g,db,qb).sub(r,2)}, {rl} {sel}")
                kk.ext(pack(p, O(g, 2 * s, qb), O(g, 2 * s + 1, qb)))
                kk(f"buffer_store_dwordx4 {p}, {vl16}, {sCT}, {st1} offen offset:{qb*1024} {SC} ; tag=cst")
    k("WAITVM kv0"); k("s_barrier")
    for f in range(8): k(rd(FK, f, "V0", vl16))
    k.ext(drainq); drainq = []
    def prologue(masked):
        mx = [TMP[j] for j in range(4)]; mt = [TMP[4 + j] for j in range(4)]
        nmb = lambda qb, r: NM[qb * 4 + r]
        La, ta = maskops("a", mA, mC, nmb, full=False); Lb_, tb = maskops("b", mB, mC, nmb)
        def c0(g, qb, kb):
            if kb == 0: return MK.sub(0, 4) if masked and g == 0 and qb == 0 else "0"
            return ta[(qb, kb)] if masked and g == 0 else cplain(g, qb, kb)
        c1 = lambda g, qb, kb: tb[(qb, kb)] if masked and g == 0 else cplain(g, qb, kb)
        G, start = build([ph_qk([0, 1], 0, c0) + ("K0", None), ph_qk([0, 1], 1, c1) + ("K1", "split")], vl16)
        G.g[47] = [y.replace("lgkmcnt(0)", "lgkmcnt(4)") for y in G.g[47]]
        for f in range(8): G.put(f, rd(FV, f, "V1", vl16))
        G.put(15, "s_waitcnt lgkmcnt(12)")
        d2 = kvdma(2, "kv2"); g = 0
        for x in d2:
            if ismem(x): g += 1; G.put(g, x); g += 3
            else: G.put(g, x)
        for j in range(4):
            s = St(0, j // 2, j % 2, 0); g = 4 * j + 6
            G.put(g, f"v_max3_f32 {mx[j]}, {s[0]}, {s[1]}, {s[2]}"); G.put(g, f"v_max_f32 {mx[j]}, {mx[j]}, {s[3]}")
            G.put(g + 1, f"v_mov_b32 {mt[j]}, {mx[j]}")
            G.put(g + 3, f"v_permlane16_swap_b32 {mx[j]}, {mt[j]}"); G.put(g + 3, f"v_max_f32 {mx[j]}, {mx[j]}, {mt[j]}")
            G.put(g + 4, f"v_mov_b32 {mt[j]}, {mx[j]}")
            G.put(g + 6, f"v_permlane32_swap_b32 {mx[j]}, {mt[j]}"); G.put(g + 6, f"v_max_f32 {mx[j]}, {mx[j]}, {mt[j]}")
            for r in range(4): G.put(g + 7 + r // 2, f"v_sub_f32 {NM[4*j+r]}, 0, {mx[j]}")
            if masked and j < 2:
                for x in La[4 + 4 * j:8 + 4 * j]: G.put(g + 8, x)
        G.chain([f"v_sub_f32 {St(0,j//2,j%2,0)[r]}, {St(0,j//2,j%2,0)[r]}, {mx[j]}" for j in range(4) for r in range(4)], 25, 31)
        if masked: G.chain(Lb_, 26, 30)
        softmax(G, 32, 63, 0, [0, 1])
        waits_last(G)
        k("s_waitcnt lgkmcnt(4)")
        G.emit(k)
        k(f"s_add_u32 m0, {sldsw}, {3*32768}")
        k("s_waitcnt vmcnt(8) lgkmcnt(8)")
    k("VMRESET")
    D = [0, 1]
    pa = lambda c: csignal(c, [poll_issue("pa", vm1, sFL, 0, 128)])
    pax = lambda: [f"s_xor_b32 {st0}, {si}, 6", pa(st0), f"s_mov_b32 {mT[1][1]}, m0"]
    wls = lambda a_, b_: sum((wl(s_) for s_ in range(a_, b_)), [])
    U = Kern("x")
    vsa = vtrb; ssa = sdb
    U(f"s_lshr_b32 {ssa}, {srg[0]}, 1"); U(f"s_lshl_b32 {ssa}, {ssa}, 2"); U(f"s_lshr_b32 {st0}, {sh}, 3"); U(f"s_add_u32 {ssa}, {ssa}, {st0}"); U(f"s_lshl_b32 {ssa}, {ssa}, 9")
    U(f"v_and_b32 {t0}, 60, {vlane}"); U(f"v_lshlrev_b32 {t0}, 25, {t0}"); U(f"v_lshl_or_b32 {vsa}, {vlane}, 7, {t0}")
    sigA = lambda: csignal(snS, [signal(sFL, ssa, vsa)], [f"s_mov_b32 {snS}, 1"])
    U(f"s_bfe_u32 {st2}, s2, 0x20001"); U(f"s_lshl_b32 {st2}, {st2}, 2"); U(f"s_and_b32 {st1}, {si}, 3"); U(f"s_add_u32 {st2}, {st2}, {st1}")
    U(f"s_and_b32 {st1}, s2, 0xe0"); U(f"s_add_u32 {st2}, {st2}, {st1}"); U(f"s_and_b32 {st1}, s2, 1"); U(f"s_lshl_b32 {st1}, {st1}, 4"); U(f"s_add_u32 {st2}, {st2}, {st1}")
    U(f"s_lshl_b32 {st2}, {st2}, 7"); U(f"s_lshr_b32 {st1}, {swave}, 1"); U(f"s_lshl_b32 {st1}, {st1}, 30"); U(f"s_add_u32 {st2}, {st2}, {st1}")
    SM0 = [mT[0][0], mT[0][1], mT[1][0], mT[1][1]]; VA = [SB[0][j] for j in range(4)]
    for j in range(4):
        if j < 3: U(f"s_add_u32 {SM0[j]}, {SM0[j-1]}, 32768"); U(f"s_and_b32 {SM0[j]}, {SM0[j]}, 0x1ffff")
    tset = glue(U.L)
    k(f"s_cmp_eq_u32 {snS}, 1"); k(f"s_cbranch_scc1 {Lb('P1')}")
    prologue(False)
    k.ext(stamp("pro"))
    LAY = opt.get("lay", 1)
    def path_p1():
        target("P1", False)
        prologue(True)
        pair(D, [1], D, D, [1], [1], endwait=None, extra=pax(), first=True, fin=0)
        k(f"s_branch {Lb('TE')}")
    def path_dm0(fall):
        k.label(Lb("DM0"))
        pair(D, D, D, D, D, D, mask=0, first=True)
        if not fall: k(f"s_branch {Lb('T')}")
    def path_dmp():
        target("DMP", False)
        pair(D, D, D, D, D, D, mask=0, prep=2)
        k(signal(sFL, sfl1) + " offset:128")
        k(f"s_branch {Lb('T')}")
    def path_d(fall):
        target("D1", fall)
        pair(D, D, D, D, D, D, prep=1, first=True, endwait=16)
        k(f"s_cmp_eq_u32 {snS}, 3"); k(f"s_cbranch_scc1 {Lb('DMP')}")
        if opt.get("cyc"): k.ext(stamp("d1"))
        k(f"s_sub_u32 {snS}, {snS}, 4"); k(f"s_lshr_b32 {scnt}, {snS}, {1 if opt.get('stag', 1) else 8}"); k(f"s_sub_u32 {snS}, {snS}, {scnt}")
        k(f"s_sub_u32 {scnt}, {scnt}, 1"); k(f"s_cbranch_scc1 {Lb('P2')}")
        k(".p2align 6"); k.label(Lb("D"))
        pair(D, D, D, D, D, D, loop=Lb("D"), head=[f"s_or_b32 {st0}, {scnt}, {s7}\n" + pa(st0)])
        k(f"s_cmp_eq_u32 {snS}, -1"); k(f"s_cbranch_scc1 {Lb('DM')}")
        k.label(Lb("P2"))
        pair(D, D, D, D, D, D, prep=2)
        k(signal(sFL, sfl1) + " offset:128")
        k(f"s_xor_b32 {s7}, {si}, 7"); k(f"s_sub_u32 {scnt}, {snS}, 1"); k(f"s_mov_b32 {snS}, -1"); k(f"s_cbranch_scc0 {Lb('D')}")
        target("DM", True)
        if opt.get("cyc"): k.ext(stamp("dm"))
        k(f"s_cmp_eq_u32 {si}, 7"); k(f"s_cbranch_scc1 {Lb('DM7')}")
        pair(D, D, D, D, D, D, mask=0)
        if not fall: k(f"s_branch {Lb('T')}")
    def path_dm7():
        target("DM7", False)
        k.ext(chk7)
        pair(D, D, D, D, D, D, mask=0, wmix=wls(0, 6), endwait=32)
        k(f"s_branch {Lb('T')}")
    chk7 = poll_check("pa7", vm1, sFL, 0, 28, 128)[1:]
    main = k.L; k.L = []
    path_p1(); path_dmp(); path_dm7()
    if LAY: path_d(False)
    else: path_dm0(False)
    tail.L += k.L; k.L = main
    if LAY:
        k(f"s_cmp_lg_u32 {snS}, 2"); k(f"s_cbranch_scc1 {Lb('D1')}"); path_dm0(True)
    else:
        k(f"s_cmp_eq_u32 {snS}, 2"); k(f"s_cbranch_scc1 {Lb('DM0')}"); path_d(True)
    target("T", True)
    if opt.get("cyc"): k.ext(stamp("t"))
    pair(D, [1], D, D, [1], [1], endwait=None, extra=pax(), fin=0)
    target("TE", True)
    epilogue(k, 0)
    k(f"s_mov_b32 {snS}, {sflag}")
    for j in range(4): k(f"v_xor_b32 {VA[j]}, {SM0[j]}, {vrc}")
    k("s_waitcnt vmcnt(16) lgkmcnt(8)")
    k.ext(stamp("sdone"))
    k(f"s_cmp_eq_u32 {si}, 7"); k(f"s_cbranch_scc1 {Lb('SM')}")
    k(f"s_sub_u32 {scnt}, 5, {si}"); k(f"s_cbranch_scc1 {Lb('SL')}")
    k(".p2align 6"); k.label(Lb("S"))
    for j in range(4):
        pair([1], [1], [1], [1], [1], [1], static=(VA[j], SM0[j]), loop=Lb("S") if j == 3 else None, wpre=[pa(scnt)] if j == 2 else [sigA()] if j == 1 else [])
    k.label(Lb("SL"))
    k.ext(poll_check("pa", vm1, sFL, 0, 28, 128)[1:])
    we = wls(0, 6)
    for j in range(4):
        L = []
        while sum(ismem(x) for x in L) < 6 or (we and not ismem(we[0])): L.append(we.pop(0))
        pair([1], [1], [1], [1], [1], [1], static=(VA[j], SM0[j]), wpre=[sigA()] if j == 1 else [], wmix=L, endwait=14)
    k(f"s_mov_b32 m0, {SM0[0]}")
    k.label(Lb("SM"))
    if opt.get("cyc"): k.ext(stamp("sm"))
    k("VMRESET")
    NW1 = opt.get("nw1", 10); NW2 = 10
    pair([1], [1], [1], [1], [1], [1], dma=False, mask=1, endwait=4 * (NW1 - 6), wpre=wls(6, NW1), lastk=True)
    k(sigA())
    k(poll_issue("p2a0", vsig, sFL, st2))
    pair([1], None, [1], [1], None, None, dma=False, endwait=None, wpre=wls(NW1, NW2), fin=1)
    k.ext(stamp("ldone"))
    k("WAITVM p2a0")
    epilogue(k, 1)
    k(f"s_cmp_ge_u32 {swave}, 2"); k(f"s_cbranch_scc1 {Lb('nb')}"); k("s_barrier"); k.label(Lb("nb"))
    k(f"s_cmp_lg_u32 {sflag}, 0"); k(f"s_cbranch_scc1 {Lb('fallback')}")
    k.label(Lb("fbret"))
    f_ = tail
    f_.label(Lb("fallback"))
    f_("s_waitcnt vmcnt(0)")
    f_(f"v_and_b32 {t0}, 15, {vlane}"); f_(f"v_lshrrev_b32 {t1}, 4, {vlane}"); f_(f"v_lshlrev_b32 {t1}, 2, {t1}"); f_(f"v_sub_u32 {t0}, {t0}, {t1}")
    for r in range(4): f_(f"v_cmp_le_i32 {mA[r]}, {r}, {t0}")
    for g in range(2):
        F2 = ACC.sub(64 * (1 - g), 64)
        f_(f"s_and_b32 {st0}, {sflag}, {1 << g}"); f_(f"s_cbranch_scc0 {Lb(f'fbdone{g}')}")
        M = NM.sub(0, 2); AL = NM.sub(2, 2); LL = [NM.sub(4, 4), NM.sub(8, 4)]; MN = NM.sub(12, 2); MT = NM.sub(14, 2)
        for j in range(64): f_(f"v_mov_b32 {ACC[g*64+j]}, 0")
        for qb in range(2):
            f_(f"v_mov_b32 {M[qb]}, {vinf}")
            for r in range(4): f_(f"v_mov_b32 {LL[qb][r]}, 0")
        f_(f"v_mov_b32 {t2}, 0"); f_(f"s_mov_b32 {scnt}, 0")
        f_.label(Lb(f"fb{g}"))
        f_(f"s_lshl_b32 {st0}, {scnt}, 13"); f_(f"s_add_u32 {st1}, {st0}, {512*1024}")
        for f in range(16):
            f_(f"buffer_load_dwordx4 {F2.sub(4*f,4)}, {vl16 if f % 8 < 4 else vl16b}, {sKV}, {st0 if f < 8 else st1} offen offset:{(f%4)*1024} {SC}")
        f_(f"s_cmp_eq_u32 {scnt}, {srg[g]}"); f_(f"s_cselect_b64 {mX}, 0, -1")
        for r in range(4): f_(f"s_or_b64 {mT[r]}, {mA[r]}, {mX}")
        L, tiles = maskops("a", mT, mX, lambda qb, r: t2)
        f_.ext(L)
        f_("s_waitcnt vmcnt(0)")
        for kb in range(2):
            for qb in range(2):
                d = Sq(0, 0, qb).sub(4 * kb, 4)
                for ks in range(4):
                    f_(f"{MF} {d}, {F2.sub(4*(4*kb+ks),4)}, {Qf(g,qb,ks)}, {tiles[(qb,kb)] if ks == 0 else d}")
        f_("s_nop 7")
        for qb in range(2):
            s = Sq(0, 0, qb)
            f_(f"v_max3_f32 {MN[qb]}, {s[0]}, {s[1]}, {s[2]}"); f_(f"v_max3_f32 {MN[qb]}, {MN[qb]}, {s[3]}, {s[4]}")
            f_(f"v_max3_f32 {MN[qb]}, {MN[qb]}, {s[5]}, {s[6]}"); f_(f"v_max3_f32 {MN[qb]}, {MN[qb]}, {s[7]}, {M[qb]}")
        allreduce(f_, [MN[0], MN[1]], [MT[0], MT[1]], op="v_max_f32", cross_only=True)
        for qb in range(2):
            s = Sq(0, 0, qb)
            f_(f"v_sub_f32 {AL[qb]}, {M[qb]}, {MN[qb]}"); f_(f"v_exp_f32 {AL[qb]}, {AL[qb]}"); f_(f"v_mov_b32 {M[qb]}, {MN[qb]}")
            for e in range(8): f_(f"v_sub_f32 {s[e]}, {s[e]}, {MN[qb]}")
            for e in range(8): f_(f"v_exp_f32 {s[e]}, {s[e]}")
            for db in range(8):
                for r in range(4): f_(f"v_mul_f32 {O(g,db,qb)[r]}, {O(g,db,qb)[r]}, {AL[qb]}")
            for r in range(4): f_(f"v_mul_f32 {LL[qb][r]}, {LL[qb][r]}, {AL[qb]}")
            for c in range(4): f_(f"v_cvt_pk_bf16_f32 {s[c]}, {s[2*c]}, {s[2*c+1]}")
        f_("s_nop 1")
        for qb in range(2):
            for db in range(8):
                f_(f"{MF} {O(g,db,qb)}, {F2.sub(4*(8+db),4)}, {Sq(0,0,qb).sub(0,4)}, {O(g,db,qb)}")
            f_(f"{MF} {LL[qb]}, {ONES}, {Sq(0,0,qb).sub(0,4)}, {LL[qb]}")
        f_("s_nop 7")
        f_(f"s_add_u32 {scnt}, {scnt}, 1"); f_(f"s_cmp_le_u32 {scnt}, {srg[g]}"); f_(f"s_cbranch_scc1 {Lb(f'fb{g}')}")
        epilogue(f_, g, [LL[0][0], LL[1][0]])
        f_.label(Lb(f"fbdone{g}"))
    f_("s_waitcnt vmcnt(0)")
    f_(f"s_xor_b32 {sow}, {sow}, {(10 ^ 6) * 4096}"); f_.ext(wls(6, 10))
    f_(f"s_andn2_b32 {snS}, 1, {sflag}")
    f_(sigA().replace("NOCOUNT ", "")); f_("s_waitcnt vmcnt(0)"); f_(f"s_branch {Lb('fbret')}")

    S.reset(mark0)
    sng = S(); smd = S(); sme = S(); skq = S(); scg = S(); soa = S(); sflD = S(); sflE = S(); sclD = S(); sclE = S(); ssg = S()
    sexp = S(); sw0 = S(); so1 = S(); shf = S(); sxo2 = S(); sstt = S(); spl = S(); shl = S(); ssl = S(); shm = S(); sfb = S(); sfr = S()
    psk = S(3, 1)
    pX = S(2); pO = S(4); pB1 = S(2)
    sAct = S(4); sXO = S(4); sHF = S(4); sST = S(4); sW1 = S(4); sB = S(4); sHM = S(4); sPT = S(4)
    mD = [pX, pB1, sKV[0:2], sKV[2:4]]
    vb = X16.sub(0, 2); vw2 = X16.sub(2, 2); vw = X16.sub(4, 3); vrd = X16[7]; vrow = X16[8]; vg16 = X16[9]; RM = X16.sub(10, 2); ON = X16.sub(12, 4)
    DF = a(96, 48); PL = a(144, 12); XRr = [a(156, 4), v(204, 4)]; PS = v(160, 12); DA = v(172, 12); EA = v(184, 8); B1 = v(192, 12)
    STT = v(208, 8); HP = v(216, 4); SEL = v(220, 6); KC = v(228, 4); C1 = v(232, 24)
    BF = v(104, 24); EACC = v(136, 24); SL = v(160, 8); G0 = v(172, 8); PK = [v(192, 4), v(196, 4)]
    vbc = vsig
    vb4 = vm0; vb4s = vm2; vl4 = vtrb; vso = vtr; vp2 = t2
    F2A, F3, F4, FP, F2B = 0, (4, 32), (8, 36), (20, 40), 28
    def wpoll(tag, sf, imm, d=vpoll): return f"buffer_load_dword {d}, {vm1}, {sFL}, {sf} offen offset:{imm} {SC} ; tag={tag}"
    def wcheck(tag, n, sf, imm, d=vpoll, va=None):
        return ([f"s_and_b32 {sexp}, {sw0}, {n}"] if va is None else [f"s_mov_b32 {sexp}, {n}"]) + [f"s_mov_b32 {sspin}, {SPIN}"] + ([f"WAITVM {tag}"] if va is None else []) + [
                Lb("spl" + tag) + ":", f"v_readfirstlane_b32 {ssoff}, {d}", "s_nop 0",
                f"s_cmp_ge_u32 {ssoff}, {sexp}", f"s_cbranch_scc1 {Lb('back'+tag)}",
                f"NOCOUNT buffer_load_dword {d}, {va or vm1}, {sFL}, {sf} offen offset:{imm} {SC}",
                f"s_sub_u32 {sspin}, {sspin}, 1", "NOCOUNT s_waitcnt vmcnt(0)", f"s_cbranch_scc0 {Lb('spl'+tag)}",
                Lb("back" + tag) + ":"]
    k(f"s_load_dwordx2 {pX}, s[0:1], 0"); k(f"s_load_dwordx4 {pO}, s[0:1], 80"); k(f"s_load_dwordx2 {pB1}, s[0:1], 64")
    k(f"s_bfe_u32 {skq}, s2, 0x20001"); k(f"s_lshr_b32 {smd}, s2, 5"); k(f"s_lshl_b32 {smd}, {smd}, 1"); k(f"s_and_b32 {st0}, s2, 1"); k(f"s_add_u32 {smd}, {smd}, {st0}")
    k(f"s_lshl_b32 {sclD}, {smd}, 11"); k(f"s_and_b32 {scg}, {si}, 3"); k(f"s_lshl_b32 {ssg}, {scg}, 7"); k(f"s_add_u32 {ssg}, {ssg}, {sclD}")
    k(f"s_lshl_b32 {sflD}, {skq}, 9"); k(f"s_add_u32 {sflD}, {sflD}, {ssg}")
    srd(k, sAct, pWS, 16 * MB, WS_CTX)
    k(f"s_lshl_b32 {soa}, {smd}, 19"); k(f"s_lshl_b32 {st0}, {skq}, 17"); k(f"s_add_u32 {soa}, {soa}, {st0}"); k(f"s_add_u32 {soa}, {soa}, {sldsw}")
    k(f"s_and_b32 {st0}, {si}, {DR}"); k(f"s_lshl_b32 {st0}, {st0}, 15"); k(f"s_add_u32 {soa}, {soa}, {st0}")
    k(f"s_cmp_ge_u32 {swave}, 2"); k(f"s_cbranch_scc1 {Lb('na0')}")
    k.ext(wcheck("p2a", 16, sflD, F2A, va=vsig))
    k(f"s_add_u32 {st1}, {soa}, {sldsw}"); k(f"s_lshl_b32 {st2}, {sldsw}, 1")
    for p in range(16):
        if p % 4 == 0: k(f"s_add_u32 m0, {st2}, {131072 + (p//4)*4096}")
        if p == 8: k(f"s_add_u32 {st1}, {st1}, 8192")
        elif p % 4 == 0: k("s_nop 0")
        k(f"NOCOUNT buffer_load_dwordx4 {vl16 if p % 8 < 4 else vl16b}, {sAct}, {st1} offen offset:{(p%4)*1024} {SC} lds")
    k.label(Lb("na0"))
    k(f"s_xor_b32 {soa}, {soa}, 32768")
    for r in range(4):
        k(f"s_xor_b32 {st0}, {skq}, {r}"); k(f"s_lshl_b32 {st0}, {st0}, 10"); k(f"v_add_u32 {DA[3*r]}, {st0}, {vl16}")
        k(f"v_add_u32 {DA[3*r+1]}, 65536, {DA[3*r]}"); k(f"v_add_u32 {DA[3*r+2]}, 131072, {DA[3*r]}")
    k(f"s_cmp_ge_u32 {swave}, 2"); k(f"s_cbranch_scc1 {Lb('na1')}"); k("NOCOUNT s_waitcnt vmcnt(0)"); k.label(Lb("na1"))
    k("s_waitcnt lgkmcnt(0)"); k("s_barrier")
    k.ext(stamp("dgo"))
    DSL = [4, 0, 1, 2, 3, 4, 0, 1]
    def sdma(slot, sd, so, tag, inc=32768):
        L = []
        for p in range(8):
            if p % 4 == 0: L.append(f"s_add_u32 m0, {sldsw}, {slot*32768 + (p//4)*4096}")
            L.append(f"buffer_load_dwordx4 {vl16 if p < 4 else vl16b}, {sd}, {so} offen offset:{(p%4)*1024} {SC} lds ; tag={tag}")
        return L + [f"s_add_u32 {so}, {so}, {inc}" if so is so1 else f"s_xor_b32 {so}, {so}, {inc}"]
    cd = lambda st: sdma(DSL[st], sAct, soa, f"a{st}", ((st ^ (st + 1)) & 3) * 32768 + (8 * MB if st == 3 else 0))
    w1d = lambda n: sdma(2 + n, sW1, so1, f"w1{n}")
    TY = lambda ch, rb, cb: v(96 + 32 * ch + (rb * 2 + cb) * 4, 4)
    dun = [(st, rb, kh) for st in range(8) for rb in ((1, 2, 3, 0) if st % 4 == 3 else range(4)) for kh in range(2)]
    DFu = lambda u, ks: DF.sub(16 * (u % 3) + 4 * ks, 4)
    def dreads(u):
        st, rb, kh = dun[u]; o = DSL[st] * 32768
        return [f"ds_read_b128 {DFu(u,ks)}, {DA[3*rb + o // 65536]} offset:{o % 65536 + kh*16384 + ks*4096}" for ks in range(4)]
    def take_mem(src):
        L = []
        while src and not ismem(src[0]): L.append(src.pop(0))
        if src: L.append(src.pop(0))
        return L
    k.ext(dreads(0)); k.ext(dreads(1))
    U = Kern("x")
    U(f"s_cmp_eq_u32 {swave}, 0"); U(f"s_cselect_b32 {sw0}, -1, 0"); U(f"s_cselect_b32 {st0}, 0, 0x80000000")
    U(f"v_or_b32 {vm1}, {st0}, {vsig}")
    U(f"v_and_b32 {t0}, 15, {vlane}"); U(f"v_lshl_or_b32 {t0}, {t0}, 7, {st0}")
    U(f"v_and_b32 {t1}, 48, {vlane}"); U(f"v_lshl_or_b32 {vbc}, {t1}, 25, {t0}")
    U(f"v_and_b32 {t1}, 60, {vlane}"); U(f"v_lshl_or_b32 {vb4}, {t1}, 25, {t0}")
    U(f"v_and_b32 {t0}, 3, {vlane}"); U(f"v_lshl_or_b32 {t0}, {t0}, 9, {st0}"); U(f"v_lshl_or_b32 {vb4s}, {t1}, 25, {t0}")
    U(f"s_lshr_b32 {st0}, {sh}, 3"); U(f"s_lshl_b32 {st0}, {st0}, 9"); U(f"s_lshl_b32 {sdb}, {si}, 12"); U(f"s_sub_u32 {sdb}, {14*2048}, {sdb}"); U(f"s_add_u32 {sdb}, {sdb}, {st0}")
    nU0 = len(glue(U.L))
    if opt.get("emap", 0) == 0:
        U(f"s_bfe_u32 {sng}, s2, 0x40003")
        U(f"s_lshr_b32 {st0}, s2, 7"); U(f"s_lshl_b32 {st0}, {st0}, 3"); U(f"s_and_b32 {sme}, s2, 7"); U(f"s_add_u32 {sme}, {sme}, {st0}")
    else:
        U(f"s_bfe_u32 {sng}, s2, 0x10005"); U(f"s_lshl_b32 {sng}, {sng}, 1"); U(f"s_and_b32 {st0}, s2, 1"); U(f"s_add_u32 {sng}, {sng}, {st0}")
        U(f"s_lshl_b32 {sng}, {sng}, 2"); U(f"s_and_b32 {st0}, {si}, 3"); U(f"s_add_u32 {sng}, {sng}, {st0}")
        U(f"s_lshl_b32 {sme}, {skq}, 2"); U(f"s_lshr_b32 {st0}, s2, 6"); U(f"s_add_u32 {sme}, {sme}, {st0}")
    U(f"s_lshl_b32 {sclE}, {sme}, 11"); U(f"s_lshl_b32 {sflE}, {sng}, 7"); U(f"s_add_u32 {sflE}, {sflE}, {sclE}")
    U(f"s_lshl_b32 {st0}, {smd}, 2"); U(f"s_add_u32 {st0}, {st0}, {scg}"); U(f"s_mul_i32 {st0}, {st0}, {2*49152}"); U(f"s_add_u32 {st0}, {st0}, {WS_PART}")
    srd(U, sPT, pWS, 2 * 49152, st0)
    U(f"s_lshl_b32 {st2}, {swave}, 10")
    for r in range(1, 4):
        U(f"s_xor_b32 {st0}, {skq}, {r}"); U(f"s_mul_i32 {st0}, {st0}, 12288"); U(f"s_add_u32 {st0}, {st0}, {st2}"); U(f"s_add_u32 {psk[r-1]}, {st0}, {(r-1)*4096}")
    U(f"s_mul_i32 {spl}, {skq}, 12288"); U(f"s_add_u32 {spl}, {spl}, {st2}")
    U(f"s_lshl_b32 {scg}, {scg}, 2"); U(f"s_add_u32 {scg}, {scg}, {swave}")
    U(f"s_lshl_b32 {st2}, {smd}, 2"); U(f"s_add_u32 {st2}, {st2}, {skq}")
    U(f"s_lshl_b32 {shf}, {st2}, 14"); U(f"s_lshl_b32 {st0}, {scg}, 6"); U(f"s_add_u32 {sxo2}, {shf}, {st0}")
    U(f"s_lshl_b32 {st0}, {scg}, 10"); U(f"s_add_u32 {shf}, {shf}, {st0}")
    U(f"s_lshl_b32 {sstt}, {st2}, 11"); U(f"s_lshl_b32 {st0}, {scg}, 7"); U(f"s_add_u32 {sstt}, {sstt}, {st0}")
    U(f"v_and_b32 {t0}, 15, {vlane}"); U(f"v_lshrrev_b32 {t1}, 4, {vlane}"); U(f"v_lshlrev_b32 {vg16}, 4, {t1}")
    U(f"v_lshl_add_u32 {vrow}, {t0}, 10, {vg16}")
    srd(U, sXO, pX, 2 * MB); srd(U, sB, pB1, 2752)
    srd(U, sHF, pWS, 2 * MB, WS_HF); srd(U, sST, pWS, 256 * 1024, WS_STAT); srd(U, sW1, pWS, 88 * 16384, WS_W1P)
    U(f"s_mul_i32 {so1}, {sng}, {6*16384}"); U(f"s_add_u32 {so1}, {so1}, {sldsw}")
    U(f"v_bfe_u32 {t0}, {vlane}, 2, 2"); U(f"v_lshrrev_b32 {t1}, 4, {vlane}"); U(f"v_sub_u32 {t1}, {t1}, {t0}"); U(f"v_and_b32 {t1}, 3, {t1}")
    U(f"v_and_b32 {t0}, 1, {vlane}"); U(f"v_lshlrev_b32 {t0}, 4, {t0}"); U(f"v_mov_b32 {SEL[0]}, 0x3f80"); U(f"v_lshlrev_b32 {t0}, {t0}, {SEL[0]}")
    U(f"v_bfe_u32 {SEL[1]}, {vlane}, 1, 1"); U(f"v_lshl_or_b32 {SEL[1]}, {t1}, 1, {SEL[1]}")
    U(f"v_cmp_eq_u32 vcc, 0, {SEL[1]}"); U(f"v_cndmask_b32 {SEL[2]}, 0, {t0}, vcc")
    U(f"v_cmp_eq_u32 vcc, 1, {SEL[1]}"); U(f"v_cndmask_b32 {SEL[3]}, 0, {t0}, vcc")
    for j in (0, 1, 4, 5): U(f"v_mov_b32 {SEL[j]}, 0")
    U(f"v_and_b32 {t0}, 15, {vlane}"); U(f"v_lshlrev_b32 {t0}, 2, {t0}"); U(f"v_xor_b32 {vso}, 1, {t1}"); U(f"v_and_b32 {vso}, 1, {vso}")
    U(f"v_lshl_or_b32 {t0}, {vso}, 6, {t0}"); U(f"v_lshrrev_b32 {t1}, 1, {t1}"); U(f"v_lshl_or_b32 {vso}, {t1}, 31, {t0}")
    for j, c in enumerate((0x22222222, 0x44444444, 0x88888888)): U(f"s_mov_b32 {mD[j][0]}, {c}"); U(f"s_mov_b32 {mD[j][1]}, {c}")
    U(f"s_mov_b32 {mD[3][0]}, 0x00f0000f"); U(f"s_mov_b32 {mD[3][1]}, 0xf0000f00")
    for j in range(4): U(f"v_mov_b32 {ON[j]}, 0x3f803f80")
    U(f"v_lshlrev_b32 {vl4}, 2, {vlane}")
    K1 = 2 * math.sqrt(2 / math.pi) * math.log2(math.e)
    U(f"v_mov_b32 {KC[0]}, {f2h(-K1 * 0.044715)}"); U(f"v_mov_b32 {KC[1]}, {f2h(-K1)}"); U(f"v_mov_b32 {KC[2]}, 1.0")
    U(f"s_mul_i32 {st0}, {sme}, {43*4096}"); U(f"s_add_u32 {st0}, {st0}, {WS_HM}")
    srd(U, sHM, pWS, 43 * 4096, st0)
    U(f"s_mul_i32 {shm}, {sng}, {3*4096}"); U(f"s_lshl_b32 {st0}, {swave}, 10"); U(f"s_add_u32 {shm}, {shm}, {st0}")
    U(f"s_lshl_b32 {ssl}, {sme}, 2"); U(f"s_add_u32 {ssl}, {ssl}, {swave}"); U(f"s_lshl_b32 {shl}, {ssl}, 14"); U(f"s_lshl_b32 {ssl}, {ssl}, 11")
    U(f"s_and_b32 {st2}, {sng}, {opt.get('erot', 3)}"); U(f"s_lshl_b32 {st2}, {st2}, 12"); U(f"s_add_u32 {shl}, {shl}, {st2}")
    for kq in range(4):
        U(f"s_xor_b32 {st0}, {st2}, {65536 + kq*4096}"); U(f"v_add_u32 {EA[2*kq]}, {st0}, {vl16}"); U(f"v_add_u32 {EA[2*kq+1]}, 65536, {EA[2*kq]}")
    U(f"s_lshr_b32 {st0}, {sng}, 3"); U(f"s_lshl_b32 {st0}, {st0}, 1"); U(f"s_and_b32 {st2}, {swave}, 1"); U(f"s_add_u32 {st0}, {st0}, {st2}")
    U(f"s_lshl_b32 {st0}, {st0}, 10"); U(f"v_add_u32 {vb[0]}, {st0}, {vl16}"); U(f"v_xor_b32 {vb[1]}, 1024, {vb[0]}")
    U(f"s_lshr_b32 {st0}, {swave}, 1"); U(f"s_lshl_b32 {st0}, {st0}, 11"); U(f"v_add_u32 {vw2[0]}, {st0}, {vl16}"); U(f"v_xor_b32 {vw2[1]}, 2048, {vw2[0]}")
    for r in range(4):
        U(f"s_xor_b32 {st0}, {swave}, {r}"); U(f"s_mul_i32 {st0}, {st0}, 6144")
        if r > 1: U(f"s_add_u32 {st0}, {st0}, {(r-1)*2048}")
        U(f"v_add_u32 {vw[r-1] if r else vrd}, {st0}, {vl16}")
    U(f"s_mul_i32 {sfb}, {swave}, {11*4096}")
    U(f"s_lshr_b32 {sfr}, s2, 6"); U(f"s_lshl_b32 {sfr}, {sfr}, 1"); U(f"s_xor_b32 {sfr}, {sfr}, {si}"); U(f"s_and_b32 {sfr}, {sfr}, {opt.get('frot', 0)}"); U(f"s_lshl_b32 {sfr}, {sfr}, 12")
    vq = glue(U.L); nU = len(vq)
    xq = [f"buffer_load_dwordx4 {XRr[0]}, {vrow}, {sXO}, {sxo2} offen ; tag=e", f"s_add_u32 {st1}, {sxo2}, {MB}",
          f"buffer_load_dwordx4 {XRr[1]}, {vrow}, {sXO}, {st1} offen ; tag=e"]
    bq = [f"v_lshrrev_b32 {vinf}, 1, {vg16}", f"s_mul_i32 {sdb}, {sng}, 192"]
    bq += [f"buffer_load_dwordx2 {B1.sub(2*fb,2)}, {vinf}, {sB}, {sdb} offen offset:{fb*32} ; tag=e" for fb in range(6)]
    SELm = [SEL.sub(2, 4), SEL.sub(0, 4)]
    def addfrag(t0_, t1_, fr): return [f"{MF} {t}, {SELm[cb]}, {fr}, {t}" for cb, t in enumerate((t0_, t1_))]
    def pll(ch, so=st1):
        L = []
        for j in range(3):
            L += [f"s_add_u32 {so}, {spl}, {ch*49152 + j*4096}", f"buffer_load_dwordx4 {PL.sub(4*j,4)}, {vl16}, {sPT}, {so} offen {SC} ; tag=pl{ch}"]
        return L
    def red1(ch):
        L = [f"WAITVM pl{ch},e"]
        for fr in [XRr[ch]] + [PL.sub(4 * j, 4) for j in range(3)]: L += addfrag(TY(ch, 0, 0), TY(ch, 0, 1), fr)
        return L
    def red2(ch):
        return pack(HP, TY(ch, 0, 0), TY(ch, 0, 1)) + [f"buffer_store_dwordx4 {HP}, {vl16}, {sHF}, {shf} offen {SC} ; tag=hst{ch}", f"s_add_u32 {shf}, {shf}, {MB}",
                f"{MF} {STT.sub(0,4)}, {HP}, {HP}, 0", f"{MF} {STT.sub(4,4)}, {ON}, {HP}, 0"]
    def red3(ch):
        return [f"v_cndmask_b32 {STT[0]}, {STT[0]}, {STT[1+j]}, {mD[j]}" for j in range(3)] + [f"v_cndmask_b32 {STT[0]}, {STT[4]}, {STT[0]}, {mD[3]}",
                f"buffer_store_dword {STT[0]}, {vso}, {sST}, {sstt} offen {SC} ; tag=hst{ch}", f"s_add_u32 {sstt}, {sstt}, {64*2048}"]
    W2 = lambda s, cb: Wd(2 * s + cb // 2, cb % 2)
    def foff(d, s): return [f"s_xor_b32 {d}, {sfr}, {s*4096}", f"s_add_u32 {d}, {d}, {sfb}"] if s < 8 else [f"s_add_u32 {d}, {sfb}, {s*4096}"]
    def w2l(s): return foff(sow, s) + [f"buffer_load_dwordx4 {W2(s,c)}, {vw2[c//2]}, {sW}, {sow} offen offset:{(c%2)*1024} {SC} ; tag=w2" for c in range(4)]
    U = Kern("x"); U(f"s_and_b32 {st2}, {sng}, 7"); U(f"s_mul_i32 {st2}, {st2}, {43*4096}"); U(f"s_add_u32 {st2}, {st2}, {WS_W2P}"); srd(U, sW, pWS, 43 * 4096, st2)
    w2srd = glue(U.L)
    lw = lambda a_, b_: sum((wl(s) for s in range(max(a_, NW2), b_)), [])
    W2D = opt.get("w2d", (0, 0, 0))
    w2o = list(range(11))
    w2n = lambda n: sum((w2l(w2o.pop(0)) for _ in range(n)), [])
    wsig = lambda so, vo, *offs: csignal(swave, [signal(sFL, so, vo) + f" offset:{o}" for o in offs])
    sigs = {6: wsig(sdb, vb4, F2B, 2048 + F2B), 38: wsig(ssg, vb4s, FP[0]), 60: wsig(sclD, vbc, F3[0])}
    UB = opt.get("ub", 22); UC = opt.get("uc", 46); RA = opt.get("ra", UC + 6); U3 = opt.get("u3", 60)
    sigs = {6: sigs[6], 38: sigs[38], U3: sigs[60]}
    adds = {0: cd(1) + cd(2) + lw(0, 12) + cd(3) + lw(12, 16), UB - 3: [wpoll("p2b", sflD, F2B)], 22: cd(5) + xq + bq,
            32: cd(6) + cd(7), 40: w1d(0) + w2n(W2D[0]), UC - 3: [wpoll("ppa", sflD, FP[0])],
            48: w1d(1) + w2n(W2D[1]), 54: w1d(2) + w2n(W2D[2])}
    front = (UB - 3, UC - 3)
    mq = []; stq = []; nxt = [0]
    for u, (st, rb, kh) in enumerate(dun):
        ch = st // 4
        lg = 4 if u < 63 else 0
        tags = []
        if u % 8 < 2 and ch == 0 and 4 * st + 2 * kh + 1 >= 6: tags.append(f"dw{4*st + 2*kh + 1}")
        if u % 8 == 6 and st < 7: tags.append(f"a{st+1}")
        if u == 6: tags.append("cst")
        if u == 38: tags.append("ps0")
        if u == U3: tags += ["hst0", "w11"]
        if u == UB: k.ext(wcheck("p2b", 8, sflD, F2B)); mq += cd(4)
        if u == UC: k.ext(wcheck("ppa", 4, sflD, FP[0]))
        if tags: k(f"WAITVM {','.join(tags)} lgkm={lg}")
        else: k(f"s_waitcnt lgkmcnt({lg})")
        if (u % 8 == 6 and st < 7) or u in (UB, UC, U3): k("s_barrier")
        if u in sigs: k(sigs[u])
        if u == 32: k.ext(stamp("da"))
        elif opt.get("fineD") and u % 8 == 0 and u: k.ext(stamp(f"u{u}"))
        if u in adds:
            if u in front:
                mq = adds[u] + mq
            else: mq += adds[u]
        if u == UC: mq = pll(0) + mq; nxt[0] = 0
        if u == RA: k.ext(red1(0))
        if u == RA + 1: k.ext(red2(0))
        if u == RA + 2: k.ext(red3(0))
        mf = [f"{MF} {TY(ch,rb,cb)}, {Wd(8*(st%4)+4*kh+ks,cb)}, {DFu(u,ks)}, {'0' if st % 4 == 0 and kh == 0 and ks == 0 else TY(ch,rb,cb)}" for cb in range(2) for ks in range(4)]
        G = Gaps(mf)
        if u < 62:
            for g, x in zip((0, 2, 4, 6), dreads(u + 2)): G.put(g, x)
        pace = opt.get("pa_", 3.0) if u < 30 else opt.get("pb_", 4.0)
        for g in (1, 3, 5):
            if 8 * u + g < nxt[0] and not (u in front and g == 1): continue
            if stq: G.put(g, stq.pop(0)); nxt[0] = max(nxt[0], 8 * u + g - 1) + 2 * pace
            elif mq:
                L = take_mem(mq)
                for x in L: G.put(g if ismem(x) else g - 1, x)
                nxt[0] = max(nxt[0], 8 * u + g - 1) + (pace if "dwordx4" in L[-1] else 2)
        sched(G, vq, 4 if st % 4 == 3 else 0, 7, stq)
        G.emit(k)
        if u == 5: assert len(vq) <= nU - nU0
        if u == 21:
            k.ext(vq); vq = []
        if st % 4 == 3 and rb and kh:
            p = PS.sub(4 * (rb - 1), 4)
            vq += pack(p, TY(ch, rb, 0), TY(ch, rb, 1)) + [("st", f"buffer_store_dwordx4 {p}, {vl16}, {sPT}, {psk[rb-1]} offen {SC} ; tag=ps{ch}")]
        if u == 38: vq += w2srd + [f"s_add_u32 {psk[r]}, {psk[r]}, 49152" for r in range(3)]
        if u == RA:
            for j in range(12): vq += [f"v_lshlrev_b32 {BF[2*j]}, 16, {B1[j]}", f"v_and_b32 {BF[2*j+1]}, 0xffff0000, {B1[j]}"]
    assert not vq, vq
    k.ext(stq); emit_dma(mq)
    k.ext(stamp("dmm"))

    H = a(32, 64)
    TE = lambda fb: EACC.sub(fb * 4, 4)
    seqk = [(fb, kq, ks) for kq in range(4) for fb in range(6) for ks in range(4)]
    seq = [(fb, kq, ks) for fb in range(6) for kq in range(4) for ks in range(4)] + seqk + seqk
    EWn = lambda n: DF.sub(4 * (n % 12), 4)
    def erd(n):
        fb, kq, ks = seq[n]
        return f"ds_read_b128 {EWn(n)}, {EA[2*kq + fb // 4]} offset:{(fb % 4)*16384 + ks*1024}"
    def hl(ch):
        L = []
        for kq in range(4):
            L.append(f"s_xor_b32 {st1}, {shl}, {ch*MB + kq*4096}")
            L += [f"buffer_load_dwordx4 {H.sub(16*kq+4*ks,4)}, {vl16}, {sHF}, {st1} offen offset:{ks*1024} {SC} ; tag=h{ch}{kq}" for ks in range(4)]
        L.append(f"s_add_u32 {st1}, {ssl}, {ch*64*2048}")
        return L + [f"buffer_load_dword {SL[j]}, {vl4}, {sST}, {st1} offen offset:{j*256} {SC} ; tag=st{ch}" for j in range(8)]
    def epass(ps, q0=None):
        ch = ps - 1; out = []; q = []
        for n in range(96 * ps, 96 * ps + 96):
            fb, kq, ks = seq[n]; L = []
            if ks == 0:
                lg = 8 if n + 12 <= 288 else max(0, 288 - n - 4)
                L.append(f"WAITVM h{ch}{kq} lgkm={lg}" if ps and fb == 0 else f"s_waitcnt lgkmcnt({lg})")
            d = TE(fb) if ps else C1.sub(4 * fb, 4)
            L.append(f"{MF} {d}, {EWn(n)}, {H.sub(16*kq+4*ks,4) if ps else ON}, {'0' if kq == 0 and ks == 0 else d}")
            if n + 12 < 288: L.append(erd(n + 12))
            if n % 96 == q0: q += stats(ch)
            if q and ks != 3: L.append(q.pop(0))
            out.append((L, 18))
        return out + [([x], icost(x)) for x in q]
    def play(items, hooks, mq, gap=76):
        t = 0; nxt = 0
        for n, (L, c) in enumerate(items):
            for x in hooks.pop(n, []):
                if isinstance(x, list): mq[:0] = x; nxt = t
                elif isinstance(x, tuple): mq.extend(x)
                else: k(x)
            k.ext(L); t += c
            if mq and t >= nxt:
                L2 = take_mem(mq); k.ext(L2); nxt = t + (gap if "dwordx4" in L2[-1] else 24); t += 8
        assert not hooks, hooks
    def stats(ch):
        L = Kern("x")
        L(f"WAITVM st{ch}")
        for d in (4, 2, 1):
            for j in range(d): L(f"v_add_f32 {SL[j]}, {SL[j]}, {SL[j+d]}")
        mu, qq, aa, bb = SL[0], SL[1], SL[2], SL[3]
        L(f"v_mov_b32 {qq}, {mu}"); L(f"v_permlane32_swap_b32 {mu}, {qq}"); L(f"v_add_f32 {mu}, {mu}, {qq}")
        L(f"v_mul_f32 {mu}, {f2h(1/512)}, {mu}"); L(f"v_mov_b32 {qq}, {mu}")
        L(f"v_permlane16_swap_b32 {mu}, {qq}")
        L(f"v_fma_f32 {qq}, -{mu}, {mu}, {qq}"); L(f"v_max_f32 {qq}, 0, {qq}")
        L(f"v_add_f32 {aa}, {f2h(1e-5)}, {qq}"); L(f"v_rsq_f32 {aa}, {aa}")
        L(f"v_mul_f32 {bb}, {aa}, {aa}"); L(f"v_mul_f32 {bb}, {bb}, {qq}"); L(f"v_add_f32 {bb}, {f2h(1e-5)}, {bb}")
        L(f"v_rsq_f32 {bb}, {bb}")
        L(f"v_mul_f32 {RM[0]}, {aa}, {bb}"); L(f"v_mul_f32 {RM[1]}, -{mu}, {RM[0]}")
        return L.L
    def gelu(ch, pp):
        ts = [TE(fb).sub(r, 2) for fb in (2 * pp, 2 * pp + 1) for r in (0, 2)]
        cs = [(C1.sub(4 * fb + r, 2), BF.sub(4 * fb + r, 2)) for fb in (2 * pp, 2 * pp + 1) for r in (0, 2)]
        g = [G0.sub(2 * j, 2) for j in range(4)]
        L = [f"v_pk_fma_f32 {g[j]}, {RM}, {cs[j][0]}, {cs[j][1]} op_sel:[1,0,0]" for j in range(4)]
        L += [f"v_pk_fma_f32 {ts[j]}, {RM}, {ts[j]}, {g[j]} op_sel_hi:[0,1,1]" for j in range(4)]
        L += [f"v_pk_mul_f32 {g[j]}, {ts[j]}, {ts[j]}" for j in range(4)]
        L += [f"v_pk_fma_f32 {g[j]}, {g[j]}, {KC.sub(0,2)}, {KC.sub(0,2)} op_sel:[0,0,1] op_sel_hi:[1,0,1]" for j in range(4)]
        L += [f"v_pk_mul_f32 {g[j]}, {g[j]}, {ts[j]}" for j in range(4)]
        L += [f"v_exp_f32 {G0[j]}, {G0[j]}" for j in range(8)]
        L += [f"v_pk_add_f32 {g[j]}, {g[j]}, {KC.sub(2,2)} op_sel_hi:[1,0]" for j in range(4)]
        L += [f"v_rcp_f32 {G0[j]}, {G0[j]}" for j in range(8)]
        L += [f"v_pk_mul_f32 {ts[j]}, {ts[j]}, {g[j]}" for j in range(4)]
        L += pack(PK[pp % 2], TE(2 * pp), TE(2 * pp + 1))
        L += [f"s_add_u32 {st2}, {shm}, {pp*4096}", f"buffer_store_dwordx4 {PK[pp%2]}, {vl16}, {sHM}, {st2} offen {SC} ; tag=mst{ch}"]
        return L
    def gelu_all(ch):
        out = []
        for x in sum((gelu(ch, pp) for pp in range(3)), []):
            if ismem(x): out[-1][0].append(x)
            else: out.append(([x], icost(x)))
        return out
    T_ = dict(p3a=10, b1=40, ppb=72, b2=95, rb=135, b3=190, p3b=300); T_.update(opt.get("T", {}))
    W2E = opt.get("w2e", (0, 2, 2, 3))
    for n in range(12): k(erd(n))
    mq = w2n(W2E[0])
    items = epass(0) + epass(1, q0=60) + gelu_all(0)
    hooks = {T_["p3a"]: [[wpoll("p3a", sflE, F3[0])]],
             T_["b1"]: wcheck("p3a", 16, sflE, F3[0]) + ["WAITVM ps1,w12", "s_barrier", wsig(ssg, vb4s, FP[1])] + stamp("g3a") + [hl(0)],
             T_["ppb"]: [[wpoll("ppb", sflD, FP[1], vp2)]],
             T_["b2"]: wcheck("ppb", 4, sflD, FP[1], vp2) + ["s_barrier"] + pll(1, st2) + stamp("gpb") + [tuple(w2n(W2E[1]))],
             T_["rb"]: red1(1), T_["rb"] + 6: red2(1), T_["rb"] + 12: red3(1) + [tuple(w2n(W2E[2]))],
             T_["b3"]: ["WAITVM hst1", "s_barrier", wsig(sclD, vbc, F3[1])] + stamp("ea") + [tuple(w2n(W2E[3]))],
             min(T_["p3b"], len(items) - 1): [[wpoll("p3b", sflE, F3[1])]]}
    assert T_["b1"] <= 51
    play(items, hooks, mq)
    k.ext(mq)
    k(f"s_mov_b32 {sAct[0]}, {sHM[0]}"); k(f"s_mov_b32 {sAct[1]}, {sHM[1]}"); k(f"s_mov_b32 {sAct[2]}, {43*4096}")
    k(f"s_add_u32 {sHM[0]}, {sHM[0]}, {16*43*4096}"); k(f"s_addc_u32 {sHM[1]}, {sHM[1]}, 0")
    srd(k, sXO, pO[2:4], 2 * MB); srd(k, sB, pO[0:2], 1024)
    k(f"s_lshl_b32 {shf}, {sme}, 2"); k(f"s_lshr_b32 {st0}, {sng}, 3"); k(f"s_lshl_b32 {st0}, {st0}, 1"); k(f"s_add_u32 {shf}, {shf}, {st0}")
    k(f"s_and_b32 {st0}, {swave}, 1"); k(f"s_add_u32 {shf}, {shf}, {st0}"); k(f"s_lshl_b32 {shf}, {shf}, 14")
    k(f"s_and_b32 {st0}, {sng}, 7"); k(f"s_lshl_b32 {st0}, {st0}, 1"); k(f"s_lshr_b32 {st2}, {swave}, 1"); k(f"s_add_u32 {st0}, {st0}, {st2}")
    k(f"s_lshl_b32 {spl}, {st0}, 6"); k(f"s_add_u32 {sxo2}, {shf}, {spl}"); k(f"s_lshl_b32 {st0}, {st0}, 10"); k(f"s_add_u32 {shf}, {shf}, {st0}")
    pool = [a(b_ + 4 * j, 4) for b_ in (16, 144) for j in range(4)] + [v(b_ + 4 * j, 4) for b_, n_ in ((96, 2), (128, 2), (168, 1), (180, 1), (200, 5)) for j in range(n_)] + [a(32 + 4 * j, 4) for j in range(3)]
    Af = lambda s, rb: pool[2 * s + rb]
    HR = [a(44, 4), a(48, 4)]; BRr = a(52, 4)
    def fl(ch, s): return foff(soa, s) + [f"buffer_load_dwordx4 {Af(s,r)}, {vb[r]}, {sAct}, {soa} offen {SC} ; tag=fa{ch}_{s}" for r in range(2)]
    if opt.get("dec", 1):
        k.ext(wcheck("p3b", 16, sflE, F3[1])); k("s_barrier")
        k.ext(stamp("g3b"))
        mq = hl(1)
        for _ in range(opt.get("nh", 8)): k.ext(take_mem(mq))
        k("WAITVM mst0"); k("s_barrier"); k(wsig(sclE, vbc, F4[0]))
        for _ in range(4): k.ext(take_mem(mq))
    else:
        k.ext(wcheck("p3b", 16, sflE, F3[1])); k("WAITVM mst0"); k("s_barrier")
        k(wsig(sclE, vbc, F4[0]))
        k.ext(stamp("g3b"))
        mq = hl(1)
        for _ in range(opt.get("nh", 12)): k.ext(take_mem(mq))
    mq += w2n(len(w2o))
    late = fl(0, 9) + fl(0, 10) + [f"buffer_load_dwordx4 {HR[0]}, {vl16}, {sHF}, {shf} offen {SC} ; tag=fe", f"s_add_u32 {shf}, {shf}, {MB}",
           f"buffer_load_dwordx4 {HR[1]}, {vl16}, {sHF}, {shf} offen {SC} ; tag=fe", f"buffer_load_dwordx4 {BRr}, {vg16}, {sB}, {spl} offen ; tag=fe"]
    eb = epass(2, q0=60)
    P4 = opt.get("p4", 8)
    play(eb + gelu_all(1), {P4: [[wpoll("p4a", sflE, F4[0])]], P4 + 32: wcheck("p4a", 16, sflE, F4[0]) + ["s_barrier", tuple(sum((fl(0, s) for s in range(9)), []))],
                            len(eb): stamp("eb") + [tuple(late)]}, mq)
    k.ext(stamp("gb"))

    FACC = v(160, 8); RD = v(104, 24); OP = PK[0]
    TD = lambda cb, rb: a(88 + ((cb // 2) * 4 + rb * 2 + cb % 2) * 4, 4) if cb // 2 or rb else FACC.sub(4 * cb, 4)
    def fpass(ch, hooks, nf):
        for s in range(11):
            if s in hooks: k.ext(hooks[s])
            need = [f"tag=fa{ch}_{s}"] + (["tag=w2"] if s == 0 else []) + (["tag=fe"] if s == 10 else [])
            while any(x.endswith(t_) for x in mq for t_ in need): k.ext(take_mem(mq))
            k(f"WAITVM fa{ch}_{s}" + (",w2" if s == 0 and ch == 0 else "") + (",fe" if s == 10 and ch == 0 else ""))
            grp = (1, 2, 3, 0) if s == 10 else range(4)
            mf = [f"{MF} {TD(2*(r//2)+t, r%2)}, {W2(s,2*(r//2)+t)}, {Af(s,r%2)}, {'0' if s == 0 else TD(2*(r//2)+t, r%2)}" for r in grp for t in range(2)]
            if s == 10: mf += addfrag(TD(0, 0), TD(1, 0), HR[ch]) + addfrag(TD(0, 0), TD(1, 0), BRr)
            G = Gaps(mf)
            if nf is not None and s + nf < 11:
                L = fl(ch, s + nf)
                for x in L[:-2]: G.put(0, x)
                G.put(1, L[-2]); G.put(5, L[-1])
            for g in (1, 5):
                for x in take_mem(mq): G.put(g if ismem(x) else g - 1, x)
            if s == 10:
                for r in range(1, 4):
                    for t in range(2): G.put(min(2 * r + 4 + t, 11), f"ds_write_b128 {vw[r-1]}, {TD(2*(r//2)+t, r%2)} offset:{ch*24576 + t*1024}")
            G.emit(k)
    def finish(ch, hook=()):
        k("s_waitcnt lgkmcnt(0)"); k("s_barrier")
        for j in range(6): k(f"ds_read_b128 {RD.sub(4*j,4)}, {vrd} offset:{ch*24576 + j*1024}")
        k.ext(hook)
        for p in range(3):
            k(f"s_waitcnt lgkmcnt({4-2*p})")
            for j in range(0, 8, 2): k(f"v_pk_add_f32 {FACC.sub(j,2)}, {FACC.sub(j,2)}, {RD.sub(8*p+j,2)}")
        k.ext(pack(OP, TD(0, 0), TD(1, 0)))
        k(f"buffer_store_dwordx4 {OP}, {vrow}, {sXO}, {sxo2} offen {opt.get('of', '')}")
    fpass(0, {opt.get("s4", 6): ["WAITVM mst1", "s_barrier", wsig(sclE, vbc, F4[1])]}, None)
    finish(0, [wpoll("p4b", sflE, F4[1]), f"s_mov_b32 {sAct[0]}, {sHM[0]}", f"s_mov_b32 {sAct[1]}, {sHM[1]}"])
    k(f"s_add_u32 {sxo2}, {sxo2}, {MB}")
    k.ext(stamp("fa"))
    k.ext(wcheck("p4b", 16, sflE, F4[1])); k("s_barrier")
    k.ext(stamp("g4b"))
    NF = opt.get("nf", 6)
    for s in range(NF): k.ext(fl(1, s))
    fpass(1, {}, NF)
    k.ext(stamp("fmm"))
    finish(1)
    if echo:
        k("s_waitcnt vmcnt(0)"); k.ext(stamp("end"))
        k("s_nop 4"); k(f"v_readlane_b32 {st0}, v0, 0"); k(f"v_readlane_b32 {st1}, v0, 1"); k("s_nop 4")
        k(f"s_sub_u32 {st0}, {st1}, {st0}"); k(f"s_lshl_b32 {st0}, {st0}, 2"); k(f"s_min_u32 {st0}, {st0}, 100000")
        k("s_memrealtime s[100:101]"); k("s_waitcnt lgkmcnt(0)"); k(f"s_mov_b32 {st1}, s100")
        k.label(Lb("echo"))
        k("s_memrealtime s[100:101]"); k("s_waitcnt lgkmcnt(0)"); k(f"s_sub_u32 {st2}, s100, {st1}")
        k(f"s_cmp_lt_u32 {st2}, {st0}"); k(f"s_cbranch_scc1 {Lb('echo')}")
    if dbg:
        k("s_waitcnt vmcnt(0)"); k.ext(stamp("end"))
        srd(k, sW, pWS, MB, WS_DBG)
        k(f"s_lshl_b32 {st0}, s2, 2"); k(f"s_add_u32 {st0}, {st0}, {swave}"); k(f"s_lshl_b32 {st0}, {st0}, 8")
        k(f"v_lshlrev_b32 {t0}, 2, {vlane}")
        k(f"buffer_store_dword v0, {t0}, {sW}, {st0} offen")
    k.label(E)
    k("s_endpgm")
    tail.label(Lb("codeend")); tail("s_endpgm")
    k.L = resolve_waits(k.L) + [x.replace("NOCOUNT ", "") for x in tail.L]
    return k, names

def build(path, **kw):
    import hazard
    k, names = gen(KNAME + "_kernel", **kw)
    k.L, nfix = hazard.fix(k.L, k.name)
    if nfix: print("padded", nfix, "hazards")
    bad = hazard.check(k.L, k.name)
    hdr = "; pre-LN latent-KV causal attention + channel MLP as one persistent launch (emitted by my own python generator)\n"
    open(path, "w").write(build_single(k, 512, 256, 102, 256, 256, 163840, hdr))
    check_file(path)
    if names: open(path[:-2] + ".names", "w").write(" ".join(names))
    return bad

if __name__ == "__main__":
    build("m.s"); build("m_dbg.s", dbg=True); build("m_force.s", thr=0.5)
```

```python
from asmlib import *
from layout import *
from k1 import f2h, MF, setup_wstream, wdma, trreads, cb_mfmas, pack
import math, re

NEGINF = "0xff800000"
SPIN = 200000

def sched(G, q, lo, hi=None, stq=None, second=False):
    hi = G.n - 1 if hi is None else hi
    g = lo
    while q and g <= hi:
        x = q[0]
        if isinstance(x, tuple):
            stq.append(x[1]); q.pop(0); continue
        full = G.cost(g) + icost(x) > G.cap
        clash = ismem(x) and len(G.g[g]) > 0 and not (second and len(G.g[g]) == 1 and G.g[g][0].startswith("ds_"))
        if full or clash:
            g += 1; continue
        G.g[g].append(x); q.pop(0)
    while q and isinstance(q[0], tuple):
        stq.append(q[0][1]); q.pop(0)

def glue(L):
    out = []
    for x in L:
        if x.startswith("s_addc") or x.startswith("s_cselect"): out[-1] += "\n" + x
        else: out.append(x)
    return out

def gen(name, dbg=False, thr=2.0**60, opt=None):
    opt = opt or {}
    SC = "sc1"; STF = opt.get("stf", "sc1")
    k = Kern(name)
    tail = Kern("tail")
    v = lambda b, n=1: Reg('v', b, n)
    a = lambda b, n=1: Reg('a', b, n)
    Lb = lambda s: f"L_{s}"
    E = Lb("end")
    vlane, vl16, vl16b, t0, t1, t2, vsig, vone, vpoll, vtr, vtrb, vinf, vm0, vm1, vm2 = [v(i) for i in range(1, 16)]
    X16 = v(16, 16); ACC = v(32, 128); WFr = v(160, 32); PB = v(192, 64)
    vW = X16.sub(0, 8); vco = X16.sub(8, 4); vcr = X16.sub(12, 4)
    WF = [WFr.sub(0, 16), WFr.sub(16, 16)]
    R = a(0, 256)
    S = Alloc("s", 3, 100)
    swave = S(); sh = S(); si = S(); st0 = S(); st1 = S(); st2 = S(); ssoff = S(); sldsw = S(); sspin = S()
    srg = S(2, 1); pWS = S(2)
    sFL = S(4); sKV = S(4); sXN = S(4); ssc = S(); sdb = S()
    mark0 = S.mark()
    nst = [0]; names = []
    echo = opt.get("echo")
    def stamp(nm):
        if echo:
            if nm == "start": return ["v_writelane_b32 v0, s100, 0"] + (["s_memrealtime s[100:101]", "s_waitcnt lgkmcnt(0)", "v_writelane_b32 v0, s100, 1"] if echo == nm else [])
            return ["s_memrealtime s[100:101]", "s_waitcnt lgkmcnt(0)", "v_writelane_b32 v0, s100, 1"] if nm == echo else []
        if not dbg or (opt.get("mini") and nm not in ("start", "st11", "ldone", "dmm", "end")): return []
        r = ["s_memtime s[100:101]" if opt.get("cyc") else "s_memrealtime s[100:101]", "s_waitcnt lgkmcnt(0)", f"v_writelane_b32 v0, s100, {nst[0]}"]
        nst[0] += 1; names.append(nm); return r
    def poll_issue(tag, vaddr, sd, soff, imm=0):
        return f"buffer_load_dword {vpoll}, {vaddr}, {sd}, {soff} offen offset:{imm} {SC} ; tag={tag}"
    def poll_check(tag, vaddr, sd, soff, n, imm=0):
        tail.label(Lb("spin" + tag)); tail(f"s_mov_b32 {sspin}, {SPIN}")
        tail.label(Lb("spl" + tag))
        tail(f"buffer_load_dword {vpoll}, {vaddr}, {sd}, {soff} offen offset:{imm} {SC}")
        tail("s_waitcnt vmcnt(0)"); tail(f"v_cmp_gt_u32 vcc, {n}, {vpoll}"); tail("s_nop 0")
        tail(f"s_cbranch_vccz {Lb('back'+tag)}")
        tail(f"s_sub_u32 {sspin}, {sspin}, 1"); tail(f"s_cbranch_scc0 {Lb('spl'+tag)}"); tail(f"s_branch {Lb('back'+tag)}")
        return [f"WAITVM {tag}", f"v_cmp_gt_u32 vcc, {n}, {vpoll}", "s_nop 0", f"s_cbranch_vccnz {Lb('spin'+tag)}", Lb("back" + tag) + ":"]
    def signal(sd, soff, vo=None): return f"buffer_atomic_add {vone}, {vo or vsig}, {sd}, {soff} offen"
    nsig = [0]
    def csignal(cond, ops, after=()):
        nsig[0] += 1; l = Lb(f"sg{nsig[0]}")
        return "\n".join([f"s_cmp_lg_u32 {cond}, 0", f"s_cbranch_scc1 {l}"] + ["NOCOUNT " + x for x in ops] + list(after) + [l + ":", ";"])
    def emit_dma(L):
        for x in L:
            k(x)
            if "m0" in x.split(",")[0]: k("s_nop 0")

    sldsc = sdb; scr = S(4, 2); sst = S(4, 2); sxr = S(4, 1); srot = S(); spe3 = S()
    sC = S(4); sWk = S(4); sWv = S(4); sWq = S(4); sDB = S(4); sP = S(4); sPD = S(4)
    sprow = S(); spA = S(); spB = S(); spd = S(); spe1 = S(); spe2 = S(); spstr = S(); spcs = S(); spxs = S(); sxo = S()
    pD = S(2); pA = S(4); pB = S(4); pC = S(4); pE = S(2); pF = sDB[0:2]
    sX = sXN
    k(f"s_cmp_ge_u32 s2, 256"); k(f"s_cbranch_scc1 {E}")
    if echo or opt.get("entry"): k("s_memrealtime s[100:101]")
    if opt.get("perm") == 1:
        k(f"s_and_b32 {st0}, s2, 7"); k(f"s_lshl_b32 {st0}, {st0}, 5"); k(f"s_lshr_b32 s2, s2, 3"); k(f"s_or_b32 s2, s2, {st0}")
    if opt.get("perm") == 2:
        k(f"s_and_b32 {st0}, s2, 7"); k(f"s_lshl_b32 {st0}, {st0}, 3"); k(f"s_bfe_u32 {st1}, s2, 0x30003"); k(f"s_and_b32 s2, s2, 0xc0"); k(f"s_or_b32 s2, s2, {st0}"); k(f"s_or_b32 s2, s2, {st1}")
    k(f"s_load_dwordx4 {pA}, s[0:1], 0")
    k(f"s_load_dwordx4 {pB}, s[0:1], 16")
    k(f"s_load_dwordx4 {pC}, s[0:1], 32")
    k(f"s_load_dwordx2 {pD}, s[0:1], 56")
    k(f"s_load_dwordx2 {pE}, s[0:1], 72")
    k(f"s_load_dwordx2 {pF}, s[0:1], 96")
    k(f"s_load_dwordx2 {pWS}, s[0:1], 104")
    k(f"v_lshrrev_b32 {t0}, 6, v0"); k(f"v_and_b32 {vlane}, 63, v0"); k(f"v_readfirstlane_b32 {swave}, {t0}")
    k(f"v_lshlrev_b32 {vl16}, 4, {vlane}")
    k(f"s_and_b32 {st0}, s2, 7"); k(f"s_lshl_b32 {st0}, {st0}, 2"); k(f"s_lshr_b32 {sh}, s2, 6"); k(f"s_add_u32 {sh}, {sh}, {st0}")
    k(f"s_bfe_u32 {si}, s2, 0x30003")
    TV = [t0, t1, vpoll, vpoll, t0, t1, vpoll, vpoll, vpoll]; touches = []
    def tc():
        return [[f"s_lshr_b32 {sspin}, s2, 3", f"s_lshl_b32 {sspin}, {sspin}, 2", f"s_add_u32 {sspin}, {sspin}, {swave}", f"s_lshl_b32 {sspin}, {sspin}, 14",
                 f"v_lshrrev_b32 {TV[0]}, 2, {vlane}", f"v_and_b32 {TV[1]}, 3, {vlane}", f"v_lshlrev_b32 {TV[1]}, 7, {TV[1]}", f"v_lshl_add_u32 {TV[0]}, {TV[0]}, 10, {TV[1]}",
                 f"buffer_load_dword {TV[2]}, {TV[0]}, {sC}, {sspin} offen offset:256"],
                [f"v_and_b32 {TV[1]}, 2, {vlane}", f"v_lshl_or_b32 {TV[0]}, {TV[1]}, 30, {TV[0]}",
                 f"buffer_load_dword {TV[3]}, {TV[0]}, {sC}, {sspin} offen offset:768"]]
    def tw(sd, row0, nrow, n):
        return [f"v_lshrrev_b32 {TV[4]}, 1, {vlane}", f"v_and_b32 {TV[5]}, 1, {vlane}", f"v_lshlrev_b32 {TV[5]}, 7, {TV[5]}", f"v_lshl_add_u32 {TV[5]}, {TV[4]}, 13, {TV[5]}",
                f"v_and_b32 {TV[4]}, {(~(nrow-1)) & 31}, {TV[4]}", f"v_lshl_or_b32 {TV[5]}, {TV[4]}, 26, {TV[5]}",
                f"s_mul_i32 {sspin}, {srg[0]}, {nrow*8192}", f"s_add_u32 {sspin}, {sspin}, {row0*8192}",
                f"buffer_load_dword {TV[6+n]}, {TV[5]}, {sd}, {sspin} offen"]
    tt = opt.get("touch", {"v": 3.5, "q": 10.4})
    if "c" in tt: touches += [(tt["c"], x) for x in tc()]
    if "k" in tt: touches.append((tt["k"], tw(sWk, 256, 8, 0)))
    if "v" in tt: touches.append((tt["v"], tw(sWv, 0, 16, 1)))
    if "q" in tt: touches.append((tt["q"], tw(sWq, 0, 16, 2)))
    if "p" in tt:
        touches.append((tt["p"], [f"v_bfe_u32 {t0}, {vlane}, 1, 2", f"v_and_b32 {t1}, 1, {vlane}", f"v_lshlrev_b32 {t1}, 7, {t1}", f"v_mad_u32_u24 {t1}, {t0}, {spstr}, {t1}",
                 f"v_bfe_u32 {t0}, {vlane}, 3, 1", f"v_mad_u32_u24 {t1}, {t0}, {spA}, {t1}", f"v_lshrrev_b32 {t0}, 4, {vlane}", f"v_mad_u32_u24 {t1}, {t0}, {spB}, {t1}",
                 f"buffer_load_dword {vpoll}, {t1}, {sP}, {sprow} offen"]))
        assert tt["p"] >= 0
    def tlb_touch(sh_):
        return [f"v_min_u32 {t2}, 39, {vlane}", f"v_lshlrev_b32 {t2}, 21, {t2}", f"v_mov_b32 {t1}, {pWS[1]}",
                f"v_add_co_u32 {t0}, vcc, {pWS[0]}, {t2}", "s_nop 1", f"v_addc_co_u32 {t1}, vcc, 0, {t1}, vcc",
                f"global_load_dword {vpoll}, v[{t0.base}:{t1.base}], off {SC}"]
    if "tlb" in tt: touches.append((tt["tlb"], tlb_touch(21)))
    def code_touch():
        pc = PB.sub(28, 2)
        k(f"s_getpc_b64 {sPD[0:2]}"); k.label(Lb("pc"))
        k(f"s_lshr_b32 {sspin}, s2, 3"); k(f"s_lshl_b32 {sspin}, {sspin}, 2"); k(f"s_add_u32 {sspin}, {sspin}, {swave}")
        k(f"v_lshl_add_u32 {t0}, {vlane}, 7, {sspin}"); k(f"v_lshlrev_b32 {t0}, 7, {t0}")
        k(f"v_min_u32 {t0}, {Lb('codeend')}-{Lb('pc')}-4, {t0}")
        k(f"v_mov_b32 {pc[1]}, {sPD[1]}"); k(f"v_add_co_u32 {pc[0]}, vcc, {sPD[0]}, {t0}"); k("s_nop 1"); k(f"v_addc_co_u32 {pc[1]}, vcc, 0, {pc[1]}, vcc")
        k("s_mov_b64 exec, 63"); k(f"global_load_dword {vpoll}, {pc}, off"); k("s_mov_b64 exec, -1")
    if opt.get("code", 1) == 1: code_touch()
    setup_wstream(k, vW, vtrb, vlane, swave, t0, t1, t2, st0)
    k(f"v_and_b32 {t0}, 15, {vlane}"); k(f"v_lshrrev_b32 {t1}, 4, {vlane}")
    k(f"s_lshl_b32 {sldsc}, {swave}, 14"); k(f"s_add_u32 {sldsc}, {sldsc}, {96*1024}")
    k(f"v_xor_b32 {t2}, {t0}, {t1}"); k(f"v_lshlrev_b32 {t2}, 4, {t2}")
    k(f"v_lshl_add_u32 {vco[0]}, {t1}, 10, {t2}")
    k(f"v_lshl_add_u32 {vcr[0]}, {t0}, 8, {t2}"); k(f"v_add_u32 {vcr[0]}, {sldsc}, {vcr[0]}")
    for q in range(1, 4):
        k(f"v_xor_b32 {vco[q]}, {q*64}, {vco[0]}"); k(f"v_add_u32 {vco[q]}, {q*4096 - q*1024}, {vco[q]}")
        k(f"v_xor_b32 {vcr[q]}, {q*64}, {vcr[0]}")
    k(f"s_lshl_b32 {st0}, {si}, 2"); k(f"s_add_u32 {srg[0]}, {st0}, {swave}")
    k(f"s_sub_u32 {srg[1]}, 60, {st0}"); k(f"s_add_u32 {srg[1]}, {srg[1]}, {swave}")
    ROT = opt.get("rot", 1)
    if opt.get("w5", 1): WSL = [0, 1, 2, 0, 1, 2, 3, 0, 4, 1, 2, 3]; WREL = [8, 7, 15, 23, 31, 31, 31, 39, 47, 55]
    else: WSL = [0, 1, 2] * 4; WREL = [8] + [8 * s_ - 17 for s_ in range(3, 12)]
    k(f"s_add_u32 {srot}, {sh if ROT == 2 else 's2'}, {si}"); k(f"s_and_b32 {srot}, {srot}, {3 if ROT else 0}")
    k(f"s_lshl_b32 {st1}, {srot}, 8"); k(f"s_lshl_b32 {srot}, {srot}, 20")
    k(f"s_lshl_b32 {scr[0]}, {srg[0]}, 16"); k(f"s_add_u32 {scr[0]}, {scr[0]}, {st1}")
    for rb in range(1, 4): k(f"s_add_u32 {scr[rb]}, {scr[0]}, {rb*16384}")
    k(f"s_lshl_b32 {sldsw}, {swave}, 13")
    k(f"s_lshl_b32 {ssc}, s2, 2"); k(f"s_add_u32 {ssc}, {ssc}, {swave}"); k(f"s_lshl_b32 {ssc}, {ssc}, 11")
    k(f"s_lshl_b32 {st0}, {sh}, 8"); k(f"s_sub_u32 {st1}, {4*MB}, {st0}")
    k(f"s_waitcnt lgkmcnt(0)")
    if opt.get("entry"): k(f"v_writelane_b32 v0, s100, {nst[0]}"); nst[0] += 1; names.append("entry")
    k.ext(stamp("start"))
    srd(k, sX, pA[0:2], 2 * MB); srd(k, sC, pA[2:4], 2 * MB)
    srd(k, sWk, pB[2:4], st1, st0)
    XR = [PB.sub(0, 4), PB.sub(4, 4)]; XF = [PB.sub(8, 8), PB.sub(16, 8)]; vs = PB.sub(24, 2); vt_ = PB.sub(26, 2)
    srd(k, sFL, pWS, 512 * 128, WS_FLG)
    k(f"s_cmp_ge_u32 s2, 11"); k(f"s_cselect_b32 {sspin}, 1, 0"); k(f"s_cbranch_scc1 {Lb('nz')}")
    for j in range(4): k(f"v_mov_b32 {XF[0][j]}, 0")
    k(f"s_lshr_b32 {ssoff}, {ssc}, 1")
    k(f"NOCOUNT buffer_store_dwordx4 {XF[0].sub(0,4)}, {vl16}, {sFL}, {ssoff} offen {SC}")
    k.label(Lb("nz"))
    k(f"v_add_u32 {vinf}, {ssc}, {vl16}")
    def cdma(ch):
        L = []
        for rb in range(4):
            L += [f"s_xor_b32 {ssc}, {scr[rb]}, {ch*256}", f"s_add_u32 m0, {sldsc}, {rb*4096}"]
            L += [f"buffer_load_dwordx4 {vco[q]}, {sC}, {ssc} offen offset:{q*1024} lds ; tag=c{ch}q{rb}" for q in range(4)]
        return L
    def creads(ch):
        return [f"ds_read_b128 {R.sub(((4*ch+ks)*4+rb)*4,4)}, {vcr[ks]} offset:{rb*4096}" for rb in range(4) for ks in range(4)]
    def wd(st):
        L = wdma(st, vW, (sWk, sWv, sWq)[st // 4], ssoff, sldsw, f"w{st}", WSL)
        if st < 8: L[0] = f"s_xor_b32 {ssoff}, {srot}, {(st % 4) << 20}"
        if st == 8 and opt.get("xrot", 1):
            L = [f"s_and_b32 {srot}, {sh}, 3", f"s_lshl_b32 {srot}, {srot}, 18"] + [f"v_xor_b32 {vW[p]}, {srot}, {vW[p]}" for p in range(8)] + L
        return L
    fine = opt.get("fine")
    NC0 = opt.get("nc0", 0)
    emit_dma(wd(0)); emit_dma(cdma(0)[:6 * NC0])
    if fine: k.ext(stamp("iw0"))
    srd(k, sWv, pC[0:2], st1, st0); srd(k, sWq, pB[0:2], st1, st0)
    k(f"s_lshl_b32 {st1}, {sh}, 20")
    srd(k, sKV, pWS, MB, st1)
    k(f"s_mov_b32 {sDB[2]}, 256"); k(f"s_mov_b32 {sDB[3]}, 0x20000")
    k(f"v_add_u32 {vl16b}, 4096, {vl16}")
    k(f"v_mov_b32 {vone}, 1")
    k(f"v_cmp_eq_u32 vcc, 0, {vlane}"); k(f"v_mov_b32 {t0}, 0x80000000"); k(f"v_mov_b32 {t1}, 0")
    k(f"v_cndmask_b32 {vsig}, {t0}, {t1}, vcc")
    k(f"s_lshl_b32 {sst[0]}, {srg[0]}, 14")
    for rb in range(1, 4): k(f"s_add_u32 {sst[rb]}, {sst[0]}, {rb*4096}")
    for g in range(2):
        k(f"s_lshl_b32 {sxr[2*g]}, {srg[g]}, 15")
        if opt.get("xrot", 1): k(f"s_and_b32 {st0}, {sh}, 3"); k(f"s_lshl_b32 {st0}, {st0}, 10"); k(f"s_add_u32 {sxr[2*g]}, {sxr[2*g]}, {st0}")
        k(f"s_add_u32 {sxr[2*g+1]}, {sxr[2*g]}, 16384")
    k(f"s_mul_i32 {st2}, {sh}, 7"); k(f"s_add_u32 {st2}, {st2}, {si}"); k(f"s_lshl_b32 {st2}, {st2}, 2"); k(f"s_add_u32 {st2}, {st2}, {swave}")
    k(f"s_sub_u32 {st2}, {st2}, 4"); k(f"s_cmp_eq_u32 {si}, 0"); k(f"s_cselect_b32 {st2}, 1000, {st2}")
    k(f"s_cmp_ge_u32 {st2}, 684"); k(f"s_cbranch_scc1 {Lb('pw1')}")
    k(f"s_mov_b32 {sP[2]}, {4*MB}"); k(f"s_mov_b32 {spe2}, {128*2048}"); k(f"s_mov_b32 {spe3}, {128*4096}")
    k(f"s_cmp_ge_u32 {st2}, 512")
    k(f"s_cselect_b32 {sP[0]}, {pE[0]}, {pC[2]}"); k(f"s_cselect_b32 {sP[1]}, {pE[1]}, {pC[3]}")
    k(f"s_cselect_b32 {sP[2]}, {1376*1024}, {sP[2]}"); k(f"s_cselect_b32 {spe2}, 2048, {spe2}"); k(f"s_cselect_b32 {spe3}, {43*4096}, {spe3}")
    k(f"s_cselect_b32 {spd}, {WS_W2P - WS_WOP}, 0"); k(f"s_cselect_b32 {spA}, 12, 11")
    k(f"s_and_b32 {st0}, {st2}, 511"); k(f"s_lshr_b32 {sprow}, {st0}, 2"); k(f"s_and_b32 {st0}, {st0}, 3")
    k(f"s_lshl_b32 {st1}, {sprow}, {spA}"); k(f"s_add_u32 {spd}, {spd}, {st1}")
    k(f"s_mul_i32 {st1}, {st0}, {spe3}"); k(f"s_lshl_b32 {st1}, {st1}, 1"); k(f"s_add_u32 {spd}, {spd}, {st1}")
    k(f"s_lshl_b32 {sprow}, {sprow}, 15"); k(f"s_lshl_b32 {st0}, {st0}, 8"); k(f"s_add_u32 {sprow}, {sprow}, {st0}")
    k(f"s_mov_b32 {spA}, {16*1024}"); k(f"s_mov_b32 {spB}, {4*1024}"); k(f"s_mov_b32 {spe1}, 1024")
    k(f"s_mov_b32 {spstr}, 1024"); k(f"s_mov_b32 {spcs}, 16"); k(f"s_mov_b32 {spxs}, 8")
    k(f"s_mov_b32 {sPD[2]}, {8*MB}")
    k(f"s_branch {Lb('pdone')}")
    k.label(Lb("pw1"))
    k(f"s_mov_b32 {sP[0]}, {pD[0]}"); k(f"s_mov_b32 {sP[1]}, {pD[1]}")
    k(f"s_cmp_ge_u32 {st2}, 860")
    k(f"s_cselect_b32 {sP[2]}, 0, {512*2752}"); k(f"s_cselect_b32 {sPD[2]}, 0, {8*MB}")
    k(f"s_sub_u32 {st0}, {st2}, 684"); k(f"s_and_b32 {sprow}, {st0}, 15"); k(f"s_lshr_b32 {st0}, {st0}, 4")
    k(f"s_lshl_b32 {spd}, {st0}, 17"); k(f"s_lshl_b32 {st1}, {sprow}, 10"); k(f"s_add_u32 {spd}, {spd}, {st1}")
    k(f"s_add_u32 {spd}, {spd}, {WS_W1P - WS_WOP}")
    k(f"s_mul_i32 {sprow}, {sprow}, {32*2752}")
    k(f"s_lshl_b32 {st0}, {st0}, 8"); k(f"s_add_u32 {sprow}, {sprow}, {st0}")
    k(f"s_mov_b32 {spA}, {4*2752}"); k(f"s_mov_b32 {spB}, {8*2752}"); k(f"s_mov_b32 {spe1}, 16384"); k(f"s_mov_b32 {spe2}, 32768"); k(f"s_mov_b32 {spe3}, 65536")
    k(f"s_mov_b32 {spstr}, 2752"); k(f"s_mov_b32 {spcs}, 8"); k(f"s_mov_b32 {spxs}, 32")
    k.label(Lb("pdone"))
    k(f"s_mov_b32 {sP[3]}, 0x20000")
    k(f"s_add_u32 {sPD[0]}, {pWS[0]}, {WS_WOP}"); k(f"s_addc_u32 {sPD[1]}, {pWS[1]}, 0"); k(f"s_mov_b32 {sPD[3]}, 0x20000")
    k(f"v_lshrrev_b32 {t0}, 4, {vlane}"); k(f"v_and_b32 {t1}, 15, {vlane}"); k(f"v_lshlrev_b32 {t1}, 7, {t1}")
    k(f"v_lshl_add_u32 {vm0}, {t0}, 13, {t1}"); k(f"s_lshl_b32 {st0}, {swave}, 5"); k(f"s_add_u32 {st0}, {st0}, 65536")
    k(f"v_lshrrev_b32 {t0}, 3, {vlane}"); k(f"v_and_b32 {t1}, 7, {vlane}"); k(f"v_lshlrev_b32 {t1}, 4, {t1}")
    if opt.get("gsw", 1):
        k(f"v_or_b32 {vm0}, {vm0}, {t1}"); k(f"v_xor_b32 {vm0}, {st0}, {vm0}")
        k(f"s_add_u32 {st0}, {sldsw}, 65536"); k(f"v_lshlrev_b32 {vm1}, 4, {t0}"); k(f"v_xor_b32 {vm1}, {vm1}, {vl16}"); k(f"v_add_u32 {vm1}, {st0}, {vm1}")
    else:
        k(f"v_xor_b32 {vm0}, {st0}, {vm0}"); k(f"s_add_u32 {st0}, {sldsw}, 65536"); k(f"v_add_u32 {vm1}, {st0}, {vl16}")
    k(f"v_lshl_add_u32 {vm2}, {t0}, 8, {t1}")
    k(f"s_lshr_b32 {sxo}, s2, 1"); k(f"s_lshl_b32 {sxo}, {sxo}, 14"); k(f"s_and_b32 {st0}, s2, 1"); k(f"s_lshl_b32 {st0}, {st0}, 7")
    k(f"s_add_u32 {sxo}, {sxo}, {st0}"); k(f"s_lshl_b32 {st0}, {swave}, 12"); k(f"s_add_u32 {sxo}, {sxo}, {st0}")
    WARM = opt.get("warm", ("P1", "D1", "T", "TE", "DM", "DMP", "DM7"))
    for t_ in WARM:
        k(f"s_branch {Lb('wu'+t_)}"); k.label(Lb("wb" + t_))
    def target(t_, fall=False):
        if t_ in WARM:
            if fall: k(f"s_branch {Lb(t_)}")
            k(".p2align 6"); k.label(Lb("wu" + t_)); k(f"s_branch {Lb('wb'+t_)}")
        k.label(Lb(t_))
    if fine: k.ext(stamp("setup"))
    emit_dma(cdma(0)[6 * NC0:])
    if fine: k.ext(stamp("ic0"))
    for tm, L in touches:
        if tm < 0: k.ext(L)
    for j in range(2): k(f"buffer_load_dwordx4 {XR[j]}, {vinf}, {sX}, 0 offen offset:{1024*j} ; tag=x")
    srd(k, sXN, pWS, 2 * MB, WS_XN)
    mark_ln = len(k.L)
    k("WAITVM x")
    for i in range(2):
        for j in range(4):
            k(f"v_lshlrev_b32 {XF[i][2*j]}, 16, {XR[i][j]}"); k(f"v_and_b32 {XF[i][2*j+1]}, 0xffff0000, {XR[i][j]}")
        k(f"v_add_f32 {vs[i]}, {XF[i][0]}, {XF[i][1]}")
        for j in range(2, 8): k(f"v_add_f32 {vs[i]}, {vs[i]}, {XF[i][j]}")
    allreduce(k, [vs[0], vs[1]], [vt_[0], vt_[1]])
    for i in range(2):
        k(f"v_mul_f32 {vs[i]}, {f2h(1/512)}, {vs[i]}")
        for j in range(8): k(f"v_sub_f32 {XF[i][j]}, {XF[i][j]}, {vs[i]}")
        k(f"v_mul_f32 {vs[i]}, {XF[i][0]}, {XF[i][0]}")
        for j in range(1, 8): k(f"v_fmac_f32 {vs[i]}, {XF[i][j]}, {XF[i][j]}")
    allreduce(k, [vs[0], vs[1]], [vt_[0], vt_[1]])
    for i in range(2):
        k(f"v_mov_b32 {vt_[i]}, {f2h(1e-5)}"); k(f"v_fmac_f32 {vt_[i]}, {f2h(1/512)}, {vs[i]}"); k(f"v_rsq_f32 {vs[i]}, {vt_[i]}")
    k("s_nop 0")
    for i in range(2):
        k(f"v_mul_f32 {vs[i]}, {f2h(QSCALE)}, {vs[i]}")
        for j in range(8): k(f"v_mul_f32 {XF[i][j]}, {XF[i][j]}, {vs[i]}")
        for j in range(4): k(f"v_cvt_pk_bf16_f32 {XR[i][j]}, {XF[i][2*j]}, {XF[i][2*j+1]}")
        if i: k(f"v_xor_b32 {vm0}, 16, {vm0}")
        k(f"ds_write_b128 {vm0}, {XR[i]}")
    lnq = [x for x in k.L[mark_ln:] if not x.startswith("s_nop")]; del k.L[mark_ln:]
    w1_ = wd(1); cr = creads(0)
    for q in range(4):
        for _ in range(2):
            while not ismem(w1_[0]): k(w1_.pop(0))
            k(w1_.pop(0))
        k(f"WAITVM c0q{q}" + (" lgkm=4" if q == 3 else "")); k.ext(cr[4 * q:4 * q + 4])
    k(csignal(sspin, [signal(sDB, 0)]))
    k.ext(stamp("ln"))
    k("s_barrier"); k("s_waitcnt lgkmcnt(4)")
    k.ext(trreads(0, 0, WF, vtr, vtrb, WSL))
    xnrd = [f"ds_read_b128 {XF[0].sub(4*j,4)}, {vm1} offset:{1024*j}" for j in range(2)]
    xnst = [f"buffer_store_dwordx4 {XF[0].sub(4*j,4)}, {vm2}, {sXN}, {sxo} offen offset:{2048*j} {SC} ; tag=z" for j in range(2)]
    k(f"s_lshr_b32 {st2}, s2, 4"); k(f"s_lshl_b32 {st2}, {st2}, 7"); k(f"s_add_u32 {st2}, {st2}, {320*128}")
    k(f"s_lshl_b32 {st0}, {si}, 1"); k(f"s_sub_u32 {st0}, 15, {st0}"); k(f"v_and_b32 {t2}, 1, {vlane}")
    k(f"v_mul_u32_u24 {t2}, {st0}, {t2}"); k(f"v_add_u32 {t2}, {si}, {t2}"); k(f"v_mov_b32 {vinf}, 0")
    p0adr = [f"v_lshlrev_b32 {vm1}, 7, {t2}", f"v_add_u32 {vm1}, {320*128}, {vm1}"]
    k("s_waitcnt lgkmcnt(0)")
    k.ext(stamp("go"))

    S2 = Alloc('s', sC.base, sWq.base)
    pool = [r.sub(2 * i, 2) for r in (sDB, scr, sst, pA, pB, pC, pD, pE) for i in range(r.n // 2)]
    assert all(p.base % 2 == 0 for p in pool)
    S3 = lambda n: pool.pop(0)
    skv = S2(); scnt = S2(); snS = S2(); sflag = S2(); sctx = S2(2, 1); mC = S2(2); sCT = S2(4)
    mA = [S3(2) for _ in range(4)]; mB = [S3(2) for _ in range(4)]; mT = [S3(2) for _ in range(4)]; mU = S3(2); mX = S3(2)
    SB = [WFr, PB.sub(0, 32)]; NM = PB.sub(32, 16); MK = PB.sub(48, 16); TMP = X16
    vra, vrc, vthr = vtr, vm2, vm0
    Q = a(0, 64); FK = a(64, 32); FV = a(128, 32); LA = a(96, 16); ONES = a(112, 4)
    O = lambda grp, db, qb: ACC.sub(grp * 64 + (db * 2 + qb) * 4, 4)
    Sq = lambda par, grp, qb: SB[par].sub((grp * 2 + qb) * 8, 8)
    St = lambda par, grp, qb, kb: SB[par].sub(grp * 16 + kb * 8 + qb * 4, 4)
    SMF = opt.get("smf", 1); SPA = a(116, 4); vidx = t2
    Qf = lambda grp, qb, ks: Q.sub(((grp * 2 + qb) * 4 + ks) * 4, 4)
    T = lambda cb, rb: ACC.sub((cb * 4 + rb) * 4, 4)
    XR_ = opt.get("xrot", 1)
    def xloads(ch):
        L = []
        if XR_:
            for ks in range(4):
                for rb in range(4):
                    L += [f"s_xor_b32 {ssc}, {sxr[rb]}, {ch*4096 + ks*1024}", f"buffer_load_dwordx4 {R.sub(((4*ch+ks)*4+rb)*4,4)}, {vl16}, {sXN}, {ssc} offen {SC} ; tag=x{ch}"]
            return L
        for rb in range(4):
            L.append(f"s_add_u32 {ssc}, {sxr[rb]}, {ch*4096}")
            L += [f"buffer_load_dwordx4 {R.sub(((4*ch+ks)*4+rb)*4,4)}, {vl16}, {sXN}, {ssc} offen offset:{ks*1024} {SC} ; tag=x{ch}" for ks in range(4)]
        return L
    def kvdma(j, tag):
        L = []
        for p in range(8):
            if p % 4 == 0: L.append(f"s_add_u32 m0, {sldsw}, {(j%4)*32768 + (p//4)*4096}")
            L.append(f"buffer_load_dwordx4 {vl16 if p < 4 else vl16b}, {sKV}, {scnt if j == 0 else skv} offen offset:{(p%4)*1024} {SC} lds ; tag={tag}")
        L.append(f"s_add_u32 {skv}, {skv}, 16384")
        return L
    presetup = []
    def prep_dma():
        presetup.extend([f"v_lshrrev_b32 {t0}, 4, {vlane}", f"v_bfe_u32 {t1}, {vlane}, 2, 2", f"v_and_b32 {t2}, 3, {vlane}",
              f"v_mul_u32_u24 {vcr[0]}, {spcs}, {t2}", f"v_add_u32 {vcr[1]}, {spxs}, {vcr[0]}",
              f"v_and_b32 {t2}, 1, {t0}", f"v_lshl_or_b32 {t2}, {t2}, 2, {t1}", f"v_lshlrev_b32 {t2}, 5, {t2}",
              f"v_lshl_or_b32 {t2}, {t1}, 8, {t2}", f"v_lshl_or_b32 {t2}, {t0}, 11, {t2}",
              f"s_add_u32 {sldsc}, {sldsw}, 131072", f"v_or_b32 {t2}, {sldsc}, {t2}",
              f"v_xor_b32 {vcr[0]}, {vcr[0]}, {t2}", f"v_xor_b32 {vcr[1]}, {vcr[1]}, {t2}",
              f"v_and_b32 {t1}, 15, {vlane}", f"v_lshlrev_b32 {t2}, 1, {t0}", f"v_xor_b32 {t1}, {t1}, {t2}", f"v_lshlrev_b32 {t1}, 4, {t1}",
              f"v_mad_u32_u24 {vco[0]}, {t0}, {spstr}, {t1}", f"v_xor_b32 {t1}, 128, {t1}", f"v_mad_u32_u24 {vco[1]}, {t0}, {spstr}, {t1}"])
        L = []
        for p in range(8):
            L.append(f"s_add_u32 m0, {sldsc}, {p*1024}")
            if p % 2: L.append(f"s_add_u32 {sxo}, {sprow}, {spA}")
            elif p: L.append(f"s_add_u32 {sprow}, {sprow}, {spB}")
            L.append(f"buffer_load_dwordx4 {vco[(p >> 1) & 1]}, {sP}, {sxo if p % 2 else sprow} offen lds ; tag=pp")
        return L
    def att_setup():
        L = Kern("x")
        srd(L, sCT, pWS, 16 * MB, WS_CTX)
        L(f"v_mov_b32 {vinf}, {NEGINF}")
        L(f"s_or_b32 {st0}, {sldsw}, 0x10000"); L(f"v_or_b32 {vrc}, {st0}, {vl16}")
        L(f"s_and_b32 {st0}, {swave}, 1"); L(f"s_lshl_b32 {skv}, {st0}, 13")
        L(f"s_cmp_ge_u32 {swave}, 2"); L(f"s_cselect_b32 {st1}, {512*1024-16384}, 0"); L(f"s_add_u32 {skv}, {skv}, {st1}"); L(f"s_add_u32 {skv}, {skv}, 8192")
        L(f"s_cmp_eq_u32 {swave}, 2"); L(f"s_cselect_b32 {scnt}, 0, {skv}")
        for g in range(2):
            L(f"s_lshr_b32 {st1}, {srg[g]}, 1"); L(f"s_lshl_b32 {sctx[g]}, {st1}, 19")
            L(f"s_lshl_b32 {st1}, {sh}, 14"); L(f"s_add_u32 {sctx[g]}, {sctx[g]}, {st1}")
            L(f"s_lshl_b32 {st1}, {st0}, 11"); L(f"s_add_u32 {sctx[g]}, {sctx[g]}, {st1}")
        L(f"s_lshr_b32 {snS}, {srg[0]}, 1"); L(f"s_add_u32 {snS}, {snS}, 1")
        L(f"s_mov_b32 {sflag}, 0")
        L(f"v_and_b32 {t0}, 15, {vlane}"); L(f"v_lshrrev_b32 {t1}, 4, {vlane}"); L(f"v_lshlrev_b32 {t1}, 2, {t1}"); L(f"v_sub_u32 {t0}, {t0}, {t1}")
        for r in range(4): L(f"v_cmp_le_i32 {mT[r]}, {r}, {t0}")
        L(f"s_cmp_eq_u32 {st0}, 0"); L(f"s_cselect_b64 {mC}, 0, -1")
        for r in range(4):
            L(f"s_or_b64 {mA[r]}, {mT[r]}, {mC}"); L(f"s_and_b64 {mB[r]}, {mT[r]}, {mC}")
        L(f"v_mov_b32 {t0}, 0x3f803f80"); L(f"v_mov_b32 {t1}, 0")
        for j in range(4): L(f"v_accvgpr_write_b32 {ONES[j]}, {t0}")
        for r in range(4): L(f"v_cndmask_b32 {MK[r]}, {vinf}, {t1}, {mA[r]}")
        L(f"v_mov_b32 {vthr}, {f2h(thr)}")
        if SMF:
            L(f"v_lshrrev_b32 {t1}, 4, {vlane}"); L(f"v_xor_b32 {t1}, {t1}, {vlane}"); L(f"v_bfe_u32 {t1}, {t1}, 1, 1"); L(f"v_add_u32 {t1}, -1, {t1}"); L(f"v_and_b32 {t1}, {t0}, {t1}")
            for j in range(4): L(f"v_accvgpr_write_b32 {SPA[j]}, {t1}")
            for j in range(8): L(f"v_accvgpr_write_b32 {LA[j]}, 0")
            L(f"v_and_b32 {t1}, 1, {vlane}"); L(f"v_mul_u32_u24 {t1}, 0xaaaa, {t1}"); L(f"v_add_u32 {vidx}, 0x4444, {t1}")
        return L.L
    streams = []
    def add_ops(L, rel, dl, dma=False):
        pre = []; n = 0; out = []
        for x in L:
            if x.startswith("buffer_") or x.startswith("global_"):
                out.append(dict(rel=rel[n] * 16, dl=dl[n] * 16, pre=pre, op=x, post=[], dma=dma)); pre = []; n += 1
            else: pre.append(x)
        assert n == len(rel) == len(dl), (n, len(rel))
        out[-1]["post"] = pre
        streams.append(out)
    lin = lambda t0_, t1_, n: [t0_ + (t1_ - t0_) * i / n for i in range(n)]
    rep = lambda L, n: [x for x in L for _ in range(n)]
    PBf = lambda n: PB.sub(4 * n, 4)
    PA = a(160, 32)
    kst = [f"buffer_store_dwordx4 {PBf(s*4+rb)}, {vl16}, {sKV}, {sst[rb]} offen offset:{s*1024} {STF} ; tag=kst" for s in range(4) for rb in range(4)]
    vst = [f"buffer_store_dwordx4 {PBf(cb*2+t)}, {vl16}, {sKV}, {sst[2*t+cb//4]} offen offset:{(cb%4)*1024} {STF} ; tag=vst" for cb in range(8) for t in range(2)]
    pst = [f"s_add_u32 {sprow}, {spd}, {spe3}"]
    for x in range(8):
        pst.append(f"buffer_store_dwordx4 {PA.sub(4*x,4)}, {vl16}, {sPD}, {spA if x % 2 else spd} offen {STF} ; tag=pst")
        if x % 2 == 0: pst.append(f"s_add_u32 {spA}, {spd}, {spe1}")
        elif x % 4 == 1: pst.append(f"s_add_u32 {spd}, {spd}, {spe2}")
        elif x == 3: pst.append(f"s_mov_b32 {spd}, {sprow}")
    sfl1 = st2
    LC = opt.get("lc", 4.5); SCST = opt.get("sc", 11.5); SMIN = opt.get("smin", 14)
    add_ops(cdma(1) + cdma(2) + cdma(3), rep([0, 0, 0, 0, 5, 6, 7, 8, 13, 14, 15, 16], 4), rep([0, 1, 2, 3, 7, 8, 9, 10, 15, 16, 17, 18], 4), True)
    WL = opt.get("wl", 9)
    add_ops(sum((wd(st) for st in range(2, 12)), []), rep(WREL, 8),
            rep([4, 11, 19], 8) + sum((lin(8 * st - 1 - WL - 6, 8 * st - 1 - WL + 2, 8) for st in range(5, 12)), []), True)
    XT = opt.get("xt"); S0S = 1 if XT else 2
    add_ops(xnst, [8, 8], [0, 0] if XT else [10.5, 10.6])
    add_ops([poll_issue("pz", vinf, sDB, 0)], [13], [0 if XT else 13])
    add_ops(kst, [max(27.2 + 2 * (n // 4), opt.get("k0", 27)) for n in range(16)], lin(28, opt.get("k1", 42), 16))
    for tm, L in touches:
        if tm >= 0: add_ops(L, [tm], [tm])
    TP0 = opt.get("tp0", 19) if XT else 33
    add_ops([poll_issue("p0", vm1, sFL, 0)], [TP0], [0 if XT else 33])
    if XT:
        nl = 128 // len(XT)
        L = poll_check("p0", vm1, sFL, 0, 16) + [f"s_bitcmp1_b32 {sh}, 1\ns_cselect_b32 {st0}, {srg[1]}, {srg[0]}", f"s_lshl_b32 {st0}, {st0}, 1", f"s_and_b32 {st1}, {sh}, 1",
             f"s_add_u32 {st0}, {st0}, {st1}", f"s_lshl_b32 {st0}, {st0}, 14", f"v_and_b32 {t0}, {64 - nl}, {vlane}", f"v_lshlrev_b32 {t0}, 25, {t0}", f"v_lshl_or_b32 {t0}, {vlane}, 7, {t0}"]
        for n_ in range(len(XT)):
            L += [f"buffer_load_dword {vpoll}, {t0}, {sXN}, {st0} offen {SC}", f"s_add_u32 {st0}, {st0}, {nl*128}"]
        add_ops(L, list(XT), list(XT))
    add_ops(sum((xloads(c) for c in range(4)), []), rep([40, 48, 56, 64], 16),
            lin(42, 50, 16) + lin(50, 58, 16) + lin(58, 74, 16) + lin(opt.get("x3", 74), 83, 16))
    add_ops(([f"s_lshl_b32 {st1}, {swave}, 24"] + [f"s_add_u32 {sst[i]}, {sst[i]}, {st1}" for i in range(4)] if opt.get("xv") else []) + [f"s_add_u32 {sst[i]}, {sst[i]}, {512*1024}" for i in range(4)] + vst, [58.2 + n // 2 for n in range(16)], lin(58, opt.get("v1", 77), 16))
    ppd = prep_dma()
    tp1 = opt.get("tp1", 88); TS1 = int(opt.get("ts1", 85)); s1e = sxo; s1l = srot
    s1set = [f"s_lshl_b32 {sfl1}, {sh}, 10", f"s_lshl_b32 {s1l}, {si}, 7", f"s_add_u32 {s1l}, {s1l}, {sfl1}",
             f"v_and_b32 {vm1}, 56, {vlane}", f"v_lshlrev_b32 {vm1}, 25, {vm1}", f"v_lshl_or_b32 {vm1}, {vlane}, 7, {vm1}",
             f"s_cmp_eq_u32 {swave}, 0\ns_cselect_b32 {s1e}, 8, 0"]
    s1sig = ["WAITVM vst", "s_barrier", csignal(swave, [signal(sFL, sfl1, vm1) + " offset:12"]),
             f"s_lshl_b32 {sfl1}, {swave}, 28", f"v_mov_b32 {vm1}, {sfl1}", f"s_lshl_b32 {sfl1}, {sh}, 8", f"s_add_u32 {sfl1}, {sfl1}, 32768"]
    add_ops([poll_issue("p1", vm1, sFL, s1l, 12)], [tp1], [0])
    add_ops(poll_check("p1", vm1, sFL, s1l, s1e, 12) + ["s_barrier"] + kvdma(0, "kv0") + kvdma(1, "kv1"), [tp1 + 2.5] * 16, [90] * 16, True)
    slots = {}; Tp = 1.0; owner = None; lastst = -99
    while any(streams):
        cand = []
        for sm in streams:
            if not sm: continue
            o = sm[0]
            if o["dma"] and owner is not None and owner is not sm: continue
            r = o["rel"]
            if "store_dwordx4" in o["op"]: r = max(r, lastst + SMIN)
            cand.append((max(r, Tp), o["dl"], id(sm), sm))
        now = min(c[0] for c in cand)
        sm = min((c for c in cand if c[0] <= now + 1), key=lambda c: c[1])[3]
        o = sm.pop(0)
        g = int(math.ceil(max(now, o["rel"])))
        while g % 16 == 15 or g in slots: g += 1
        slots[g] = o
        big = "dwordx4" in o["op"]
        st_ = "store" in o["op"]
        lc_ = opt.get("lc2", 5.0) if 40 * 16 <= g < 88 * 16 else LC
        Tp = max(now, g - 1) + (((opt.get("scv", SCST) if "vst" in o["op"] else SCST) if st_ else lc_) if big else (2 if "atomic" in o["op"] or "tag=p" in o["op"] else 8))
        if big and st_: lastst = g
        if o["dma"]: owner = sm if sm and not any("m0" in x for x in sm[0]["pre"]) else None
    assert max(slots) < 96 * 16 - 2, max(slots)
    lastv = max(79 * 16, max(g for g in slots if "tag=vst" in slots[g]["op"])); firstkv = min(g for g in slots if "tag=kv0" in slots[g]["op"])
    assert lastv < TS1 * 16 - 8 and tp1 >= TS1
    if opt.get("showsched"):
        for g in sorted(slots):
            m_ = re.search(r"tag=(\S+)", slots[g]["op"]); print(f"{g/16:.2f}:{m_.group(1) if m_ else '-'}", end=" ")
        print()
    sW = sXN; sow = ssc; s7 = mU[0]
    Wd = lambda ks, cb: a(160 + ks * 8 + cb * 4, 4) if ks < 12 else v(32 + (ks - 12) * 8 + cb * 4, 4) if ks < 20 else a((ks - 20) * 8 + cb * 4, 4)
    def wl(s): return [f"buffer_load_dwordx4 {Wd(2*s+c//2,c%2)}, {vl16}, {sW}, {sow} offen offset:{c*1024} {SC} ; tag=dw{s}" for c in range(4)] + [f"s_xor_b32 {sow}, {sow}, {(s ^ (s + 1)) * 4096}"]
    U = Kern("x")
    srd(U, sW, pWS, 4 * MB, WS_WOP)
    U(f"s_and_b32 {st0}, {si}, 3"); U(f"s_lshl_b32 {st0}, {st0}, 2"); U(f"s_add_u32 {st0}, {st0}, {swave}"); U(f"s_lshl_b32 {sow}, {st0}, 18")
    U(f"s_bfe_u32 {st0}, s2, 0x20001"); U(f"s_lshl_b32 {st0}, {st0}, 16"); U(f"s_add_u32 {sow}, {sow}, {st0}")
    DR = 3 if opt.get("drot", 0) else 0
    U(f"s_and_b32 {st0}, {si}, {DR}"); U(f"s_lshl_b32 {st0}, {st0}, 14"); U(f"s_add_u32 {sow}, {sow}, {st0}")
    U(f"v_and_b32 {vm1}, 31, {vlane}"); U(f"v_lshlrev_b32 {vm1}, 8, {vm1}"); U(f"v_add_u32 {vm1}, 32768, {vm1}"); U(f"s_mov_b32 {s7}, 1")
    wset = glue(U.L)
    drainq = []; auxq = []; carry = []; npk = [0]
    def drain_q(ta, tb, dst):
        p = PB.sub(4 * (npk[0] % 4), 4); npk[0] += 1
        return pack(p, ta, tb) + [f"v_accvgpr_write_b32 {dst[j]}, {p[j]}" for j in range(4)]
    k(trreads(0, 1, WF, vtr, vtrb, WSL)[0])
    order = sorted(slots)
    k.ext(slots[order[0]]["pre"]); slots[order[0]]["pre"] = []
    allG = []
    for st in range(12):
        for cb in range(8):
            t = st * 8 + cb
            G = Gaps(cb_mfmas(st, cb, ACC, WF, R, swap=4 <= st < 8))
            for g in range(16):
                if 16 * t + g in slots: G.put(g, slots[16 * t + g]["op"])
            free = [g for g in range(15) if not G.g[g]]
            extra = []; w_ = None
            if st < 3 and cb >= 4:
                q_ = cb - 4; w_ = f"WAITVM c{st+1}q{q_}"; extra = creads(st + 1)[4 * q_:4 * q_ + 4]
            pos = free[:8]
            if extra: pos = [free[0], free[0], free[1], free[1]] + free[2:6]
            if t < 95:
                for g, x in zip(pos, trreads((t + 1) // 8, (t + 1) % 8, WF, vtr, vtrb, WSL)[1:]): G.put(g, x)
            if w_: G.put(pos[-1], w_)
            for g, x in zip(free[6:10], extra): G.put(g, x)
            if t < 94: G.put(15, trreads((t + 2) // 8, (t + 2) % 8, WF, vtr, vtrb, WSL)[0])
            if t < 95:
                if cb == 7 and 7 <= st <= 10: G.put(15, f"WAITVM x{st-7} lgkm=0")
                else: G.put(15, "s_waitcnt lgkmcnt(0)")
            allG.append(G)
    prev = 0
    def place(L, lo, hi):
        g = lo
        for x in L:
            while g < hi and allG[g // 16].cost(g % 16) + icost(x) > 8: g += 1
            allG[g // 16].put(g % 16, x)
    for n, gpos in enumerate(order):
        L = (slots[order[n - 1]]["post"] if n else []) + slots[gpos]["pre"]
        lo = prev
        if slots[gpos]["pre"] and slots[gpos]["pre"][0].startswith("WAITVM"): lo = max(lo, gpos - 8)
        place(L, lo, gpos - 1)
        prev = gpos
    place(slots[order[-1]]["post"], prev, 96 * 16 - 1)
    for st in range(12):
        if st == 5: auxq += presetup
        for cb in range(8):
            G = allG[st * 8 + cb]
            if cb == 7 and st < 11:
                tags = f"w{st+1}" + (",z" if st == S0S else "")
                k(f"WAITVM {tags}"); k("s_barrier")
                if st == S0S: auxq += poll_check("pz", vinf, sDB, 0, 44) + [csignal(swave, [signal(sFL, st2)])]
            if st == 9 and cb == 0: auxq += s1set
            if st * 8 + cb == TS1: k.ext(s1sig)
            if st * 8 + cb == lastv // 16 + 1: auxq += glue(att_setup())
            if st * 8 + cb == firstkv // 16 - 1: assert not auxq
            if st * 8 + cb == firstkv // 16 + 1: auxq += wset
            if st == 4 and cb == 6 and not XT: auxq += poll_check("p0", vm1, sFL, 0, 16)
            if st == 0 and cb < 7 and cb >= opt.get("ln0", 2):
                nper = -(-len(lnq) // (7 - cb)); g = 0
                for n_ in range(nper):
                    G.put((n_ * 15) // nper, lnq.pop(0))
            if st == 0 and cb == 7:
                assert not lnq
                for g_, x in zip((12, 13), xnrd): G.put(g_, x)
            if st == 1 and cb == 0: auxq += p0adr
            sched(G, auxq, 0, 14)
            sched(G, drainq, 1, 14)
            G.emit(k)
            if st == 3 and cb % 2 == 1:
                for rb in range(4): drainq += pack(PBf((cb // 2) * 4 + rb), T(cb - 1, rb), T(cb, rb))
            if st == 7:
                for t in range(2): drainq += pack(PBf(cb * 2 + t), T(cb, 2 * t), T(cb, 2 * t + 1))
            if st == 11 and cb % 2 == 1:
                for rb in range(4): drainq += drain_q(T(cb - 1, rb), T(cb, rb), Qf(rb // 2, rb % 2, cb // 2))
        k.ext(stamp(f"st{st}"))
    assert not auxq
    seen = {}
    for n, ln in enumerate(k.L):
        if ln.startswith("v_cvt_pk") or ln.startswith("ds_read_b64_tr"): seen[ln.split()[1].rstrip(",")] = n
        if "tag=kst" in ln or ("tag=vst" in ln and str(sKV) in ln):
            b = int(re.search(r"v\[(\d+):", ln).group(1))
            assert all(seen.pop(f"v{b+j}", None) is not None for j in range(4)), ln

    OFF = {"K0": 0, "K1": 8192, "V0": 16384, "V1": 24576}
    def rd(dst, f, src, va): return f"ds_read_b128 {dst.sub(4*f,4)}, {va} offset:{OFF[src] + f*1024}"
    def ph_pv(groups, par, first=False, lfirst=False):
        mf = []; lu = {}; fu = {}
        def lsum():
            for g in groups:
                if SMF:
                    mf.append(f"v_smfmac_f32_16x16x64_bf16 {LA.sub(4*g,4)}, {SPA}, {SB[par].sub(16*g,8)}, {vidx}"); continue
                for qb in range(2):
                    l = LA.sub((g * 2 + qb) * 4, 4)
                    mf.append(f"{MF} {l}, {ONES}, {St(par,g,qb,0)}, {'0' if first else l}")
        if lfirst: lsum()
        for db in range(8):
            for g in groups:
                for qb in range(2):
                    fu.setdefault(db, len(mf)); lu[db] = len(mf)
                    mf.append(f"{MF} {O(g,db,qb)}, {FV.sub(4*db,4)}, {St(par,g,qb,0)}, {'0' if first else O(g,db,qb)}")
        if not lfirst: lsum()
        return mf, fu, lu, FV
    def ph_qk(groups, par, cfun):
        mf = []; lu = {}; fu = {}
        for kb in range(2):
            for g in groups:
                for qb in range(2):
                    d = St(par, g, qb, kb)
                    for ks in range(4):
                        f = 4 * kb + ks
                        fu.setdefault(f, len(mf)); lu[f] = len(mf)
                        mf.append(f"{MF} {d}, {FK.sub(4*f,4)}, {Qf(g,qb,ks)}, {cfun(g,qb,kb) if ks == 0 else d}")
        return mf, fu, lu, FK
    cplain = lambda g, qb, kb: NM.sub((g * 2 + qb) * 4, 4)
    def maskops(which, mtri, mc, base, full=True, MK=MK):
        L = []; tiles = {}
        for kb in range(2):
            for qb in range(2):
                t = MK.sub((qb * 2 + kb) * 4, 4); tiles[(qb, kb)] = t
                if kb < qb and which == "a" and not full:
                    tiles[(qb, kb)] = None; continue
                for r in range(4):
                    if kb == qb: m = mtri[r]
                    elif kb > qb: m = mc if which == "a" else "none"
                    else: m = None if which == "a" else mc
                    if m is None: L.append(f"v_mov_b32 {t[r]}, {base(qb, r)}")
                    elif isinstance(m, str): L.append(f"v_mov_b32 {t[r]}, {vinf}")
                    else: L.append(f"v_cndmask_b32 {t[r]}, {vinf}, {base(qb, r)}, {m}")
        return L, tiles
    def waits_last(G):
        for g in range(G.n):
            w = [y for y in G.g[g] if y.startswith("s_waitcnt")]
            G.g[g] = [y for y in G.g[g] if not y.startswith("s_waitcnt")] + w
    def build(phases, va):
        mf = []; start = []
        for p in phases:
            start.append(len(mf)); mf += p[0]
        start.append(len(mf))
        G = Gaps(mf)
        for g, m in enumerate(mf):
            if m.startswith("v_smfmac"): G.put(g, "; (longer issue)")
        for pi, (m, fu, lu, regs, nxt, w) in enumerate(phases):
            if nxt:
                for f in range(8): G.put(start[pi] + lu[f], rd(regs, f, nxt, va))
            if w == "split":
                G.put(start[pi] + fu[0] - 1, "s_waitcnt lgkmcnt(4)"); G.put(start[pi] + fu[4] - 1, "s_waitcnt lgkmcnt(0)")
            elif w is not None: G.put(start[pi] - 1, f"s_waitcnt lgkmcnt({w})")
        return G, start
    def softmax(G, lo, hi, par, groups, pre=None):
        els = [(g, qb, kb, r) for kb in range(2) for g in groups for qb in range(2) for r in range(4)]
        n = len(els)
        free = [x for x in range(lo, hi) if G.cost(x) == 0]
        if len(free) >= n: pos = [free[(i * len(free)) // n] for i in range(n)]
        else:
            cand = sorted((G.cost(x) + 8 * rep, x) for x in range(lo, hi) for rep in range(2))
            pos = sorted(x for _, x in cand[:n])
        gcv = lo
        for (g, qb, kb, r), p in zip(els, pos):
            s = St(par, g, qb, kb)
            G.put(p, f"v_exp_f32 {s[r]}, {s[r]}")
        for (g, qb, kb, r), p in zip(els, pos):
            if r % 2 == 1:
                s = St(par, g, qb, kb); c = 2 * kb + r // 2
                lo_ = max(gcv, p + 1)
                gcv = G.add(f"v_cvt_pk_bf16_f32 {St(par,g,qb,0)[c]}, {s[r-1]}, {s[r]}", lo_, min(hi, lo_ + opt.get("cvl", 10)))
    rl = TMP.sub(0, 2)
    def recip(g):
        rd_ = [f"v_accvgpr_read_b32 {rl[qb]}, {LA[(g*2+qb)*4]}" for qb in range(2)]
        if SMF:
            rd_ = [f"v_accvgpr_read_b32 {TMP[(j%2)*2 + j//2]}, {LA[4*g+j]}" for j in range(4)] + [f"v_add_f32 {rl[qb]}, {rl[qb]}, {TMP[2+qb]}" for qb in range(2)]
        return rd_ + [
            f"v_add_f32 {t1}, {rl[0]}, {rl[1]}", f"v_cmp_nlt_f32 vcc, {t1}, {vthr}", f"v_rcp_f32 {rl[0]}, {rl[0]}", f"v_rcp_f32 {rl[1]}, {rl[1]}"]
    def pair(pvA, qkA, smA, pvB, qkB, smB, dma=True, mask=None, loop=None, endwait=8, extra=(), prep=False, wpre=(),
             first=False, static=None, lastk=False, fin=None, wmix=(), head=()):
        va = static[0] if static else vra
        ph = []; pm = []
        def cf(which):
            if mask is None: return cplain
            L, tiles = maskops(which, mA if which == "a" else mB, mC, lambda qb, r: NM[(mask * 2 + qb) * 4 + r], full=False,
                               MK=SB[1].sub(0, 16) if mask == 1 and which == "b" else MK)
            if mask == 0: pm.append((len(ph) - 1, L))
            return lambda g, qb, kb: (tiles[(qb, kb)] or cplain(g, qb, kb)) if g == mask else cplain(g, qb, kb)
        ph.append(ph_pv(pvA, 0, first) + ("V0", None))
        if qkA: c = cf("a"); ph.append(ph_qk(qkA, 0, c) + ("K0", 8))
        nb = len(ph)
        if qkB:
            ph.append(ph_pv(pvB, 1) + ("V1", 8))
            c = cf("b"); ph.append(ph_qk(qkB, 1, c) + (None if lastk else "K1", 8))
        else: ph.append(ph_pv(pvB, 1, lfirst=True) + (None, "split"))
        G, start = build(ph, va)
        n = G.n
        packed = static and opt.get("pack", 1)
        if packed:
            for pi in range(4):
                rds = [(g, x) for g in range(start[pi], start[pi + 1]) for x in G.g[g] if x.startswith("ds_read")]
                for g, x in rds: G.g[g].remove(x)
                for f, (g, x) in enumerate(rds): G.put(rds[f | 1][0], x)
            G.g[start[2] - 1].remove("s_waitcnt lgkmcnt(8)"); G.put(start[2] - 2, "s_waitcnt lgkmcnt(6)")
            G.put(n - 2, f"s_waitcnt vmcnt({endwait}) lgkmcnt(6)"); endwait = None
        G.put(0, "s_barrier")
        if not static: G.put(0, f"v_xor_b32 {vra}, m0, {vrc}")
        for x in head: G.put(1, x); G.put(1, "; (several)")
        single = len(pvA) == 1
        def putmem(x, g, own):
            if own:
                while g < n - 2 and G.cost(g) != 0: g += 1
            else:
                while g < n - 2 and not (G.cost(g) == 4 and G.g[g][0].startswith("ds_read")): g += 1
            G.put(g, x); return g
        later = []
        d0 = 0
        d1 = n
        if prep == 1:
            g_ = 0; c = 0; hl_ = [f"s_mov_b32 {st0}, m0"]
            for x in ppd:
                if ismem(x):
                    g_ = putmem(x, max(g_ + 2, 2 + c * opt.get("pps", 9)), True); c += 1
                    for y in hl_: G.put(g_ - 1, y)
                    hl_ = []
                else: hl_.append(x)
            G.put(g_ + 1, f"s_mov_b32 m0, {st0}")
            d0 = g_ + 4
        if prep == 2:
            G.put(1, "s_waitcnt vmcnt(8)"); g = 2
            for x_ in range(8):
                if g % 4 == 3: g += 1
                for hf in range(2): G.put(g, f"ds_read_b64_tr_b16 {PA.sub(4*x_+2*hf,2)}, {vcr[x_%2]} offset:{hf*1024}")
                if x_ < 6: G.put(g, f"v_xor_b32 {vcr[x_%2]}, {64*((x_//2) ^ (x_//2+1))}, {vcr[x_%2]}")
                g += 1
            g_ = 0; c = 0
            G.put(20, "s_waitcnt lgkmcnt(2)")
            for x in pst:
                if ismem(x): g_ = putmem(x, 21 + c * opt.get("pss", 9), True); c += 1
                else: G.put(g_ + 1 if c else 2, x)
            d0 = g_ + 2
        mem = list(wpre); g_ = 0; c = 0
        for x in mem:
            if ismem(x): g_ = 1 + 4 * c; G.put(g_, x); c += 1; d0 = 1 if packed else d0
            else: G.put(g_ + 2, x)
        if dma:
            D = [f"buffer_load_dwordx4 {vl16 if p < 4 else vl16b}, {sKV}, {skv} offen offset:{(p%4)*1024} {SC} lds" for p in range(8)]
            pos = []; lo = 2 if static else 1
            for p in range(8):
                g = putmem(D[p], max(lo, d0 + 1 + (p * (d1 - d0 - 6)) // 8), not single or packed)
                pos.append(g); lo = g + (2 if p == 3 else 1)
            nm_ = sum(ismem(x) for x in wmix); c = 0; g_ = 1
            for x in wmix:
                if ismem(x): g_ = putmem(x, max(g_ + 2, 4 + (c * (n - 12)) // nm_), True); c += 1; assert g_ < n - 2
                else: G.put(g_ + 1, x)
            if static:
                G.put(0, f"s_mov_b32 m0, {static[1]}")
                later = [(f"s_add_u32 m0, {static[1]}, 4096", pos[3], pos[4] - 1), (f"s_add_u32 {skv}, {skv}, 16384", pos[7], n - 1)]
            else:
                later = [(f"s_add_u32 m0, m0, 4096", pos[3], pos[4] - 1),
                         (f"s_add_u32 {skv}, {skv}, 16384", pos[7], d1 - 1), (f"s_add_u32 m0, m0, {32768-4096}", pos[7], d1 - 1)]
        elif fin is None or qkA: later = [(f"s_add_u32 m0, m0, 32768", 1, n - 1)]
        if smA: softmax(G, 1, start[nb] - 2, 1, smA)
        if smB: softmax(G, start[nb], n - 2, 0, smB)
        for (pi, L) in pm: G.chain(L, start[pi] + 1, start[pi + 1] - 3)
        if fin is not None: G.chain(recip(fin), (start[nb + 1] if qkB else start[nb] + 2) + 4, n - 1)
        gl = 0
        for x, lo, hi in later: gl = G.add(x, lo, hi)
        if later and not static: gl = G.add("s_and_b32 m0, m0, 0x1ffff", gl, d1 - 1)
        if loop: G.add(f"s_sub_u32 {scnt}, {scnt}, 1", gl, n - 2)
        waits_last(G)
        k.ext(extra); G.emit(k)
        if endwait is not None: k(f"s_waitcnt vmcnt({endwait}) lgkmcnt({0 if lastk else 8})")
        if loop: k(f"s_cbranch_scc0 {loop}")
    def epilogue(kk, g, lsrc=None, fill=()):
        fill = list(fill); per = -(-len(fill) // 7)
        if lsrc is None:
            kk(f"s_cmp_lg_u64 vcc, 0"); kk(f"s_cselect_b32 {st0}, {1 << g}, 0"); kk(f"s_or_b32 {sflag}, {sflag}, {st0}")
        else:
            for qb in range(2): kk(f"v_rcp_f32 {rl[qb]}, {lsrc[qb]}")
        n = 0
        for s in range(4):
            kk(f"s_add_u32 {ssoff}, {sctx[g]}, {s*4096}")
            for qb in range(2):
                p = TMP.sub(4 + 4 * (n % 3), 4); n += 1
                sel = "op_sel_hi:[1,0]" if qb == 0 else "op_sel:[0,1]"
                for db in (2 * s, 2 * s + 1):
                    for r in (0, 2): kk(f"v_pk_mul_f32 {O(g,db,qb).sub(r,2)}, {O(g,db,qb).sub(r,2)}, {rl} {sel}")
                kk.ext(pack(p, O(g, 2 * s, qb), O(g, 2 * s + 1, qb)))
                kk(f"buffer_store_dwordx4 {p}, {vl16}, {sCT}, {ssoff} offen offset:{qb*1024} {SC} ; tag=cst")
                for _ in range(min(per, len(fill))): kk(fill.pop(0))
    k("WAITVM kv0"); k("s_barrier")
    for f in range(8): k(rd(FK, f, "V0", vl16))
    k.ext(drainq); drainq = []
    def prologue(masked):
        mx = [TMP[j] for j in range(4)]; mt = [TMP[4 + j] for j in range(4)]
        nmb = lambda qb, r: NM[qb * 4 + r]
        La, ta = maskops("a", mA, mC, nmb, full=False); Lb_, tb = maskops("b", mB, mC, nmb)
        def c0(g, qb, kb):
            if kb == 0: return MK.sub(0, 4) if masked and g == 0 and qb == 0 else "0"
            return ta[(qb, kb)] if masked and g == 0 else cplain(g, qb, kb)
        c1 = lambda g, qb, kb: tb[(qb, kb)] if masked and g == 0 else cplain(g, qb, kb)
        G, start = build([ph_qk([0, 1], 0, c0) + ("K0", None), ph_qk([0, 1], 1, c1) + ("K1", "split")], vl16)
        G.g[47] = [y.replace("lgkmcnt(0)", "lgkmcnt(4)") for y in G.g[47]]
        for f in range(8): G.put(f, rd(FV, f, "V1", vl16))
        G.put(15, "s_waitcnt lgkmcnt(12)")
        d2 = kvdma(2, "kv2"); g = 0
        for x in d2:
            if ismem(x): g += 1; G.put(g, x); g += 3
            else: G.put(g, x)
        for j in range(4):
            s = St(0, j // 2, j % 2, 0); g = 4 * j + 6
            G.put(g, f"v_max3_f32 {mx[j]}, {s[0]}, {s[1]}, {s[2]}"); G.put(g, f"v_max_f32 {mx[j]}, {mx[j]}, {s[3]}")
            G.put(g + 1, f"v_mov_b32 {mt[j]}, {mx[j]}")
            G.put(g + 3, f"v_permlane16_swap_b32 {mx[j]}, {mt[j]}"); G.put(g + 3, f"v_max_f32 {mx[j]}, {mx[j]}, {mt[j]}")
            G.put(g + 4, f"v_mov_b32 {mt[j]}, {mx[j]}")
            G.put(g + 6, f"v_permlane32_swap_b32 {mx[j]}, {mt[j]}"); G.put(g + 6, f"v_max_f32 {mx[j]}, {mx[j]}, {mt[j]}")
            for r in range(4): G.put(g + 7 + r // 2, f"v_sub_f32 {NM[4*j+r]}, 0, {mx[j]}")
            if masked and j < 2:
                for x in La[4 + 4 * j:8 + 4 * j]: G.put(g + 8, x)
        G.chain([f"v_sub_f32 {St(0,j//2,j%2,0)[r]}, {St(0,j//2,j%2,0)[r]}, {mx[j]}" for j in range(4) for r in range(4)], 25, 31)
        if masked: G.chain(Lb_, 26, 30)
        softmax(G, 32, 63, 0, [0, 1])
        waits_last(G)
        k("s_waitcnt lgkmcnt(4)")
        G.emit(k)
        k(f"s_add_u32 m0, {sldsw}, {3*32768}")
        k("s_waitcnt vmcnt(8) lgkmcnt(8)")
    k("VMRESET")
    D = [0, 1]
    pa = lambda c: csignal(c, [poll_issue("pa", vm1, sFL, 0, 128)])
    pax = lambda: [f"s_xor_b32 {st0}, {si}, 6", pa(st0), f"s_mov_b32 {mT[1][1]}, m0"]
    wls = lambda a_, b_: sum((wl(s_) for s_ in range(a_, b_)), [])
    U = Kern("x")
    vsa = vtrb; ssa = sdb
    U(f"s_lshr_b32 {ssa}, {srg[0]}, 1"); U(f"s_lshl_b32 {ssa}, {ssa}, 2"); U(f"s_lshr_b32 {st0}, {sh}, 3"); U(f"s_add_u32 {ssa}, {ssa}, {st0}"); U(f"s_lshl_b32 {ssa}, {ssa}, 9")
    U(f"v_and_b32 {t0}, 60, {vlane}"); U(f"v_lshlrev_b32 {t0}, 25, {t0}"); U(f"v_lshl_or_b32 {vsa}, {vlane}, 7, {t0}")
    sigA = lambda: csignal(snS, [signal(sFL, ssa, vsa)], [f"s_mov_b32 {snS}, 1"])
    U(f"s_bfe_u32 {st2}, s2, 0x20001"); U(f"s_lshl_b32 {st2}, {st2}, 2"); U(f"s_and_b32 {st1}, {si}, 3"); U(f"s_add_u32 {st2}, {st2}, {st1}")
    U(f"s_and_b32 {st1}, s2, 0xe0"); U(f"s_add_u32 {st2}, {st2}, {st1}"); U(f"s_and_b32 {st1}, s2, 1"); U(f"s_lshl_b32 {st1}, {st1}, 4"); U(f"s_add_u32 {st2}, {st2}, {st1}")
    U(f"s_lshl_b32 {st2}, {st2}, 7"); U(f"s_lshr_b32 {st1}, {swave}, 1"); U(f"s_lshl_b32 {st1}, {st1}, 30"); U(f"s_add_u32 {st2}, {st2}, {st1}")
    SM0 = [mT[0][0], mT[0][1], mT[1][0], mT[1][1]]; VA = [SB[0][j] for j in range(4)]
    for j in range(4):
        if j < 3: U(f"s_add_u32 {SM0[j]}, {SM0[j-1]}, 32768"); U(f"s_and_b32 {SM0[j]}, {SM0[j]}, 0x1ffff")
    tset = glue(U.L)
    k(f"s_cmp_eq_u32 {snS}, 1"); k(f"s_cbranch_scc1 {Lb('P1')}")
    prologue(False)
    k.ext(stamp("pro"))
    LAY = opt.get("lay", 1)
    def path_p1():
        target("P1", False)
        prologue(True)
        pair(D, [1], D, D, [1], [1], endwait=None, extra=pax(), first=True, fin=0)
        k(f"s_branch {Lb('TE')}")
    def path_dm0(fall):
        k.label(Lb("DM0"))
        pair(D, D, D, D, D, D, mask=0, first=True)
        if not fall: k(f"s_branch {Lb('T')}")
    def path_dmp():
        target("DMP", False)
        pair(D, D, D, D, D, D, mask=0, prep=2)
        k(signal(sFL, sfl1) + " offset:128")
        k(f"s_branch {Lb('T')}")
    def path_d(fall):
        target("D1", fall)
        pair(D, D, D, D, D, D, prep=1, first=True, endwait=16)
        k(f"s_cmp_eq_u32 {snS}, 3"); k(f"s_cbranch_scc1 {Lb('DMP')}")
        if opt.get("cyc"): k.ext(stamp("d1"))
        k(f"s_sub_u32 {snS}, {snS}, 4"); k(f"s_lshr_b32 {scnt}, {snS}, {1 if opt.get('stag', 1) else 8}"); k(f"s_sub_u32 {snS}, {snS}, {scnt}")
        k(f"s_sub_u32 {scnt}, {scnt}, 1"); k(f"s_cbranch_scc1 {Lb('P2')}")
        k(".p2align 6"); k.label(Lb("D"))
        pair(D, D, D, D, D, D, loop=Lb("D"), head=[f"s_or_b32 {st0}, {scnt}, {s7}\n" + pa(st0)])
        k(f"s_cmp_eq_u32 {snS}, -1"); k(f"s_cbranch_scc1 {Lb('DM')}")
        k.label(Lb("P2"))
        pair(D, D, D, D, D, D, prep=2)
        k(signal(sFL, sfl1) + " offset:128")
        k(f"s_xor_b32 {s7}, {si}, 7"); k(f"s_sub_u32 {scnt}, {snS}, 1"); k(f"s_mov_b32 {snS}, -1"); k(f"s_cbranch_scc0 {Lb('D')}")
        target("DM", True)
        if opt.get("cyc"): k.ext(stamp("dm"))
        k(f"s_cmp_eq_u32 {si}, 7"); k(f"s_cbranch_scc1 {Lb('DM7')}")
        pair(D, D, D, D, D, D, mask=0)
        if not fall: k(f"s_branch {Lb('T')}")
    def path_dm7():
        target("DM7", False)
        k.ext(chk7)
        pair(D, D, D, D, D, D, mask=0, wmix=wls(0, 6), endwait=32)
        k(f"s_branch {Lb('T')}")
    chk7 = poll_check("pa7", vm1, sFL, 0, 28, 128)[1:]
    main = k.L; k.L = []
    path_p1(); path_dmp(); path_dm7()
    if LAY: path_d(False)
    else: path_dm0(False)
    tail.L += k.L; k.L = main
    if LAY:
        k(f"s_cmp_lg_u32 {snS}, 2"); k(f"s_cbranch_scc1 {Lb('D1')}"); path_dm0(True)
    else:
        k(f"s_cmp_eq_u32 {snS}, 2"); k(f"s_cbranch_scc1 {Lb('DM0')}"); path_d(True)
    target("T", True)
    if opt.get("cyc"): k.ext(stamp("t"))
    pair(D, [1], D, D, [1], [1], endwait=None, extra=pax(), fin=0)
    target("TE", True)
    nml = lambda qb, r: NM[(2 + qb) * 4 + r]
    epilogue(k, 0, fill=tset + [f"s_mov_b32 {snS}, {sflag}"] + [f"v_xor_b32 {VA[j]}, {SM0[j]}, {vrc}" for j in range(4)]
             + maskops("a", mA, mC, nml, full=False)[0] + maskops("b", mB, mC, nml, MK=SB[1].sub(0, 16))[0])
    k("s_waitcnt vmcnt(16) lgkmcnt(8)")
    k.ext(stamp("sdone"))
    k(f"s_cmp_eq_u32 {si}, 7"); k(f"s_cbranch_scc1 {Lb('SM')}")
    k(f"s_sub_u32 {scnt}, 5, {si}"); k(f"s_cbranch_scc1 {Lb('SL')}")
    k(".p2align 6"); k.label(Lb("S"))
    for j in range(4):
        pair([1], [1], [1], [1], [1], [1], static=(VA[j], SM0[j]), loop=Lb("S") if j == 3 else None, wpre=[pa(scnt)] if j == 2 else [sigA()] if j == 1 else [])
    k.label(Lb("SL"))
    k.ext(poll_check("pa", vm1, sFL, 0, 28, 128)[1:])
    we = wls(0, 6)
    for j in range(4):
        L = []
        while sum(ismem(x) for x in L) < 6 or (we and not ismem(we[0])): L.append(we.pop(0))
        pair([1], [1], [1], [1], [1], [1], static=(VA[j], SM0[j]), wpre=[sigA()] if j == 1 else [], wmix=L, endwait=14)
    k(f"s_mov_b32 m0, {SM0[0]}")
    k.label(Lb("SM"))
    if opt.get("cyc"): k.ext(stamp("sm"))
    k("VMRESET")
    NW1 = opt.get("nw1", 10); NW2 = 10
    pair([1], [1], [1], [1], [1], [1], dma=False, mask=1, endwait=4 * (NW1 - 6), wpre=wls(6, NW1), lastk=True)
    k(sigA())
    k(poll_issue("p2a0", vsig, sFL, st2))
    pair([1], None, [1], [1], None, None, dma=False, endwait=None, wpre=wls(NW1, NW2), fin=1)
    k.ext(stamp("ldone"))
    k("WAITVM p2a0")
    epilogue(k, 1)
    k(f"s_cmp_ge_u32 {swave}, 2"); k(f"s_cbranch_scc1 {Lb('nb')}"); k("s_barrier"); k.label(Lb("nb"))
    k(f"s_cmp_lg_u32 {sflag}, 0"); k(f"s_cbranch_scc1 {Lb('fallback')}")
    k.label(Lb("fbret"))
    f_ = tail
    f_.label(Lb("fallback"))
    f_("s_waitcnt vmcnt(0)")
    f_(f"v_and_b32 {t0}, 15, {vlane}"); f_(f"v_lshrrev_b32 {t1}, 4, {vlane}"); f_(f"v_lshlrev_b32 {t1}, 2, {t1}"); f_(f"v_sub_u32 {t0}, {t0}, {t1}")
    for r in range(4): f_(f"v_cmp_le_i32 {mA[r]}, {r}, {t0}")
    for g in range(2):
        F2 = ACC.sub(64 * (1 - g), 64)
        f_(f"s_and_b32 {st0}, {sflag}, {1 << g}"); f_(f"s_cbranch_scc0 {Lb(f'fbdone{g}')}")
        M = NM.sub(0, 2); AL = NM.sub(2, 2); LL = [NM.sub(4, 4), NM.sub(8, 4)]; MN = NM.sub(12, 2); MT = NM.sub(14, 2)
        for j in range(64): f_(f"v_mov_b32 {ACC[g*64+j]}, 0")
        for qb in range(2):
            f_(f"v_mov_b32 {M[qb]}, {vinf}")
            for r in range(4): f_(f"v_mov_b32 {LL[qb][r]}, 0")
        f_(f"v_mov_b32 {t2}, 0"); f_(f"s_mov_b32 {scnt}, 0")
        f_.label(Lb(f"fb{g}"))
        f_(f"s_lshl_b32 {st0}, {scnt}, 13"); f_(f"s_add_u32 {st1}, {st0}, {512*1024}")
        for f in range(16):
            f_(f"buffer_load_dwordx4 {F2.sub(4*f,4)}, {vl16 if f % 8 < 4 else vl16b}, {sKV}, {st0 if f < 8 else st1} offen offset:{(f%4)*1024} {SC}")
        f_(f"s_cmp_eq_u32 {scnt}, {srg[g]}"); f_(f"s_cselect_b64 {mX}, 0, -1")
        for r in range(4): f_(f"s_or_b64 {mT[r]}, {mA[r]}, {mX}")
        L, tiles = maskops("a", mT, mX, lambda qb, r: t2)
        f_.ext(L)
        f_("s_waitcnt vmcnt(0)")
        for kb in range(2):
            for qb in range(2):
                d = Sq(0, 0, qb).sub(4 * kb, 4)
                for ks in range(4):
                    f_(f"{MF} {d}, {F2.sub(4*(4*kb+ks),4)}, {Qf(g,qb,ks)}, {tiles[(qb,kb)] if ks == 0 else d}")
        f_("s_nop 7")
        for qb in range(2):
            s = Sq(0, 0, qb)
            f_(f"v_max3_f32 {MN[qb]}, {s[0]}, {s[1]}, {s[2]}"); f_(f"v_max3_f32 {MN[qb]}, {MN[qb]}, {s[3]}, {s[4]}")
            f_(f"v_max3_f32 {MN[qb]}, {MN[qb]}, {s[5]}, {s[6]}"); f_(f"v_max3_f32 {MN[qb]}, {MN[qb]}, {s[7]}, {M[qb]}")
        allreduce(f_, [MN[0], MN[1]], [MT[0], MT[1]], op="v_max_f32", cross_only=True)
        for qb in range(2):
            s = Sq(0, 0, qb)
            f_(f"v_sub_f32 {AL[qb]}, {M[qb]}, {MN[qb]}"); f_(f"v_exp_f32 {AL[qb]}, {AL[qb]}"); f_(f"v_mov_b32 {M[qb]}, {MN[qb]}")
            for e in range(8): f_(f"v_sub_f32 {s[e]}, {s[e]}, {MN[qb]}")
            for e in range(8): f_(f"v_exp_f32 {s[e]}, {s[e]}")
            for db in range(8):
                for r in range(4): f_(f"v_mul_f32 {O(g,db,qb)[r]}, {O(g,db,qb)[r]}, {AL[qb]}")
            for r in range(4): f_(f"v_mul_f32 {LL[qb][r]}, {LL[qb][r]}, {AL[qb]}")
            for c in range(4): f_(f"v_cvt_pk_bf16_f32 {s[c]}, {s[2*c]}, {s[2*c+1]}")
        f_("s_nop 1")
        for qb in range(2):
            for db in range(8):
                f_(f"{MF} {O(g,db,qb)}, {F2.sub(4*(8+db),4)}, {Sq(0,0,qb).sub(0,4)}, {O(g,db,qb)}")
            f_(f"{MF} {LL[qb]}, {ONES}, {Sq(0,0,qb).sub(0,4)}, {LL[qb]}")
        f_("s_nop 7")
        f_(f"s_add_u32 {scnt}, {scnt}, 1"); f_(f"s_cmp_le_u32 {scnt}, {srg[g]}"); f_(f"s_cbranch_scc1 {Lb(f'fb{g}')}")
        epilogue(f_, g, [LL[0][0], LL[1][0]])
        f_.label(Lb(f"fbdone{g}"))
    f_("s_waitcnt vmcnt(0)")
    f_(f"s_xor_b32 {sow}, {sow}, {(10 ^ 6) * 4096}"); f_.ext(wls(6, 10))
    f_(f"s_andn2_b32 {snS}, 1, {sflag}")
    f_(sigA().replace("NOCOUNT ", "")); f_("s_waitcnt vmcnt(0)"); f_(f"s_branch {Lb('fbret')}")

    S.reset(mark0)
    sng = S(); smd = S(); sme = S(); skq = S(); scg = S(); soa = S(); sflD = S(); sflE = S(); sclD = S(); sclE = S(); ssg = S()
    sexp = S(); sw0 = S(); so1 = S(); shf = S(); sxo2 = S(); sstt = S(); spl = S(); shl = S(); ssl = S(); shm = S(); sfb = S(); sfr = S()
    psk = S(3, 1)
    pX = S(2); pO = S(4); pB1 = S(2)
    sAct = S(4); sXO = S(4); sHF = S(4); sST = S(4); sW1 = S(4); sB = S(4); sHM = S(4); sPT = S(4)
    mD = [pX, pB1, sKV[0:2], sKV[2:4]]
    vb = X16.sub(0, 2); vw2 = X16.sub(2, 2); vw = X16.sub(4, 3); vrd = X16[7]; vrow = X16[8]; vg16 = X16[9]; RM = X16.sub(10, 2); ON = X16.sub(12, 4)
    DF = a(96, 48); PL = a(144, 12); XRr = [a(156, 4), v(204, 4)]; PS = v(160, 12); DA = v(172, 12); EA = v(184, 8); B1 = v(192, 12)
    STT = v(208, 8); HP = v(216, 4); SEL = v(220, 6); KC = v(228, 4); C1 = v(232, 24)
    BF = v(104, 24); EACC = v(136, 24); SL = v(160, 8); G0 = v(172, 8); PK = [v(192, 4), v(196, 4)]
    vbc = vsig
    vb4 = vm0; vb4s = vm2; vl4 = vtrb; vso = vtr; vp2 = t2
    F2A, F3, F4, FP, F2B = 0, (4, 32), (8, 36), (20, 40), 28
    def wpoll(tag, sf, imm, d=vpoll): return f"buffer_load_dword {d}, {vm1}, {sFL}, {sf} offen offset:{imm} {SC} ; tag={tag}"
    def wcheck(tag, n, sf, imm, d=vpoll, va=None):
        return ([f"s_and_b32 {sexp}, {sw0}, {n}"] if va is None else [f"s_mov_b32 {sexp}, {n}"]) + [f"s_mov_b32 {sspin}, {SPIN}"] + ([f"WAITVM {tag}"] if va is None else []) + [
                Lb("spl" + tag) + ":", f"v_readfirstlane_b32 {ssoff}, {d}", "s_nop 0",
                f"s_cmp_ge_u32 {ssoff}, {sexp}", f"s_cbranch_scc1 {Lb('back'+tag)}",
                f"NOCOUNT buffer_load_dword {d}, {va or vm1}, {sFL}, {sf} offen offset:{imm} {SC}",
                f"s_sub_u32 {sspin}, {sspin}, 1", "NOCOUNT s_waitcnt vmcnt(0)", f"s_cbranch_scc0 {Lb('spl'+tag)}",
                Lb("back" + tag) + ":"]
    k(f"s_load_dwordx2 {pX}, s[0:1], 0"); k(f"s_load_dwordx4 {pO}, s[0:1], 80"); k(f"s_load_dwordx2 {pB1}, s[0:1], 64")
    k(f"s_bfe_u32 {skq}, s2, 0x20001"); k(f"s_lshr_b32 {smd}, s2, 5"); k(f"s_lshl_b32 {smd}, {smd}, 1"); k(f"s_and_b32 {st0}, s2, 1"); k(f"s_add_u32 {smd}, {smd}, {st0}")
    k(f"s_lshl_b32 {sclD}, {smd}, 11"); k(f"s_and_b32 {scg}, {si}, 3"); k(f"s_lshl_b32 {ssg}, {scg}, 7"); k(f"s_add_u32 {ssg}, {ssg}, {sclD}")
    k(f"s_lshl_b32 {sflD}, {skq}, 9"); k(f"s_add_u32 {sflD}, {sflD}, {ssg}")
    srd(k, sAct, pWS, 16 * MB, WS_CTX)
    k(f"s_lshl_b32 {soa}, {smd}, 19"); k(f"s_lshl_b32 {st0}, {skq}, 17"); k(f"s_add_u32 {soa}, {soa}, {st0}"); k(f"s_add_u32 {soa}, {soa}, {sldsw}")
    k(f"s_and_b32 {st0}, {si}, {DR}"); k(f"s_lshl_b32 {st0}, {st0}, 15"); k(f"s_add_u32 {soa}, {soa}, {st0}")
    k(f"s_cmp_ge_u32 {swave}, 2"); k(f"s_cbranch_scc1 {Lb('na0')}")
    k.ext(wcheck("p2a", 16, sflD, F2A, va=vsig))
    k(f"s_add_u32 {st1}, {soa}, {sldsw}"); k(f"s_lshl_b32 {st2}, {sldsw}, 1")
    for p in range(16):
        if p % 4 == 0: k(f"s_add_u32 m0, {st2}, {131072 + (p//4)*4096}")
        if p == 8: k(f"s_add_u32 {st1}, {st1}, 8192")
        elif p % 4 == 0: k("s_nop 0")
        k(f"NOCOUNT buffer_load_dwordx4 {vl16 if p % 8 < 4 else vl16b}, {sAct}, {st1} offen offset:{(p%4)*1024} {SC} lds")
    k.label(Lb("na0"))
    k(f"s_xor_b32 {soa}, {soa}, 32768")
    for r in range(4):
        k(f"s_xor_b32 {st0}, {skq}, {r}"); k(f"s_lshl_b32 {st0}, {st0}, 10"); k(f"v_add_u32 {DA[3*r]}, {st0}, {vl16}")
        k(f"v_add_u32 {DA[3*r+1]}, 65536, {DA[3*r]}"); k(f"v_add_u32 {DA[3*r+2]}, 131072, {DA[3*r]}")
    k(f"s_cmp_ge_u32 {swave}, 2"); k(f"s_cbranch_scc1 {Lb('na1')}"); k("NOCOUNT s_waitcnt vmcnt(0)"); k.label(Lb("na1"))
    k("s_waitcnt lgkmcnt(0)"); k("s_barrier")
    k.ext(stamp("dgo"))
    DSL = [4, 0, 1, 2, 3, 4, 0, 1]
    def sdma(slot, sd, so, tag, inc=32768):
        L = []
        for p in range(8):
            if p % 4 == 0: L.append(f"s_add_u32 m0, {sldsw}, {slot*32768 + (p//4)*4096}")
            L.append(f"buffer_load_dwordx4 {vl16 if p < 4 else vl16b}, {sd}, {so} offen offset:{(p%4)*1024} {SC} lds ; tag={tag}")
        return L + [f"s_add_u32 {so}, {so}, {inc}" if so is so1 else f"s_xor_b32 {so}, {so}, {inc}"]
    cd = lambda st: sdma(DSL[st], sAct, soa, f"a{st}", ((st ^ (st + 1)) & 3) * 32768 + (8 * MB if st == 3 else 0))
    w1d = lambda n: sdma(2 + n, sW1, so1, f"w1{n}")
    TY = lambda ch, rb, cb: v(96 + 32 * ch + (rb * 2 + cb) * 4, 4)
    dun = [(st, rb, kh) for st in range(8) for rb in ((1, 2, 3, 0) if st % 4 == 3 else range(4)) for kh in range(2)]
    DFu = lambda u, ks: DF.sub(16 * (u % 3) + 4 * ks, 4)
    def dreads(u):
        st, rb, kh = dun[u]; o = DSL[st] * 32768
        return [f"ds_read_b128 {DFu(u,ks)}, {DA[3*rb + o // 65536]} offset:{o % 65536 + kh*16384 + ks*4096}" for ks in range(4)]
    def take_mem(src):
        L = []
        while src and not ismem(src[0]): L.append(src.pop(0))
        if src: L.append(src.pop(0))
        return L
    k.ext(dreads(0)); k.ext(dreads(1))
    U = Kern("x")
    U(f"s_cmp_eq_u32 {swave}, 0"); U(f"s_cselect_b32 {sw0}, -1, 0"); U(f"s_cselect_b32 {st0}, 0, 0x80000000")
    U(f"v_or_b32 {vm1}, {st0}, {vsig}")
    U(f"v_and_b32 {t0}, 15, {vlane}"); U(f"v_lshl_or_b32 {t0}, {t0}, 7, {st0}")
    U(f"v_and_b32 {t1}, 48, {vlane}"); U(f"v_lshl_or_b32 {vbc}, {t1}, 25, {t0}")
    U(f"v_and_b32 {t1}, 60, {vlane}"); U(f"v_lshl_or_b32 {vb4}, {t1}, 25, {t0}")
    U(f"v_and_b32 {t0}, 3, {vlane}"); U(f"v_lshl_or_b32 {t0}, {t0}, 9, {st0}"); U(f"v_lshl_or_b32 {vb4s}, {t1}, 25, {t0}")
    U(f"s_lshr_b32 {st0}, {sh}, 3"); U(f"s_lshl_b32 {st0}, {st0}, 9"); U(f"s_lshl_b32 {sdb}, {si}, 12"); U(f"s_sub_u32 {sdb}, {14*2048}, {sdb}"); U(f"s_add_u32 {sdb}, {sdb}, {st0}")
    nU0 = len(glue(U.L))
    if opt.get("emap", 0) == 0:
        U(f"s_bfe_u32 {sng}, s2, 0x40003")
        U(f"s_lshr_b32 {st0}, s2, 7"); U(f"s_lshl_b32 {st0}, {st0}, 3"); U(f"s_and_b32 {sme}, s2, 7"); U(f"s_add_u32 {sme}, {sme}, {st0}")
    else:
        U(f"s_bfe_u32 {sng}, s2, 0x10005"); U(f"s_lshl_b32 {sng}, {sng}, 1"); U(f"s_and_b32 {st0}, s2, 1"); U(f"s_add_u32 {sng}, {sng}, {st0}")
        U(f"s_lshl_b32 {sng}, {sng}, 2"); U(f"s_and_b32 {st0}, {si}, 3"); U(f"s_add_u32 {sng}, {sng}, {st0}")
        U(f"s_lshl_b32 {sme}, {skq}, 2"); U(f"s_lshr_b32 {st0}, s2, 6"); U(f"s_add_u32 {sme}, {sme}, {st0}")
    U(f"s_lshl_b32 {sclE}, {sme}, 11"); U(f"s_lshl_b32 {sflE}, {sng}, 7"); U(f"s_add_u32 {sflE}, {sflE}, {sclE}")
    U(f"s_lshl_b32 {st0}, {smd}, 2"); U(f"s_add_u32 {st0}, {st0}, {scg}"); U(f"s_mul_i32 {st0}, {st0}, {2*49152}"); U(f"s_add_u32 {st0}, {st0}, {WS_PART}")
    srd(U, sPT, pWS, 2 * 49152, st0)
    U(f"s_lshl_b32 {st2}, {swave}, 10")
    for r in range(1, 4):
        U(f"s_xor_b32 {st0}, {skq}, {r}"); U(f"s_mul_i32 {st0}, {st0}, 12288"); U(f"s_add_u32 {st0}, {st0}, {st2}"); U(f"s_add_u32 {psk[r-1]}, {st0}, {(r-1)*4096}")
    U(f"s_mul_i32 {spl}, {skq}, 12288"); U(f"s_add_u32 {spl}, {spl}, {st2}")
    U(f"s_lshl_b32 {scg}, {scg}, 2"); U(f"s_add_u32 {scg}, {scg}, {swave}")
    U(f"s_lshl_b32 {st2}, {smd}, 2"); U(f"s_add_u32 {st2}, {st2}, {skq}")
    U(f"s_lshl_b32 {shf}, {st2}, 14"); U(f"s_lshl_b32 {st0}, {scg}, 6"); U(f"s_add_u32 {sxo2}, {shf}, {st0}")
    U(f"s_lshl_b32 {st0}, {scg}, 10"); U(f"s_add_u32 {shf}, {shf}, {st0}")
    U(f"s_lshl_b32 {sstt}, {st2}, 11"); U(f"s_lshl_b32 {st0}, {scg}, 7"); U(f"s_add_u32 {sstt}, {sstt}, {st0}")
    U(f"v_and_b32 {t0}, 15, {vlane}"); U(f"v_lshrrev_b32 {t1}, 4, {vlane}"); U(f"v_lshlrev_b32 {vg16}, 4, {t1}")
    U(f"v_lshl_add_u32 {vrow}, {t0}, 10, {vg16}")
    srd(U, sXO, pX, 2 * MB); srd(U, sB, pB1, 2752)
    srd(U, sHF, pWS, 2 * MB, WS_HF); srd(U, sST, pWS, 256 * 1024, WS_STAT); srd(U, sW1, pWS, 88 * 16384, WS_W1P)
    U(f"s_mul_i32 {so1}, {sng}, {6*16384}"); U(f"s_add_u32 {so1}, {so1}, {sldsw}")
    U(f"v_bfe_u32 {t0}, {vlane}, 2, 2"); U(f"v_lshrrev_b32 {t1}, 4, {vlane}"); U(f"v_sub_u32 {t1}, {t1}, {t0}"); U(f"v_and_b32 {t1}, 3, {t1}")
    U(f"v_and_b32 {t0}, 1, {vlane}"); U(f"v_lshlrev_b32 {t0}, 4, {t0}"); U(f"v_mov_b32 {SEL[0]}, 0x3f80"); U(f"v_lshlrev_b32 {t0}, {t0}, {SEL[0]}")
    U(f"v_bfe_u32 {SEL[1]}, {vlane}, 1, 1"); U(f"v_lshl_or_b32 {SEL[1]}, {t1}, 1, {SEL[1]}")
    U(f"v_cmp_eq_u32 vcc, 0, {SEL[1]}"); U(f"v_cndmask_b32 {SEL[2]}, 0, {t0}, vcc")
    U(f"v_cmp_eq_u32 vcc, 1, {SEL[1]}"); U(f"v_cndmask_b32 {SEL[3]}, 0, {t0}, vcc")
    for j in (0, 1, 4, 5): U(f"v_mov_b32 {SEL[j]}, 0")
    U(f"v_and_b32 {t0}, 15, {vlane}"); U(f"v_lshlrev_b32 {t0}, 2, {t0}"); U(f"v_xor_b32 {vso}, 1, {t1}"); U(f"v_and_b32 {vso}, 1, {vso}")
    U(f"v_lshl_or_b32 {t0}, {vso}, 6, {t0}"); U(f"v_lshrrev_b32 {t1}, 1, {t1}"); U(f"v_lshl_or_b32 {vso}, {t1}, 31, {t0}")
    for j, c in enumerate((0x22222222, 0x44444444, 0x88888888)): U(f"s_mov_b32 {mD[j][0]}, {c}"); U(f"s_mov_b32 {mD[j][1]}, {c}")
    U(f"s_mov_b32 {mD[3][0]}, 0x00f0000f"); U(f"s_mov_b32 {mD[3][1]}, 0xf0000f00")
    for j in range(4): U(f"v_mov_b32 {ON[j]}, 0x3f803f80")
    U(f"v_lshlrev_b32 {vl4}, 2, {vlane}")
    K1 = 2 * math.sqrt(2 / math.pi) * math.log2(math.e)
    U(f"v_mov_b32 {KC[0]}, {f2h(-K1 * 0.044715)}"); U(f"v_mov_b32 {KC[1]}, {f2h(-K1)}"); U(f"v_mov_b32 {KC[2]}, 1.0")
    U(f"s_mul_i32 {st0}, {sme}, {43*4096}"); U(f"s_add_u32 {st0}, {st0}, {WS_HM}")
    srd(U, sHM, pWS, 43 * 4096, st0)
    U(f"s_mul_i32 {shm}, {sng}, {3*4096}"); U(f"s_lshl_b32 {st0}, {swave}, 10"); U(f"s_add_u32 {shm}, {shm}, {st0}")
    U(f"s_lshl_b32 {ssl}, {sme}, 2"); U(f"s_add_u32 {ssl}, {ssl}, {swave}"); U(f"s_lshl_b32 {shl}, {ssl}, 14"); U(f"s_lshl_b32 {ssl}, {ssl}, 11")
    U(f"s_and_b32 {st2}, {sng}, {opt.get('erot', 3)}"); U(f"s_lshl_b32 {st2}, {st2}, 12"); U(f"s_add_u32 {shl}, {shl}, {st2}")
    for kq in range(4):
        U(f"s_xor_b32 {st0}, {st2}, {65536 + kq*4096}"); U(f"v_add_u32 {EA[2*kq]}, {st0}, {vl16}"); U(f"v_add_u32 {EA[2*kq+1]}, 65536, {EA[2*kq]}")
    U(f"s_lshr_b32 {st0}, {sng}, 3"); U(f"s_lshl_b32 {st0}, {st0}, 1"); U(f"s_and_b32 {st2}, {swave}, 1"); U(f"s_add_u32 {st0}, {st0}, {st2}")
    U(f"s_lshl_b32 {st0}, {st0}, 10"); U(f"v_add_u32 {vb[0]}, {st0}, {vl16}"); U(f"v_xor_b32 {vb[1]}, 1024, {vb[0]}")
    U(f"s_lshr_b32 {st0}, {swave}, 1"); U(f"s_lshl_b32 {st0}, {st0}, 11"); U(f"v_add_u32 {vw2[0]}, {st0}, {vl16}"); U(f"v_xor_b32 {vw2[1]}, 2048, {vw2[0]}")
    for r in range(4):
        U(f"s_xor_b32 {st0}, {swave}, {r}"); U(f"s_mul_i32 {st0}, {st0}, 6144")
        if r > 1: U(f"s_add_u32 {st0}, {st0}, {(r-1)*2048}")
        U(f"v_add_u32 {vw[r-1] if r else vrd}, {st0}, {vl16}")
    U(f"s_mul_i32 {sfb}, {swave}, {11*4096}")
    U(f"s_lshr_b32 {sfr}, s2, 6"); U(f"s_lshl_b32 {sfr}, {sfr}, 1"); U(f"s_xor_b32 {sfr}, {sfr}, {si}"); U(f"s_and_b32 {sfr}, {sfr}, {opt.get('frot', 0)}"); U(f"s_lshl_b32 {sfr}, {sfr}, 12")
    vq = glue(U.L); nU = len(vq)
    xq = [f"buffer_load_dwordx4 {XRr[0]}, {vrow}, {sXO}, {sxo2} offen ; tag=e", f"s_add_u32 {st1}, {sxo2}, {MB}",
          f"buffer_load_dwordx4 {XRr[1]}, {vrow}, {sXO}, {st1} offen ; tag=e"]
    bq = [f"v_lshrrev_b32 {vinf}, 1, {vg16}", f"s_mul_i32 {sdb}, {sng}, 192"]
    bq += [f"buffer_load_dwordx2 {B1.sub(2*fb,2)}, {vinf}, {sB}, {sdb} offen offset:{fb*32} ; tag=e" for fb in range(6)]
    SELm = [SEL.sub(2, 4), SEL.sub(0, 4)]
    def addfrag(t0_, t1_, fr): return [f"{MF} {t}, {SELm[cb]}, {fr}, {t}" for cb, t in enumerate((t0_, t1_))]
    def pll(ch, so=st1):
        L = []
        for j in range(3):
            L += [f"s_add_u32 {so}, {spl}, {ch*49152 + j*4096}", f"buffer_load_dwordx4 {PL.sub(4*j,4)}, {vl16}, {sPT}, {so} offen {SC} ; tag=pl{ch}"]
        return L
    def red1(ch):
        L = [f"WAITVM pl{ch},e"]
        for fr in [XRr[ch]] + [PL.sub(4 * j, 4) for j in range(3)]: L += addfrag(TY(ch, 0, 0), TY(ch, 0, 1), fr)
        return L
    def red2(ch):
        return pack(HP, TY(ch, 0, 0), TY(ch, 0, 1)) + [f"buffer_store_dwordx4 {HP}, {vl16}, {sHF}, {shf} offen {SC} ; tag=hst{ch}", f"s_add_u32 {shf}, {shf}, {MB}",
                f"{MF} {STT.sub(0,4)}, {HP}, {HP}, 0", f"{MF} {STT.sub(4,4)}, {ON}, {HP}, 0"]
    def red3(ch):
        return [f"v_cndmask_b32 {STT[0]}, {STT[0]}, {STT[1+j]}, {mD[j]}" for j in range(3)] + [f"v_cndmask_b32 {STT[0]}, {STT[4]}, {STT[0]}, {mD[3]}",
                f"buffer_store_dword {STT[0]}, {vso}, {sST}, {sstt} offen {SC} ; tag=hst{ch}", f"s_add_u32 {sstt}, {sstt}, {64*2048}"]
    W2 = lambda s, cb: Wd(2 * s + cb // 2, cb % 2)
    def foff(d, s): return [f"s_xor_b32 {d}, {sfr}, {s*4096}", f"s_add_u32 {d}, {d}, {sfb}"] if s < 8 else [f"s_add_u32 {d}, {sfb}, {s*4096}"]
    def w2l(s): return foff(sow, s) + [f"buffer_load_dwordx4 {W2(s,c)}, {vw2[c//2]}, {sW}, {sow} offen offset:{(c%2)*1024} {SC} ; tag=w2" for c in range(4)]
    U = Kern("x"); U(f"s_and_b32 {st2}, {sng}, 7"); U(f"s_mul_i32 {st2}, {st2}, {43*4096}"); U(f"s_add_u32 {st2}, {st2}, {WS_W2P}"); srd(U, sW, pWS, 43 * 4096, st2)
    w2srd = glue(U.L)
    lw = lambda a_, b_: sum((wl(s) for s in range(max(a_, NW2), b_)), [])
    W2D = opt.get("w2d", (0, 0, 0))
    w2o = list(range(11))
    w2n = lambda n: sum((w2l(w2o.pop(0)) for _ in range(n)), [])
    wsig = lambda so, vo, *offs: csignal(swave, [signal(sFL, so, vo) + f" offset:{o}" for o in offs])
    sigs = {6: wsig(sdb, vb4, F2B, 2048 + F2B), 38: wsig(ssg, vb4s, FP[0]), 60: wsig(sclD, vbc, F3[0])}
    UB = opt.get("ub", 22); UC = opt.get("uc", 46); RA = opt.get("ra", UC + 6); U3 = opt.get("u3", 60)
    LATE = opt.get("late", 0); sig3a = sigs[60]
    sigs = {6: sigs[6], 38: sigs[38]}
    if not LATE: sigs[U3] = sig3a
    adds = {0: cd(1) + cd(2) + lw(0, 12) + cd(3) + lw(12, 16), UB - 3: [wpoll("p2b", sflD, F2B)], 22: cd(5) + xq + bq,
            32: cd(6) + cd(7), 40: w1d(0) + w2n(W2D[0]), UC - 3: [wpoll("ppa", sflD, FP[0])],
            48: w1d(1) + w2n(W2D[1]), 54: w1d(2) + w2n(W2D[2])}
    front = (UB - 3, UC - 3)
    mq = []; stq = []; nxt = [0]
    for u, (st, rb, kh) in enumerate(dun):
        ch = st // 4
        lg = 4 if u < 63 else 0
        tags = []
        if u % 8 < 2 and ch == 0 and 4 * st + 2 * kh + 1 >= 6: tags.append(f"dw{4*st + 2*kh + 1}")
        if u % 8 == 6 and st < 7: tags.append(f"a{st+1}")
        if u == 6: tags.append("cst")
        if u == 38: tags.append("ps0")
        if u == U3: tags += ["w11"] if LATE else ["hst0", "w11"]
        if u == UB: k.ext(wcheck("p2b", 8, sflD, F2B)); mq += cd(4)
        if u == UC: k.ext(wcheck("ppa", 4, sflD, FP[0]))
        if tags: k(f"WAITVM {','.join(tags)} lgkm={lg}")
        else: k(f"s_waitcnt lgkmcnt({lg})")
        if (u % 8 == 6 and st < 7) or u in (UB, UC, U3): k("s_barrier")
        if u in sigs: k(sigs[u])
        if u == 32: k.ext(stamp("da"))
        elif opt.get("fineD") and u % 8 == 0 and u: k.ext(stamp(f"u{u}"))
        if u in adds:
            if u in front:
                mq = adds[u] + mq
            else: mq += adds[u]
        if u == UC: mq = pll(0) + mq; nxt[0] = 0
        if u == RA: k.ext(red1(0))
        if u == RA + 1: k.ext(red2(0))
        if u == RA + 2: k.ext(red3(0))
        mf = [f"{MF} {TY(ch,rb,cb)}, {Wd(8*(st%4)+4*kh+ks,cb)}, {DFu(u,ks)}, {'0' if st % 4 == 0 and kh == 0 and ks == 0 else TY(ch,rb,cb)}" for cb in range(2) for ks in range(4)]
        G = Gaps(mf)
        if u < 62:
            for g, x in zip((0, 2, 4, 6), dreads(u + 2)): G.put(g, x)
        pace = opt.get("pa_", 3.0) if u < 30 else opt.get("pb_", 4.0)
        for g in (1, 3, 5):
            if 8 * u + g < nxt[0] and not (u in front and g == 1): continue
            if stq: G.put(g, stq.pop(0)); nxt[0] = max(nxt[0], 8 * u + g - 1) + 2 * pace
            elif mq:
                L = take_mem(mq)
                for x in L: G.put(g if ismem(x) else g - 1, x)
                nxt[0] = max(nxt[0], 8 * u + g - 1) + (pace if "dwordx4" in L[-1] else 2)
        sched(G, vq, 4 if st % 4 == 3 else 0, 7, stq)
        G.emit(k)
        if u == 5: assert len(vq) <= nU - nU0
        if u == 21:
            k.ext(vq); vq = []
        if st % 4 == 3 and rb and kh:
            p = PS.sub(4 * (rb - 1), 4)
            vq += pack(p, TY(ch, rb, 0), TY(ch, rb, 1)) + [("st", f"buffer_store_dwordx4 {p}, {vl16}, {sPT}, {psk[rb-1]} offen {SC} ; tag=ps{ch}")]
        if u == 38: vq += w2srd + [f"s_add_u32 {psk[r]}, {psk[r]}, 49152" for r in range(3)]
        if u == 47:
            vq.append("WAITVM e")
            for j in range(12): vq += [f"v_lshlrev_b32 {BF[2*j]}, 16, {B1[j]}", f"v_and_b32 {BF[2*j+1]}, 0xffff0000, {B1[j]}"]
    assert not vq, vq
    k.ext(stq); emit_dma(mq)
    k.ext(stamp("dmm"))

    H = a(32, 64)
    TE = lambda fb: EACC.sub(fb * 4, 4)
    seqk = [(fb, kq, ks) for kq in range(4) for fb in range(6) for ks in range(4)]
    seq = [(fb, kq, ks) for fb in range(6) for kq in range(4) for ks in range(4)] + seqk + seqk
    EWn = lambda n: DF.sub(4 * (n % 12), 4)
    def erd(n):
        fb, kq, ks = seq[n]
        return f"ds_read_b128 {EWn(n)}, {EA[2*kq + fb // 4]} offset:{(fb % 4)*16384 + ks*1024}"
    def hl(ch):
        L = []
        for kq in range(4):
            L.append(f"s_xor_b32 {st1}, {shl}, {ch*MB + kq*4096}")
            L += [f"buffer_load_dwordx4 {H.sub(16*kq+4*ks,4)}, {vl16}, {sHF}, {st1} offen offset:{ks*1024} {SC} ; tag=h{ch}{kq}" for ks in range(4)]
        L.append(f"s_add_u32 {st1}, {ssl}, {ch*64*2048}")
        return L + [f"buffer_load_dword {SL[j]}, {vl4}, {sST}, {st1} offen offset:{j*256} {SC} ; tag=st{ch}" for j in range(8)]
    def epass(ps, q0=None):
        ch = ps - 1; out = []; q = []
        for n in range(96 * ps, 96 * ps + 96):
            fb, kq, ks = seq[n]; L = []
            if ks == 0:
                lg = 8 if n + 12 <= 288 else max(0, 288 - n - 4)
                L.append(f"WAITVM h{ch}{kq} lgkm={lg}" if ps and fb == 0 else f"s_waitcnt lgkmcnt({lg})")
            d = TE(fb) if ps else C1.sub(4 * fb, 4)
            L.append(f"{MF} {d}, {EWn(n)}, {H.sub(16*kq+4*ks,4) if ps else ON}, {'0' if kq == 0 and ks == 0 else d}")
            if n + 12 < 288: L.append(erd(n + 12))
            if n % 96 == q0: q += stats(ch)
            if q and ks != 3: L.append(q.pop(0))
            out.append((L, 18))
        return out + [([x], icost(x)) for x in q]
    def play(items, hooks, mq, gap=76):
        t = 0; nxt = 0
        for n, (L, c) in enumerate(items):
            for x in hooks.pop(n, []):
                if isinstance(x, list): mq[:0] = x; nxt = t
                elif isinstance(x, tuple): mq.extend(x)
                else: k(x)
            k.ext(L); t += c
            if mq and t >= nxt:
                L2 = take_mem(mq); k.ext(L2); nxt = t + (gap if "dwordx4" in L2[-1] else 24); t += 8
        assert not hooks, hooks
    def stats(ch):
        L = Kern("x")
        L(f"WAITVM st{ch}")
        for d in (4, 2, 1):
            for j in range(d): L(f"v_add_f32 {SL[j]}, {SL[j]}, {SL[j+d]}")
        mu, qq, aa, bb = SL[0], SL[1], SL[2], SL[3]
        L(f"v_mov_b32 {qq}, {mu}"); L(f"v_permlane32_swap_b32 {mu}, {qq}"); L(f"v_add_f32 {mu}, {mu}, {qq}")
        L(f"v_mul_f32 {mu}, {f2h(1/512)}, {mu}"); L(f"v_mov_b32 {qq}, {mu}")
        L(f"v_permlane16_swap_b32 {mu}, {qq}")
        L(f"v_fma_f32 {qq}, -{mu}, {mu}, {qq}"); L(f"v_max_f32 {qq}, 0, {qq}")
        L(f"v_add_f32 {aa}, {f2h(1e-5)}, {qq}"); L(f"v_rsq_f32 {aa}, {aa}")
        L(f"v_mul_f32 {bb}, {aa}, {aa}"); L(f"v_mul_f32 {bb}, {bb}, {qq}"); L(f"v_add_f32 {bb}, {f2h(1e-5)}, {bb}")
        L(f"v_rsq_f32 {bb}, {bb}")
        L(f"v_mul_f32 {RM[0]}, {aa}, {bb}"); L(f"v_mul_f32 {RM[1]}, -{mu}, {RM[0]}")
        return L.L
    def gelu(ch, pp):
        ts = [TE(fb).sub(r, 2) for fb in (2 * pp, 2 * pp + 1) for r in (0, 2)]
        cs = [(C1.sub(4 * fb + r, 2), BF.sub(4 * fb + r, 2)) for fb in (2 * pp, 2 * pp + 1) for r in (0, 2)]
        g = [G0.sub(2 * j, 2) for j in range(4)]
        L = [f"v_pk_fma_f32 {g[j]}, {RM}, {cs[j][0]}, {cs[j][1]} op_sel:[1,0,0]" for j in range(4)]
        L += [f"v_pk_fma_f32 {ts[j]}, {RM}, {ts[j]}, {g[j]} op_sel_hi:[0,1,1]" for j in range(4)]
        L += [f"v_pk_mul_f32 {g[j]}, {ts[j]}, {ts[j]}" for j in range(4)]
        L += [f"v_pk_fma_f32 {g[j]}, {g[j]}, {KC.sub(0,2)}, {KC.sub(0,2)} op_sel:[0,0,1] op_sel_hi:[1,0,1]" for j in range(4)]
        L += [f"v_pk_mul_f32 {g[j]}, {g[j]}, {ts[j]}" for j in range(4)]
        L += [f"v_exp_f32 {G0[j]}, {G0[j]}" for j in range(8)]
        L += [f"v_pk_add_f32 {g[j]}, {g[j]}, {KC.sub(2,2)} op_sel_hi:[1,0]" for j in range(4)]
        L += [f"v_rcp_f32 {G0[j]}, {G0[j]}" for j in range(8)]
        L += [f"v_pk_mul_f32 {ts[j]}, {ts[j]}, {g[j]}" for j in range(4)]
        L += pack(PK[pp % 2], TE(2 * pp), TE(2 * pp + 1))
        L += [f"s_add_u32 {st2}, {shm}, {pp*4096}", f"buffer_store_dwordx4 {PK[pp%2]}, {vl16}, {sHM}, {st2} offen {SC} ; tag=mst{ch}"]
        return L
    def gelu_all(ch):
        out = []
        for x in sum((gelu(ch, pp) for pp in range(3)), []):
            if ismem(x): out[-1][0].append(x)
            else: out.append(([x], icost(x)))
        return out
    T_ = dict(p3a=10, b1=40, ppb=72, b2=95, rb=135, b3=190, p3b=300); T_.update(opt.get("T", {}))
    W2E = opt.get("w2e", (0, 2, 2, 3))
    for n in range(12): k(erd(n))
    mq = w2n(W2E[0])
    items = epass(0) + epass(1, q0=60) + gelu_all(0)
    hooks = {T_["p3a"]: [[wpoll("p3a", sflE, F3[0])]],
             T_["b1"]: wcheck("p3a", 16, sflE, F3[0]) + ["WAITVM ps1,w12", "s_barrier", wsig(ssg, vb4s, FP[1])] + stamp("g3a") + [hl(0)],
             T_["ppb"]: [[wpoll("ppb", sflD, FP[1], vp2)]],
             T_["b2"]: wcheck("ppb", 4, sflD, FP[1], vp2) + ["s_barrier"] + pll(1, st2) + stamp("gpb") + [tuple(w2n(W2E[1]))],
             T_["rb"]: red1(1), T_["rb"] + 6: red2(1), T_["rb"] + 12: red3(1) + [tuple(w2n(W2E[2]))],
             T_["b3"]: ["WAITVM hst1", "s_barrier", wsig(sclD, vbc, F3[1])] + stamp("ea") + [tuple(w2n(W2E[3]))],
             min(T_["p3b"], len(items) - 1): [[wpoll("p3b", sflE, F3[1])]]}
    assert T_["b1"] <= 51
    if LATE:
        hooks[T_["b1"]] = ["WAITVM ps1,w12,hst0", "s_barrier", sig3a, wsig(ssg, vb4s, FP[1])]
        hooks[T_["c3a"]] = wcheck("p3a", 16, sflE, F3[0]) + ["s_barrier"] + hl(0)[:10] + [hl(0)[10:]]
    play(items, hooks, mq)
    k.ext(mq)
    k(f"s_mov_b32 {sAct[0]}, {sHM[0]}"); k(f"s_mov_b32 {sAct[1]}, {sHM[1]}"); k(f"s_mov_b32 {sAct[2]}, {43*4096}")
    k(f"s_add_u32 {sHM[0]}, {sHM[0]}, {16*43*4096}"); k(f"s_addc_u32 {sHM[1]}, {sHM[1]}, 0")
    srd(k, sXO, pO[2:4], 2 * MB); srd(k, sB, pO[0:2], 1024)
    k(f"s_lshl_b32 {shf}, {sme}, 2"); k(f"s_lshr_b32 {st0}, {sng}, 3"); k(f"s_lshl_b32 {st0}, {st0}, 1"); k(f"s_add_u32 {shf}, {shf}, {st0}")
    k(f"s_and_b32 {st0}, {swave}, 1"); k(f"s_add_u32 {shf}, {shf}, {st0}"); k(f"s_lshl_b32 {shf}, {shf}, 14")
    k(f"s_and_b32 {st0}, {sng}, 7"); k(f"s_lshl_b32 {st0}, {st0}, 1"); k(f"s_lshr_b32 {st2}, {swave}, 1"); k(f"s_add_u32 {st0}, {st0}, {st2}")
    k(f"s_lshl_b32 {spl}, {st0}, 6"); k(f"s_add_u32 {sxo2}, {shf}, {spl}"); k(f"s_lshl_b32 {st0}, {st0}, 10"); k(f"s_add_u32 {shf}, {shf}, {st0}")
    pool = [a(b_ + 4 * j, 4) for b_ in (16, 144) for j in range(4)] + [v(b_ + 4 * j, 4) for b_, n_ in ((96, 2), (128, 2), (168, 1), (180, 1), (200, 5)) for j in range(n_)] + [a(32 + 4 * j, 4) for j in range(3)]
    Af = lambda s, rb: pool[2 * s + rb]
    HR = [a(44, 4), a(48, 4)]; BRr = a(52, 4)
    def fl(ch, s): return foff(soa, s) + [f"buffer_load_dwordx4 {Af(s,r)}, {vb[r]}, {sAct}, {soa} offen {SC} ; tag=fa{ch}_{s}" for r in range(2)]
    if opt.get("dec", 1):
        k.ext(wcheck("p3b", 16, sflE, F3[1])); k("s_barrier")
        k.ext(stamp("g3b"))
        mq = hl(1)
        for _ in range(opt.get("nh", 8)): k.ext(take_mem(mq))
        k("WAITVM mst0"); k("s_barrier"); k(wsig(sclE, vbc, F4[0]))
        for _ in range(4): k.ext(take_mem(mq))
    else:
        k.ext(wcheck("p3b", 16, sflE, F3[1])); k("WAITVM mst0"); k("s_barrier")
        k(wsig(sclE, vbc, F4[0]))
        k.ext(stamp("g3b"))
        mq = hl(1)
        for _ in range(opt.get("nh", 12)): k.ext(take_mem(mq))
    mq += w2n(len(w2o))
    late = fl(0, 9) + fl(0, 10) + [f"buffer_load_dwordx4 {HR[0]}, {vl16}, {sHF}, {shf} offen {SC} ; tag=fe", f"s_add_u32 {shf}, {shf}, {MB}",
           f"buffer_load_dwordx4 {HR[1]}, {vl16}, {sHF}, {shf} offen {SC} ; tag=fe", f"buffer_load_dwordx4 {BRr}, {vg16}, {sB}, {spl} offen ; tag=fe"]
    eb = epass(2, q0=60)
    P4 = opt.get("p4", 8)
    play(eb + gelu_all(1), {P4: [[wpoll("p4a", sflE, F4[0])]], P4 + 32: wcheck("p4a", 16, sflE, F4[0]) + ["s_barrier", tuple(sum((fl(0, s) for s in range(9)), []))],
                            len(eb): stamp("eb") + [tuple(late)]}, mq)
    k.ext(stamp("gb"))

    FACC = v(160, 8); RD = v(104, 24); OP = PK[0]
    TD = lambda cb, rb: a(88 + ((cb // 2) * 4 + rb * 2 + cb % 2) * 4, 4) if cb // 2 or rb else FACC.sub(4 * cb, 4)
    def fpass(ch, hooks, nf):
        for s in range(11):
            if s in hooks: k.ext(hooks[s])
            need = [f"tag=fa{ch}_{s}"] + (["tag=w2"] if s == 0 else []) + (["tag=fe"] if s == 10 else [])
            while any(x.endswith(t_) for x in mq for t_ in need): k.ext(take_mem(mq))
            k(f"WAITVM fa{ch}_{s}" + (",w2" if s == 0 and ch == 0 else "") + (",fe" if s == 10 and ch == 0 else ""))
            grp = (1, 2, 3, 0) if s == 10 else range(4)
            mf = [f"{MF} {TD(2*(r//2)+t, r%2)}, {W2(s,2*(r//2)+t)}, {Af(s,r%2)}, {'0' if s == 0 else TD(2*(r//2)+t, r%2)}" for r in grp for t in range(2)]
            if s == 10: mf += addfrag(TD(0, 0), TD(1, 0), HR[ch]) + addfrag(TD(0, 0), TD(1, 0), BRr)
            G = Gaps(mf)
            if nf is not None and s + nf < 11:
                L = fl(ch, s + nf)
                for x in L[:-2]: G.put(0, x)
                G.put(1, L[-2]); G.put(5, L[-1])
            for g in (1, 5):
                for x in take_mem(mq): G.put(g if ismem(x) else g - 1, x)
            if s == 10:
                for r in range(1, 4):
                    for t in range(2): G.put(min(2 * r + 4 + t, 11), f"ds_write_b128 {vw[r-1]}, {TD(2*(r//2)+t, r%2)} offset:{ch*24576 + t*1024}")
            G.emit(k)
    def finish(ch, hook=()):
        k("s_waitcnt lgkmcnt(0)"); k("s_barrier")
        for j in range(6): k(f"ds_read_b128 {RD.sub(4*j,4)}, {vrd} offset:{ch*24576 + j*1024}")
        k.ext(hook)
        for p in range(3):
            k(f"s_waitcnt lgkmcnt({4-2*p})")
            for j in range(0, 8, 2): k(f"v_pk_add_f32 {FACC.sub(j,2)}, {FACC.sub(j,2)}, {RD.sub(8*p+j,2)}")
        k.ext(pack(OP, TD(0, 0), TD(1, 0)))
        k(f"buffer_store_dwordx4 {OP}, {vrow}, {sXO}, {sxo2} offen {opt.get('of', '')}")
    fpass(0, {opt.get("s4", 6): ["WAITVM mst1", "s_barrier", wsig(sclE, vbc, F4[1])]}, None)
    finish(0, [wpoll("p4b", sflE, F4[1]), f"s_mov_b32 {sAct[0]}, {sHM[0]}", f"s_mov_b32 {sAct[1]}, {sHM[1]}"])
    k(f"s_add_u32 {sxo2}, {sxo2}, {MB}")
    k.ext(stamp("fa"))
    k.ext(wcheck("p4b", 16, sflE, F4[1])); k("s_barrier")
    k.ext(stamp("g4b"))
    NF = opt.get("nf", 6)
    for s in range(NF): k.ext(fl(1, s))
    fpass(1, {}, NF)
    k.ext(stamp("fmm"))
    finish(1)
    if echo:
        k("s_waitcnt vmcnt(0)"); k.ext(stamp("end"))
        k("s_nop 4"); k(f"v_readlane_b32 {st0}, v0, 0"); k(f"v_readlane_b32 {st1}, v0, 1"); k("s_nop 4")
        k(f"s_sub_u32 {st0}, {st1}, {st0}"); k(f"s_lshl_b32 {st0}, {st0}, 2"); k(f"s_min_u32 {st0}, {st0}, 100000")
        k("s_memrealtime s[100:101]"); k("s_waitcnt lgkmcnt(0)"); k(f"s_mov_b32 {st1}, s100")
        k.label(Lb("echo"))
        k("s_memrealtime s[100:101]"); k("s_waitcnt lgkmcnt(0)"); k(f"s_sub_u32 {st2}, s100, {st1}")
        k(f"s_cmp_lt_u32 {st2}, {st0}"); k(f"s_cbranch_scc1 {Lb('echo')}")
    if dbg:
        k("s_waitcnt vmcnt(0)"); k.ext(stamp("end"))
        srd(k, sW, pWS, MB, WS_DBG)
        k(f"s_lshl_b32 {st0}, s2, 2"); k(f"s_add_u32 {st0}, {st0}, {swave}"); k(f"s_lshl_b32 {st0}, {st0}, 8")
        k(f"v_lshlrev_b32 {t0}, 2, {vlane}")
        k(f"buffer_store_dword v0, {t0}, {sW}, {st0} offen")
    k.label(E)
    k("s_endpgm")
    tail.label(Lb("codeend")); tail("s_endpgm")
    k.L = resolve_waits(k.L) + [x.replace("NOCOUNT ", "") for x in tail.L]
    return k, names

def build(path, **kw):
    import hazard
    k, names = gen(KNAME + "_kernel", **kw)
    k.L, nfix = hazard.fix(k.L, k.name)
    if nfix: print("padded", nfix, "hazards")
    bad = hazard.check(k.L, k.name)
    ref = open("cdna_kernels/" + KNAME + ".s.ref").read().split("\n")
    hdr = "\n".join(ref[:next(n for n, l in enumerate(ref) if l.startswith("; Override"))]) + "\n" + """;
; One persistent launch, 256 workgroups (one per CU) of 4 waves with 512 registers; emitted by my own python generator.
;  1. LayerNorm(x) (8 rows per workgroup), K = c Wuk, V = c Wuv for 256 keys of one head, Q for the 128-row blocks i and 15-i.
;  2. Causal flash attention, 16x16x32 bf16 MFMA. The subtracted maximum starts as the true maximum of the first 16 keys and
;     enters through the C operand; it never exceeds the row maximum, so only overflow is possible. The row sums are checked
;     at the end and a wave whose sum is >= 2^60 or not finite recomputes its rows with the running true maximum.
;  3. Output projection + residual, LayerNorm(LayerNorm(.)) folded around the up projection, GELU(tanh), down projection.
; Hand-offs between workgroups: sc1 stores, vmcnt wait, barrier, counter add; consumers poll, then load with sc1.
; The counters live in d_ws and are cleared inside the launch (announced through d_debug); every poll is bounded.
"""
    open(path, "w").write(build_single(k, 512, 256, 102, 256, 256, 163840, hdr))
    check_file(path)
    if names: open(path[:-2] + ".names", "w").write(" ".join(names))
    return bad

if __name__ == "__main__":
    build("m.s"); build("m_dbg.s", dbg=True); build("m_force.s", thr=0.5)
```

```python
from asmlib import *
from layout import *
from k1 import f2h, MF, setup_wstream, wdma, trreads, cb_mfmas, pack
import math, re

NEGINF = "0xff800000"
SPIN = 200000

def sched(G, q, lo, hi=None, stq=None, second=False):
    hi = G.n - 1 if hi is None else hi
    g = lo
    while q and g <= hi:
        x = q[0]
        if isinstance(x, tuple):
            stq.append(x[1]); q.pop(0); continue
        full = G.cost(g) + icost(x) > G.cap
        clash = ismem(x) and len(G.g[g]) > 0 and not (second and len(G.g[g]) == 1 and G.g[g][0].startswith("ds_"))
        if full or clash:
            g += 1; continue
        G.g[g].append(x); q.pop(0)
    while q and isinstance(q[0], tuple):
        stq.append(q[0][1]); q.pop(0)

def glue(L):
    out = []
    for x in L:
        if x.startswith("s_addc") or x.startswith("s_cselect"): out[-1] += "\n" + x
        else: out.append(x)
    return out

def gen(name, dbg=False, thr=2.0**60, opt=None):
    opt = opt or {}
    SC = "sc1"; STF = opt.get("stf", "sc1")
    k = Kern(name)
    tail = Kern("tail")
    v = lambda b, n=1: Reg('v', b, n)
    a = lambda b, n=1: Reg('a', b, n)
    Lb = lambda s: f"L_{s}"
    E = Lb("end")
    vlane, vl16, vl16b, t0, t1, t2, vsig, vone, vpoll, vtr, vtrb, vinf, vm0, vm1, vm2 = [v(i) for i in range(1, 16)]
    X16 = v(16, 16); ACC = v(32, 128); WFr = v(160, 32); PB = v(192, 64)
    vW = X16.sub(0, 8); vco = X16.sub(8, 4); vcr = X16.sub(12, 4)
    WF = [WFr.sub(0, 16), WFr.sub(16, 16)]
    R = a(0, 256)
    S = Alloc("s", 3, 100)
    swave = S(); sh = S(); si = S(); st0 = S(); st1 = S(); st2 = S(); ssoff = S(); sldsw = S(); sspin = S()
    srg = S(2, 1); pWS = S(2)
    sFL = S(4); sKV = S(4); sXN = S(4); ssc = S(); sdb = S()
    mark0 = S.mark()
    nst = [0]; names = []
    echo = opt.get("echo")
    def stamp(nm):
        if echo:
            if nm == "start": return ["v_writelane_b32 v0, s100, 0"] + (["s_memrealtime s[100:101]", "s_waitcnt lgkmcnt(0)", "v_writelane_b32 v0, s100, 1"] if echo == nm else [])
            return ["s_memrealtime s[100:101]", "s_waitcnt lgkmcnt(0)", "v_writelane_b32 v0, s100, 1"] if nm == echo else []
        if not dbg or (opt.get("mini") and nm not in ("start", "st11", "ldone", "dmm", "end")): return []
        r = ["s_memtime s[100:101]" if opt.get("cyc") else "s_memrealtime s[100:101]", "s_waitcnt lgkmcnt(0)", f"v_writelane_b32 v0, s100, {nst[0]}"]
        nst[0] += 1; names.append(nm); return r
    def poll_issue(tag, vaddr, sd, soff, imm=0):
        return f"buffer_load_dword {vpoll}, {vaddr}, {sd}, {soff} offen offset:{imm} {SC} ; tag={tag}"
    def poll_check(tag, vaddr, sd, soff, n, imm=0):
        tail.label(Lb("spin" + tag)); tail(f"s_mov_b32 {sspin}, {SPIN}")
        tail.label(Lb("spl" + tag))
        tail(f"buffer_load_dword {vpoll}, {vaddr}, {sd}, {soff} offen offset:{imm} {SC}")
        tail("s_waitcnt vmcnt(0)"); tail(f"v_cmp_gt_u32 vcc, {n}, {vpoll}"); tail("s_nop 0")
        tail(f"s_cbranch_vccz {Lb('back'+tag)}")
        tail(f"s_sub_u32 {sspin}, {sspin}, 1"); tail(f"s_cbranch_scc0 {Lb('spl'+tag)}"); tail(f"s_branch {Lb('back'+tag)}")
        return [f"WAITVM {tag}", f"v_cmp_gt_u32 vcc, {n}, {vpoll}", "s_nop 0", f"s_cbranch_vccnz {Lb('spin'+tag)}", Lb("back" + tag) + ":"]
    def signal(sd, soff, vo=None): return f"buffer_atomic_add {vone}, {vo or vsig}, {sd}, {soff} offen"
    nsig = [0]
    def csignal(cond, ops, after=()):
        nsig[0] += 1; l = Lb(f"sg{nsig[0]}")
        return "\n".join([f"s_cmp_lg_u32 {cond}, 0", f"s_cbranch_scc1 {l}"] + ["NOCOUNT " + x for x in ops] + list(after) + [l + ":", ";"])
    def emit_dma(L):
        for x in L:
            k(x)
            if "m0" in x.split(",")[0]: k("s_nop 0")

    sldsc = sdb; scr = S(4, 2); sst = S(4, 2); sxr = S(4, 1); srot = S(); spe3 = S()
    sC = S(4); sWk = S(4); sWv = S(4); sWq = S(4); sDB = S(4); sP = S(4); sPD = S(4)
    sprow = S(); spA = S(); spB = S(); spd = S(); spe1 = S(); spe2 = S(); spstr = S(); spcs = S(); spxs = S(); sxo = S()
    pD = S(2); pA = S(4); pB = S(4); pC = S(4); pE = S(2); pF = sDB[0:2]
    sX = sXN
    k(f"s_cmp_ge_u32 s2, 256"); k(f"s_cbranch_scc1 {E}")
    if echo or opt.get("entry"): k("s_memrealtime s[100:101]")
    if opt.get("perm") == 1:
        k(f"s_and_b32 {st0}, s2, 7"); k(f"s_lshl_b32 {st0}, {st0}, 5"); k(f"s_lshr_b32 s2, s2, 3"); k(f"s_or_b32 s2, s2, {st0}")
    if opt.get("perm") == 2:
        k(f"s_and_b32 {st0}, s2, 7"); k(f"s_lshl_b32 {st0}, {st0}, 3"); k(f"s_bfe_u32 {st1}, s2, 0x30003"); k(f"s_and_b32 s2, s2, 0xc0"); k(f"s_or_b32 s2, s2, {st0}"); k(f"s_or_b32 s2, s2, {st1}")
    k(f"s_load_dwordx4 {pA}, s[0:1], 0")
    k(f"s_load_dwordx4 {pB}, s[0:1], 16")
    k(f"s_load_dwordx4 {pC}, s[0:1], 32")
    k(f"s_load_dwordx2 {pD}, s[0:1], 56")
    k(f"s_load_dwordx2 {pE}, s[0:1], 72")
    k(f"s_load_dwordx2 {pF}, s[0:1], 96")
    k(f"s_load_dwordx2 {pWS}, s[0:1], 104")
    k(f"v_lshrrev_b32 {t0}, 6, v0"); k(f"v_and_b32 {vlane}, 63, v0"); k(f"v_readfirstlane_b32 {swave}, {t0}")
    k(f"v_lshlrev_b32 {vl16}, 4, {vlane}")
    k(f"s_and_b32 {st0}, s2, 7"); k(f"s_lshl_b32 {st0}, {st0}, 2"); k(f"s_lshr_b32 {sh}, s2, 6"); k(f"s_add_u32 {sh}, {sh}, {st0}")
    k(f"s_bfe_u32 {si}, s2, 0x30003")
    TV = [t0, t1, vpoll, vpoll, t0, t1, vpoll, vpoll, vpoll]; touches = []
    def tc():
        return [[f"s_lshr_b32 {sspin}, s2, 3", f"s_lshl_b32 {sspin}, {sspin}, 2", f"s_add_u32 {sspin}, {sspin}, {swave}", f"s_lshl_b32 {sspin}, {sspin}, 14",
                 f"v_lshrrev_b32 {TV[0]}, 2, {vlane}", f"v_and_b32 {TV[1]}, 3, {vlane}", f"v_lshlrev_b32 {TV[1]}, 7, {TV[1]}", f"v_lshl_add_u32 {TV[0]}, {TV[0]}, 10, {TV[1]}",
                 f"buffer_load_dword {TV[2]}, {TV[0]}, {sC}, {sspin} offen offset:256"],
                [f"v_and_b32 {TV[1]}, 2, {vlane}", f"v_lshl_or_b32 {TV[0]}, {TV[1]}, 30, {TV[0]}",
                 f"buffer_load_dword {TV[3]}, {TV[0]}, {sC}, {sspin} offen offset:768"]]
    def tw(sd, row0, nrow, n):
        return [f"v_lshrrev_b32 {TV[4]}, 1, {vlane}", f"v_and_b32 {TV[5]}, 1, {vlane}", f"v_lshlrev_b32 {TV[5]}, 7, {TV[5]}", f"v_lshl_add_u32 {TV[5]}, {TV[4]}, 13, {TV[5]}",
                f"v_and_b32 {TV[4]}, {(~(nrow-1)) & 31}, {TV[4]}", f"v_lshl_or_b32 {TV[5]}, {TV[4]}, 26, {TV[5]}",
                f"s_mul_i32 {sspin}, {srg[0]}, {nrow*8192}", f"s_add_u32 {sspin}, {sspin}, {row0*8192}",
                f"buffer_load_dword {TV[6+n]}, {TV[5]}, {sd}, {sspin} offen"]
    tt = opt.get("touch", {"v": 3.5, "q": 10.4})
    if "c" in tt: touches += [(tt["c"], x) for x in tc()]
    if "k" in tt: touches.append((tt["k"], tw(sWk, 256, 8, 0)))
    if "v" in tt: touches.append((tt["v"], tw(sWv, 0, 16, 1)))
    if "q" in tt: touches.append((tt["q"], tw(sWq, 0, 16, 2)))
    if "p" in tt:
        touches.append((tt["p"], [f"v_bfe_u32 {t0}, {vlane}, 1, 2", f"v_and_b32 {t1}, 1, {vlane}", f"v_lshlrev_b32 {t1}, 7, {t1}", f"v_mad_u32_u24 {t1}, {t0}, {spstr}, {t1}",
                 f"v_bfe_u32 {t0}, {vlane}, 3, 1", f"v_mad_u32_u24 {t1}, {t0}, {spA}, {t1}", f"v_lshrrev_b32 {t0}, 4, {vlane}", f"v_mad_u32_u24 {t1}, {t0}, {spB}, {t1}",
                 f"buffer_load_dword {vpoll}, {t1}, {sP}, {sprow} offen"]))
        assert tt["p"] >= 0
    def tlb_touch(sh_):
        return [f"v_min_u32 {t2}, 39, {vlane}", f"v_lshlrev_b32 {t2}, 21, {t2}", f"v_mov_b32 {t1}, {pWS[1]}",
                f"v_add_co_u32 {t0}, vcc, {pWS[0]}, {t2}", "s_nop 1", f"v_addc_co_u32 {t1}, vcc, 0, {t1}, vcc",
                f"global_load_dword {vpoll}, v[{t0.base}:{t1.base}], off {SC}"]
    if "tlb" in tt: touches.append((tt["tlb"], tlb_touch(21)))
    def code_touch():
        pc = PB.sub(28, 2)
        k(f"s_getpc_b64 {sPD[0:2]}"); k.label(Lb("pc"))
        k(f"s_lshr_b32 {sspin}, s2, 3"); k(f"s_lshl_b32 {sspin}, {sspin}, 2"); k(f"s_add_u32 {sspin}, {sspin}, {swave}")
        k(f"v_lshl_add_u32 {t0}, {vlane}, 7, {sspin}"); k(f"v_lshlrev_b32 {t0}, 7, {t0}")
        k(f"v_min_u32 {t0}, {Lb('codeend')}-{Lb('pc')}-4, {t0}")
        k(f"v_mov_b32 {pc[1]}, {sPD[1]}"); k(f"v_add_co_u32 {pc[0]}, vcc, {sPD[0]}, {t0}"); k("s_nop 1"); k(f"v_addc_co_u32 {pc[1]}, vcc, 0, {pc[1]}, vcc")
        k("s_mov_b64 exec, 63"); k(f"global_load_dword {vpoll}, {pc}, off"); k("s_mov_b64 exec, -1")
    if opt.get("code", 1) == 1: code_touch()
    setup_wstream(k, vW, vtrb, vlane, swave, t0, t1, t2, st0)
    k(f"v_and_b32 {t0}, 15, {vlane}"); k(f"v_lshrrev_b32 {t1}, 4, {vlane}")
    k(f"s_lshl_b32 {sldsc}, {swave}, 14"); k(f"s_add_u32 {sldsc}, {sldsc}, {96*1024}")
    k(f"v_xor_b32 {t2}, {t0}, {t1}"); k(f"v_lshlrev_b32 {t2}, 4, {t2}")
    k(f"v_lshl_add_u32 {vco[0]}, {t1}, 10, {t2}")
    k(f"v_lshl_add_u32 {vcr[0]}, {t0}, 8, {t2}"); k(f"v_add_u32 {vcr[0]}, {sldsc}, {vcr[0]}")
    for q in range(1, 4):
        k(f"v_xor_b32 {vco[q]}, {q*64}, {vco[0]}"); k(f"v_add_u32 {vco[q]}, {q*4096 - q*1024}, {vco[q]}")
        k(f"v_xor_b32 {vcr[q]}, {q*64}, {vcr[0]}")
    k(f"s_lshl_b32 {st0}, {si}, 2"); k(f"s_add_u32 {srg[0]}, {st0}, {swave}")
    k(f"s_sub_u32 {srg[1]}, 60, {st0}"); k(f"s_add_u32 {srg[1]}, {srg[1]}, {swave}")
    ROT = opt.get("rot", 1)
    if opt.get("w5", 1): WSL = [0, 1, 2, 0, 1, 2, 3, 0, 4, 1, 2, 3]; WREL = [8, 7, 15, 23, 31, 31, 31, 39, 47, 55]
    else: WSL = [0, 1, 2] * 4; WREL = [8] + [8 * s_ - 17 for s_ in range(3, 12)]
    k(f"s_add_u32 {srot}, {sh if ROT == 2 else 's2'}, {si}"); k(f"s_and_b32 {srot}, {srot}, {3 if ROT else 0}")
    k(f"s_lshl_b32 {st1}, {srot}, 8"); k(f"s_lshl_b32 {srot}, {srot}, 20")
    k(f"s_lshl_b32 {scr[0]}, {srg[0]}, 16"); k(f"s_add_u32 {scr[0]}, {scr[0]}, {st1}")
    for rb in range(1, 4): k(f"s_add_u32 {scr[rb]}, {scr[0]}, {rb*16384}")
    k(f"s_lshl_b32 {sldsw}, {swave}, 13")
    k(f"s_lshl_b32 {ssc}, s2, 2"); k(f"s_add_u32 {ssc}, {ssc}, {swave}"); k(f"s_lshl_b32 {ssc}, {ssc}, 11")
    k(f"s_lshl_b32 {st0}, {sh}, 8"); k(f"s_sub_u32 {st1}, {4*MB}, {st0}")
    k(f"s_waitcnt lgkmcnt(0)")
    if opt.get("entry"): k(f"v_writelane_b32 v0, s100, {nst[0]}"); nst[0] += 1; names.append("entry")
    k.ext(stamp("start"))
    srd(k, sX, pA[0:2], 2 * MB); srd(k, sC, pA[2:4], 2 * MB)
    srd(k, sWk, pB[2:4], st1, st0)
    XR = [PB.sub(0, 4), PB.sub(4, 4)]; XF = [PB.sub(8, 8), PB.sub(16, 8)]; vs = PB.sub(24, 2); vt_ = PB.sub(26, 2)
    srd(k, sFL, pWS, 512 * 128, WS_FLG)
    k(f"s_cmp_ge_u32 s2, 11"); k(f"s_cselect_b32 {sspin}, 1, 0"); k(f"s_cbranch_scc1 {Lb('nz')}")
    for j in range(4): k(f"v_mov_b32 {XF[0][j]}, 0")
    k(f"s_lshr_b32 {ssoff}, {ssc}, 1")
    k(f"NOCOUNT buffer_store_dwordx4 {XF[0].sub(0,4)}, {vl16}, {sFL}, {ssoff} offen {SC}")
    k.label(Lb("nz"))
    k(f"v_add_u32 {vinf}, {ssc}, {vl16}")
    def cdma(ch):
        L = []
        for rb in range(4):
            L += [f"s_xor_b32 {ssc}, {scr[rb]}, {ch*256}", f"s_add_u32 m0, {sldsc}, {rb*4096}"]
            L += [f"buffer_load_dwordx4 {vco[q]}, {sC}, {ssc} offen offset:{q*1024} lds ; tag=c{ch}q{rb}" for q in range(4)]
        return L
    def creads(ch):
        return [f"ds_read_b128 {R.sub(((4*ch+ks)*4+rb)*4,4)}, {vcr[ks]} offset:{rb*4096}" for rb in range(4) for ks in range(4)]
    def wd(st):
        L = wdma(st, vW, (sWk, sWv, sWq)[st // 4], ssoff, sldsw, f"w{st}", WSL)
        if st < 8: L[0] = f"s_xor_b32 {ssoff}, {srot}, {(st % 4) << 20}"
        if st == 8 and opt.get("xrot", 1):
            L = [f"s_and_b32 {srot}, {sh}, 3", f"s_lshl_b32 {srot}, {srot}, 18"] + [f"v_xor_b32 {vW[p]}, {srot}, {vW[p]}" for p in range(8)] + L
        return L
    fine = opt.get("fine")
    NC0 = opt.get("nc0", 0)
    emit_dma(wd(0)); emit_dma(cdma(0)[:6 * NC0])
    if fine: k.ext(stamp("iw0"))
    srd(k, sWv, pC[0:2], st1, st0); srd(k, sWq, pB[0:2], st1, st0)
    k(f"s_lshl_b32 {st1}, {sh}, 20")
    srd(k, sKV, pWS, MB, st1)
    k(f"s_mov_b32 {sDB[2]}, 256"); k(f"s_mov_b32 {sDB[3]}, 0x20000")
    k(f"v_add_u32 {vl16b}, 4096, {vl16}")
    k(f"v_mov_b32 {vone}, 1")
    k(f"v_cmp_eq_u32 vcc, 0, {vlane}"); k(f"v_mov_b32 {t0}, 0x80000000"); k(f"v_mov_b32 {t1}, 0")
    k(f"v_cndmask_b32 {vsig}, {t0}, {t1}, vcc")
    k(f"s_lshl_b32 {sst[0]}, {srg[0]}, 14")
    for rb in range(1, 4): k(f"s_add_u32 {sst[rb]}, {sst[0]}, {rb*4096}")
    for g in range(2):
        k(f"s_lshl_b32 {sxr[2*g]}, {srg[g]}, 15")
        if opt.get("xrot", 1): k(f"s_and_b32 {st0}, {sh}, 3"); k(f"s_lshl_b32 {st0}, {st0}, 10"); k(f"s_add_u32 {sxr[2*g]}, {sxr[2*g]}, {st0}")
        k(f"s_add_u32 {sxr[2*g+1]}, {sxr[2*g]}, 16384")
    k(f"s_mul_i32 {st2}, {sh}, 7"); k(f"s_add_u32 {st2}, {st2}, {si}"); k(f"s_lshl_b32 {st2}, {st2}, 2"); k(f"s_add_u32 {st2}, {st2}, {swave}")
    k(f"s_sub_u32 {st2}, {st2}, 4"); k(f"s_cmp_eq_u32 {si}, 0"); k(f"s_cselect_b32 {st2}, 1000, {st2}")
    k(f"s_cmp_ge_u32 {st2}, 684"); k(f"s_cbranch_scc1 {Lb('pw1')}")
    k(f"s_mov_b32 {sP[2]}, {4*MB}"); k(f"s_mov_b32 {spe2}, {128*2048}"); k(f"s_mov_b32 {spe3}, {128*4096}")
    k(f"s_cmp_ge_u32 {st2}, 512")
    k(f"s_cselect_b32 {sP[0]}, {pE[0]}, {pC[2]}"); k(f"s_cselect_b32 {sP[1]}, {pE[1]}, {pC[3]}")
    k(f"s_cselect_b32 {sP[2]}, {1376*1024}, {sP[2]}"); k(f"s_cselect_b32 {spe2}, 2048, {spe2}"); k(f"s_cselect_b32 {spe3}, {43*4096}, {spe3}")
    k(f"s_cselect_b32 {spd}, {WS_W2P - WS_WOP}, 0"); k(f"s_cselect_b32 {spA}, 12, 11")
    k(f"s_and_b32 {st0}, {st2}, 511"); k(f"s_lshr_b32 {sprow}, {st0}, 2"); k(f"s_and_b32 {st0}, {st0}, 3")
    k(f"s_lshl_b32 {st1}, {sprow}, {spA}"); k(f"s_add_u32 {spd}, {spd}, {st1}")
    k(f"s_mul_i32 {st1}, {st0}, {spe3}"); k(f"s_lshl_b32 {st1}, {st1}, 1"); k(f"s_add_u32 {spd}, {spd}, {st1}")
    k(f"s_lshl_b32 {sprow}, {sprow}, 15"); k(f"s_lshl_b32 {st0}, {st0}, 8"); k(f"s_add_u32 {sprow}, {sprow}, {st0}")
    k(f"s_mov_b32 {spA}, {16*1024}"); k(f"s_mov_b32 {spB}, {4*1024}"); k(f"s_mov_b32 {spe1}, 1024")
    k(f"s_mov_b32 {spstr}, 1024"); k(f"s_mov_b32 {spcs}, 16"); k(f"s_mov_b32 {spxs}, 8")
    k(f"s_mov_b32 {sPD[2]}, {8*MB}")
    k(f"s_branch {Lb('pdone')}")
    k.label(Lb("pw1"))
    k(f"s_mov_b32 {sP[0]}, {pD[0]}"); k(f"s_mov_b32 {sP[1]}, {pD[1]}")
    k(f"s_cmp_ge_u32 {st2}, 860")
    k(f"s_cselect_b32 {sP[2]}, 0, {512*2752}"); k(f"s_cselect_b32 {sPD[2]}, 0, {8*MB}")
    k(f"s_sub_u32 {st0}, {st2}, 684"); k(f"s_and_b32 {sprow}, {st0}, 15"); k(f"s_lshr_b32 {st0}, {st0}, 4")
    k(f"s_lshl_b32 {spd}, {st0}, 17"); k(f"s_lshl_b32 {st1}, {sprow}, 10"); k(f"s_add_u32 {spd}, {spd}, {st1}")
    k(f"s_add_u32 {spd}, {spd}, {WS_W1P - WS_WOP}")
    k(f"s_mul_i32 {sprow}, {sprow}, {32*2752}")
    k(f"s_lshl_b32 {st0}, {st0}, 8"); k(f"s_add_u32 {sprow}, {sprow}, {st0}")
    k(f"s_mov_b32 {spA}, {4*2752}"); k(f"s_mov_b32 {spB}, {8*2752}"); k(f"s_mov_b32 {spe1}, 16384"); k(f"s_mov_b32 {spe2}, 32768"); k(f"s_mov_b32 {spe3}, 65536")
    k(f"s_mov_b32 {spstr}, 2752"); k(f"s_mov_b32 {spcs}, 8"); k(f"s_mov_b32 {spxs}, 32")
    k.label(Lb("pdone"))
    k(f"s_mov_b32 {sP[3]}, 0x20000")
    k(f"s_add_u32 {sPD[0]}, {pWS[0]}, {WS_WOP}"); k(f"s_addc_u32 {sPD[1]}, {pWS[1]}, 0"); k(f"s_mov_b32 {sPD[3]}, 0x20000")
    k(f"v_lshrrev_b32 {t0}, 4, {vlane}"); k(f"v_and_b32 {t1}, 15, {vlane}"); k(f"v_lshlrev_b32 {t1}, 7, {t1}")
    k(f"v_lshl_add_u32 {vm0}, {t0}, 13, {t1}"); k(f"s_lshl_b32 {st0}, {swave}, 5"); k(f"s_add_u32 {st0}, {st0}, 65536")
    k(f"v_lshrrev_b32 {t0}, 3, {vlane}"); k(f"v_and_b32 {t1}, 7, {vlane}"); k(f"v_lshlrev_b32 {t1}, 4, {t1}")
    if opt.get("gsw", 1):
        k(f"v_or_b32 {vm0}, {vm0}, {t1}"); k(f"v_xor_b32 {vm0}, {st0}, {vm0}")
        k(f"s_add_u32 {st0}, {sldsw}, 65536"); k(f"v_lshlrev_b32 {vm1}, 4, {t0}"); k(f"v_xor_b32 {vm1}, {vm1}, {vl16}"); k(f"v_add_u32 {vm1}, {st0}, {vm1}")
    else:
        k(f"v_xor_b32 {vm0}, {st0}, {vm0}"); k(f"s_add_u32 {st0}, {sldsw}, 65536"); k(f"v_add_u32 {vm1}, {st0}, {vl16}")
    k(f"v_lshl_add_u32 {vm2}, {t0}, 8, {t1}")
    k(f"s_lshr_b32 {sxo}, s2, 1"); k(f"s_lshl_b32 {sxo}, {sxo}, 14"); k(f"s_and_b32 {st0}, s2, 1"); k(f"s_lshl_b32 {st0}, {st0}, 7")
    k(f"s_add_u32 {sxo}, {sxo}, {st0}"); k(f"s_lshl_b32 {st0}, {swave}, 12"); k(f"s_add_u32 {sxo}, {sxo}, {st0}")
    WARM = opt.get("warm", ("P1", "D1", "T", "TE", "DM", "DMP", "DM7"))
    for t_ in WARM:
        k(f"s_branch {Lb('wu'+t_)}"); k.label(Lb("wb" + t_))
    def target(t_, fall=False):
        if t_ in WARM:
            if fall: k(f"s_branch {Lb(t_)}")
            k(".p2align 6"); k.label(Lb("wu" + t_)); k(f"s_branch {Lb('wb'+t_)}")
        k.label(Lb(t_))
    if fine: k.ext(stamp("setup"))
    emit_dma(cdma(0)[6 * NC0:])
    if fine: k.ext(stamp("ic0"))
    for tm, L in touches:
        if tm < 0: k.ext(L)
    for j in range(2): k(f"buffer_load_dwordx4 {XR[j]}, {vinf}, {sX}, 0 offen offset:{1024*j} ; tag=x")
    srd(k, sXN, pWS, 2 * MB, WS_XN)
    mark_ln = len(k.L)
    k("WAITVM x")
    for i in range(2):
        for j in range(4):
            k(f"v_lshlrev_b32 {XF[i][2*j]}, 16, {XR[i][j]}"); k(f"v_and_b32 {XF[i][2*j+1]}, 0xffff0000, {XR[i][j]}")
        k(f"v_add_f32 {vs[i]}, {XF[i][0]}, {XF[i][1]}")
        for j in range(2, 8): k(f"v_add_f32 {vs[i]}, {vs[i]}, {XF[i][j]}")
    allreduce(k, [vs[0], vs[1]], [vt_[0], vt_[1]])
    for i in range(2):
        k(f"v_mul_f32 {vs[i]}, {f2h(1/512)}, {vs[i]}")
        for j in range(8): k(f"v_sub_f32 {XF[i][j]}, {XF[i][j]}, {vs[i]}")
        k(f"v_mul_f32 {vs[i]}, {XF[i][0]}, {XF[i][0]}")
        for j in range(1, 8): k(f"v_fmac_f32 {vs[i]}, {XF[i][j]}, {XF[i][j]}")
    allreduce(k, [vs[0], vs[1]], [vt_[0], vt_[1]])
    for i in range(2):
        k(f"v_mov_b32 {vt_[i]}, {f2h(1e-5)}"); k(f"v_fmac_f32 {vt_[i]}, {f2h(1/512)}, {vs[i]}"); k(f"v_rsq_f32 {vs[i]}, {vt_[i]}")
    k("s_nop 0")
    for i in range(2):
        k(f"v_mul_f32 {vs[i]}, {f2h(QSCALE)}, {vs[i]}")
        for j in range(8): k(f"v_mul_f32 {XF[i][j]}, {XF[i][j]}, {vs[i]}")
        for j in range(4): k(f"v_cvt_pk_bf16_f32 {XR[i][j]}, {XF[i][2*j]}, {XF[i][2*j+1]}")
        if i: k(f"v_xor_b32 {vm0}, 16, {vm0}")
        k(f"ds_write_b128 {vm0}, {XR[i]}")
    lnq = [x for x in k.L[mark_ln:] if not x.startswith("s_nop")]; del k.L[mark_ln:]
    w1_ = wd(1); cr = creads(0)
    for q in range(4):
        for _ in range(2):
            while not ismem(w1_[0]): k(w1_.pop(0))
            k(w1_.pop(0))
        k(f"WAITVM c0q{q}" + (" lgkm=4" if q == 3 else "")); k.ext(cr[4 * q:4 * q + 4])
    k(csignal(sspin, [signal(sDB, 0)]))
    k.ext(stamp("ln"))
    k("s_barrier"); k("s_waitcnt lgkmcnt(4)")
    k.ext(trreads(0, 0, WF, vtr, vtrb, WSL))
    xnrd = [f"ds_read_b128 {XF[0].sub(4*j,4)}, {vm1} offset:{1024*j}" for j in range(2)]
    xnst = [f"buffer_store_dwordx4 {XF[0].sub(4*j,4)}, {vm2}, {sXN}, {sxo} offen offset:{2048*j} {SC} ; tag=z" for j in range(2)]
    k(f"s_lshr_b32 {st2}, s2, 4"); k(f"s_lshl_b32 {st2}, {st2}, 7"); k(f"s_add_u32 {st2}, {st2}, {320*128}")
    k(f"s_lshl_b32 {st0}, {si}, 1"); k(f"s_sub_u32 {st0}, 15, {st0}"); k(f"v_and_b32 {t2}, 1, {vlane}")
    k(f"v_mul_u32_u24 {t2}, {st0}, {t2}"); k(f"v_add_u32 {t2}, {si}, {t2}"); k(f"v_mov_b32 {vinf}, 0")
    p0adr = [f"v_lshlrev_b32 {vm1}, 7, {t2}", f"v_add_u32 {vm1}, {320*128}, {vm1}"]
    k("s_waitcnt lgkmcnt(0)")
    k.ext(stamp("go"))

    S2 = Alloc('s', sC.base, sWq.base)
    pool = [r.sub(2 * i, 2) for r in (sDB, scr, sst, pA, pB, pC, pD, pE) for i in range(r.n // 2)]
    assert all(p.base % 2 == 0 for p in pool)
    S3 = lambda n: pool.pop(0)
    skv = S2(); scnt = S2(); snS = S2(); sflag = S2(); sctx = S2(2, 1); mC = S2(2); sCT = S2(4)
    mA = [S3(2) for _ in range(4)]; mB = [S3(2) for _ in range(4)]; mT = [S3(2) for _ in range(4)]; mU = S3(2); mX = S3(2)
    SB = [WFr, PB.sub(0, 32)]; NM = PB.sub(32, 16); MK = PB.sub(48, 16); TMP = X16
    vra, vrc, vthr = vtr, vm2, vm0
    Q = a(0, 64); FK = a(64, 32); FV = a(128, 32); LA = a(96, 16); ONES = a(112, 4)
    O = lambda grp, db, qb: ACC.sub(grp * 64 + (db * 2 + qb) * 4, 4)
    Sq = lambda par, grp, qb: SB[par].sub((grp * 2 + qb) * 8, 8)
    St = lambda par, grp, qb, kb: SB[par].sub(grp * 16 + kb * 8 + qb * 4, 4)
    SMF = opt.get("smf", 1); SPA = a(116, 4); vidx = t2
    Qf = lambda grp, qb, ks: Q.sub(((grp * 2 + qb) * 4 + ks) * 4, 4)
    T = lambda cb, rb: ACC.sub((cb * 4 + rb) * 4, 4)
    XR_ = opt.get("xrot", 1)
    def xloads(ch):
        L = []
        if XR_:
            for ks in range(4):
                for rb in range(4):
                    L += [f"s_xor_b32 {ssc}, {sxr[rb]}, {ch*4096 + ks*1024}", f"buffer_load_dwordx4 {R.sub(((4*ch+ks)*4+rb)*4,4)}, {vl16}, {sXN}, {ssc} offen {SC} ; tag=x{ch}"]
            return L
        for rb in range(4):
            L.append(f"s_add_u32 {ssc}, {sxr[rb]}, {ch*4096}")
            L += [f"buffer_load_dwordx4 {R.sub(((4*ch+ks)*4+rb)*4,4)}, {vl16}, {sXN}, {ssc} offen offset:{ks*1024} {SC} ; tag=x{ch}" for ks in range(4)]
        return L
    def kvdma(j, tag):
        L = []
        for p in range(8):
            if p % 4 == 0: L.append(f"s_add_u32 m0, {sldsw}, {(j%4)*32768 + (p//4)*4096}")
            L.append(f"buffer_load_dwordx4 {vl16 if p < 4 else vl16b}, {sKV}, {scnt if j == 0 else skv} offen offset:{(p%4)*1024} {SC} lds ; tag={tag}")
        L.append(f"s_add_u32 {skv}, {skv}, 16384")
        return L
    presetup = []
    def prep_dma():
        presetup.extend([f"v_lshrrev_b32 {t0}, 4, {vlane}", f"v_bfe_u32 {t1}, {vlane}, 2, 2", f"v_and_b32 {t2}, 3, {vlane}",
              f"v_mul_u32_u24 {vcr[0]}, {spcs}, {t2}", f"v_add_u32 {vcr[1]}, {spxs}, {vcr[0]}",
              f"v_and_b32 {t2}, 1, {t0}", f"v_lshl_or_b32 {t2}, {t2}, 2, {t1}", f"v_lshlrev_b32 {t2}, 5, {t2}",
              f"v_lshl_or_b32 {t2}, {t1}, 8, {t2}", f"v_lshl_or_b32 {t2}, {t0}, 11, {t2}",
              f"s_add_u32 {sldsc}, {sldsw}, 131072", f"v_or_b32 {t2}, {sldsc}, {t2}",
              f"v_xor_b32 {vcr[0]}, {vcr[0]}, {t2}", f"v_xor_b32 {vcr[1]}, {vcr[1]}, {t2}",
              f"v_and_b32 {t1}, 15, {vlane}", f"v_lshlrev_b32 {t2}, 1, {t0}", f"v_xor_b32 {t1}, {t1}, {t2}", f"v_lshlrev_b32 {t1}, 4, {t1}",
              f"v_mad_u32_u24 {vco[0]}, {t0}, {spstr}, {t1}", f"v_xor_b32 {t1}, 128, {t1}", f"v_mad_u32_u24 {vco[1]}, {t0}, {spstr}, {t1}"])
        L = []
        for p in range(8):
            L.append(f"s_add_u32 m0, {sldsc}, {p*1024}")
            if p % 2: L.append(f"s_add_u32 {sxo}, {sprow}, {spA}")
            elif p: L.append(f"s_add_u32 {sprow}, {sprow}, {spB}")
            L.append(f"buffer_load_dwordx4 {vco[(p >> 1) & 1]}, {sP}, {sxo if p % 2 else sprow} offen lds ; tag=pp")
        return L
    def att_setup():
        L = Kern("x")
        srd(L, sCT, pWS, 16 * MB, WS_CTX)
        L(f"v_mov_b32 {vinf}, {NEGINF}")
        L(f"s_or_b32 {st0}, {sldsw}, 0x10000"); L(f"v_or_b32 {vrc}, {st0}, {vl16}")
        L(f"s_and_b32 {st0}, {swave}, 1"); L(f"s_lshl_b32 {skv}, {st0}, 13")
        L(f"s_cmp_ge_u32 {swave}, 2"); L(f"s_cselect_b32 {st1}, {512*1024-16384}, 0"); L(f"s_add_u32 {skv}, {skv}, {st1}"); L(f"s_add_u32 {skv}, {skv}, 8192")
        L(f"s_cmp_eq_u32 {swave}, 2"); L(f"s_cselect_b32 {scnt}, 0, {skv}")
        for g in range(2):
            L(f"s_lshr_b32 {st1}, {srg[g]}, 1"); L(f"s_lshl_b32 {sctx[g]}, {st1}, 19")
            L(f"s_lshl_b32 {st1}, {sh}, 14"); L(f"s_add_u32 {sctx[g]}, {sctx[g]}, {st1}")
            L(f"s_lshl_b32 {st1}, {st0}, 11"); L(f"s_add_u32 {sctx[g]}, {sctx[g]}, {st1}")
        L(f"s_lshr_b32 {snS}, {srg[0]}, 1"); L(f"s_add_u32 {snS}, {snS}, 1")
        L(f"s_mov_b32 {sflag}, 0")
        L(f"v_and_b32 {t0}, 15, {vlane}"); L(f"v_lshrrev_b32 {t1}, 4, {vlane}"); L(f"v_lshlrev_b32 {t1}, 2, {t1}"); L(f"v_sub_u32 {t0}, {t0}, {t1}")
        for r in range(4): L(f"v_cmp_le_i32 {mT[r]}, {r}, {t0}")
        L(f"s_cmp_eq_u32 {st0}, 0"); L(f"s_cselect_b64 {mC}, 0, -1")
        for r in range(4):
            L(f"s_or_b64 {mA[r]}, {mT[r]}, {mC}"); L(f"s_and_b64 {mB[r]}, {mT[r]}, {mC}")
        L(f"v_mov_b32 {t0}, 0x3f803f80"); L(f"v_mov_b32 {t1}, 0")
        for j in range(4): L(f"v_accvgpr_write_b32 {ONES[j]}, {t0}")
        for r in range(4): L(f"v_cndmask_b32 {MK[r]}, {vinf}, {t1}, {mA[r]}")
        L(f"v_mov_b32 {vthr}, {f2h(thr)}")
        if SMF:
            L(f"v_lshrrev_b32 {t1}, 4, {vlane}"); L(f"v_xor_b32 {t1}, {t1}, {vlane}"); L(f"v_bfe_u32 {t1}, {t1}, 1, 1"); L(f"v_add_u32 {t1}, -1, {t1}"); L(f"v_and_b32 {t1}, {t0}, {t1}")
            for j in range(4): L(f"v_accvgpr_write_b32 {SPA[j]}, {t1}")
            for j in range(8): L(f"v_accvgpr_write_b32 {LA[j]}, 0")
            L(f"v_and_b32 {t1}, 1, {vlane}"); L(f"v_mul_u32_u24 {t1}, 0xaaaa, {t1}"); L(f"v_add_u32 {vidx}, 0x4444, {t1}")
        return L.L
    streams = []
    def add_ops(L, rel, dl, dma=False):
        pre = []; n = 0; out = []
        for x in L:
            if x.startswith("buffer_") or x.startswith("global_"):
                out.append(dict(rel=rel[n] * 16, dl=dl[n] * 16, pre=pre, op=x, post=[], dma=dma)); pre = []; n += 1
            else: pre.append(x)
        assert n == len(rel) == len(dl), (n, len(rel))
        out[-1]["post"] = pre
        streams.append(out)
    lin = lambda t0_, t1_, n: [t0_ + (t1_ - t0_) * i / n for i in range(n)]
    rep = lambda L, n: [x for x in L for _ in range(n)]
    PBf = lambda n: PB.sub(4 * n, 4)
    PA = a(160, 32)
    kst = [f"buffer_store_dwordx4 {PBf(s*4+rb)}, {vl16}, {sKV}, {sst[rb]} offen offset:{s*1024} {STF} ; tag=kst" for s in range(4) for rb in range(4)]
    vst = [f"buffer_store_dwordx4 {PBf(cb*2+t)}, {vl16}, {sKV}, {sst[2*t+cb//4]} offen offset:{(cb%4)*1024} {STF} ; tag=vst" for cb in range(8) for t in range(2)]
    pst = [f"s_add_u32 {sprow}, {spd}, {spe3}"]
    for x in range(8):
        pst.append(f"buffer_store_dwordx4 {PA.sub(4*x,4)}, {vl16}, {sPD}, {spA if x % 2 else spd} offen {STF} ; tag=pst")
        if x % 2 == 0: pst.append(f"s_add_u32 {spA}, {spd}, {spe1}")
        elif x % 4 == 1: pst.append(f"s_add_u32 {spd}, {spd}, {spe2}")
        elif x == 3: pst.append(f"s_mov_b32 {spd}, {sprow}")
    sfl1 = st2
    LC = opt.get("lc", 4.5); SCST = opt.get("sc", 11.5); SMIN = opt.get("smin", 14)
    add_ops(cdma(1) + cdma(2) + cdma(3), rep([0, 0, 0, 0, 5, 6, 7, 8, 13, 14, 15, 16], 4), rep([0, 1, 2, 3, 7, 8, 9, 10, 15, 16, 17, 18], 4), True)
    WL = opt.get("wl", 9)
    add_ops(sum((wd(st) for st in range(2, 12)), []), rep(WREL, 8),
            rep([4, 11, 19], 8) + sum((lin(8 * st - 1 - WL - 6, 8 * st - 1 - WL + 2, 8) for st in range(5, 12)), []), True)
    XT = opt.get("xt"); S0S = 1 if XT else 2
    add_ops(xnst, [8, 8], [0, 0] if XT else [10.5, 10.6])
    add_ops([poll_issue("pz", vinf, sDB, 0)], [13], [0 if XT else 13])
    add_ops(kst, [max(27.2 + 2 * (n // 4), opt.get("k0", 27)) for n in range(16)], lin(28, opt.get("k1", 42), 16))
    for tm, L in touches:
        if tm >= 0: add_ops(L, [tm], [tm])
    TP0 = opt.get("tp0", 19) if XT else 33
    add_ops([poll_issue("p0", vm1, sFL, 0)], [TP0], [0 if XT else 33])
    if XT:
        nl = 128 // len(XT)
        L = poll_check("p0", vm1, sFL, 0, 16) + [f"s_bitcmp1_b32 {sh}, 1\ns_cselect_b32 {st0}, {srg[1]}, {srg[0]}", f"s_lshl_b32 {st0}, {st0}, 1", f"s_and_b32 {st1}, {sh}, 1",
             f"s_add_u32 {st0}, {st0}, {st1}", f"s_lshl_b32 {st0}, {st0}, 14", f"v_and_b32 {t0}, {64 - nl}, {vlane}", f"v_lshlrev_b32 {t0}, 25, {t0}", f"v_lshl_or_b32 {t0}, {vlane}, 7, {t0}"]
        for n_ in range(len(XT)):
            L += [f"buffer_load_dword {vpoll}, {t0}, {sXN}, {st0} offen {SC}", f"s_add_u32 {st0}, {st0}, {nl*128}"]
        add_ops(L, list(XT), list(XT))
    add_ops(sum((xloads(c) for c in range(4)), []), rep([40, 48, 56, 64], 16),
            lin(42, 50, 16) + lin(50, 58, 16) + lin(58, 74, 16) + lin(opt.get("x3", 74), 83, 16))
    add_ops(([f"s_lshl_b32 {st1}, {swave}, 24"] + [f"s_add_u32 {sst[i]}, {sst[i]}, {st1}" for i in range(4)] if opt.get("xv") else []) + [f"s_add_u32 {sst[i]}, {sst[i]}, {512*1024}" for i in range(4)] + vst, [58.2 + n // 2 for n in range(16)], lin(58, opt.get("v1", 77), 16))
    ppd = prep_dma()
    tp1 = opt.get("tp1", 88); TS1 = int(opt.get("ts1", 85)); s1e = sxo; s1l = srot
    s1set = [f"s_lshl_b32 {sfl1}, {sh}, 10", f"s_lshl_b32 {s1l}, {si}, 7", f"s_add_u32 {s1l}, {s1l}, {sfl1}",
             f"v_and_b32 {vm1}, 56, {vlane}", f"v_lshlrev_b32 {vm1}, 25, {vm1}", f"v_lshl_or_b32 {vm1}, {vlane}, 7, {vm1}",
             f"s_cmp_eq_u32 {swave}, 0\ns_cselect_b32 {s1e}, 8, 0"]
    s1sig = ["WAITVM vst", "s_barrier", csignal(swave, [signal(sFL, sfl1, vm1) + " offset:12"]),
             f"s_lshl_b32 {sfl1}, {swave}, 28", f"v_mov_b32 {vm1}, {sfl1}", f"s_lshl_b32 {sfl1}, {sh}, 8", f"s_add_u32 {sfl1}, {sfl1}, 32768"]
    add_ops([poll_issue("p1", vm1, sFL, s1l, 12)], [tp1], [0])
    add_ops(poll_check("p1", vm1, sFL, s1l, s1e, 12) + ["s_barrier"] + kvdma(0, "kv0") + kvdma(1, "kv1"), [tp1 + 2.5] * 16, [90] * 16, True)
    slots = {}; Tp = 1.0; owner = None; lastst = -99
    while any(streams):
        cand = []
        for sm in streams:
            if not sm: continue
            o = sm[0]
            if o["dma"] and owner is not None and owner is not sm: continue
            r = o["rel"]
            if "store_dwordx4" in o["op"]: r = max(r, lastst + SMIN)
            cand.append((max(r, Tp), o["dl"], id(sm), sm))
        now = min(c[0] for c in cand)
        sm = min((c for c in cand if c[0] <= now + 1), key=lambda c: c[1])[3]
        o = sm.pop(0)
        g = int(math.ceil(max(now, o["rel"])))
        while g % 16 == 15 or g in slots: g += 1
        slots[g] = o
        big = "dwordx4" in o["op"]
        st_ = "store" in o["op"]
        lc_ = opt.get("lc2", 5.0) if 40 * 16 <= g < 88 * 16 else LC
        Tp = max(now, g - 1) + (((opt.get("scv", SCST) if "vst" in o["op"] else SCST) if st_ else lc_) if big else (2 if "atomic" in o["op"] or "tag=p" in o["op"] else 8))
        if big and st_: lastst = g
        if o["dma"]: owner = sm if sm and not any("m0" in x for x in sm[0]["pre"]) else None
    assert max(slots) < 96 * 16 - 2, max(slots)
    lastv = max(79 * 16, max(g for g in slots if "tag=vst" in slots[g]["op"])); firstkv = min(g for g in slots if "tag=kv0" in slots[g]["op"])
    assert lastv < TS1 * 16 - 8 and tp1 >= TS1
    if opt.get("showsched"):
        for g in sorted(slots):
            m_ = re.search(r"tag=(\S+)", slots[g]["op"]); print(f"{g/16:.2f}:{m_.group(1) if m_ else '-'}", end=" ")
        print()
    sW = sXN; sow = ssc; s7 = mU[0]
    Wd = lambda ks, cb: a(160 + ks * 8 + cb * 4, 4) if ks < 12 else v(32 + (ks - 12) * 8 + cb * 4, 4) if ks < 20 else a((ks - 20) * 8 + cb * 4, 4)
    def wl(s): return [f"buffer_load_dwordx4 {Wd(2*s+c//2,c%2)}, {vl16}, {sW}, {sow} offen offset:{c*1024} {SC} ; tag=dw{s}" for c in range(4)] + [f"s_xor_b32 {sow}, {sow}, {(s ^ (s + 1)) * 4096}"]
    U = Kern("x")
    srd(U, sW, pWS, 4 * MB, WS_WOP)
    U(f"s_and_b32 {st0}, {si}, 3"); U(f"s_lshl_b32 {st0}, {st0}, 2"); U(f"s_add_u32 {st0}, {st0}, {swave}"); U(f"s_lshl_b32 {sow}, {st0}, 18")
    U(f"s_bfe_u32 {st0}, s2, 0x20001"); U(f"s_lshl_b32 {st0}, {st0}, 16"); U(f"s_add_u32 {sow}, {sow}, {st0}")
    DR = 3 if opt.get("drot", 0) else 0
    U(f"s_and_b32 {st0}, {si}, {DR}"); U(f"s_lshl_b32 {st0}, {st0}, 14"); U(f"s_add_u32 {sow}, {sow}, {st0}")
    U(f"v_and_b32 {vm1}, 31, {vlane}"); U(f"v_lshlrev_b32 {vm1}, 8, {vm1}"); U(f"v_add_u32 {vm1}, 32768, {vm1}"); U(f"s_mov_b32 {s7}, 1")
    wset = glue(U.L)
    drainq = []; auxq = []; carry = []; npk = [0]
    def drain_q(ta, tb, dst):
        p = PB.sub(4 * (npk[0] % 4), 4); npk[0] += 1
        return pack(p, ta, tb) + [f"v_accvgpr_write_b32 {dst[j]}, {p[j]}" for j in range(4)]
    k(trreads(0, 1, WF, vtr, vtrb, WSL)[0])
    order = sorted(slots)
    k.ext(slots[order[0]]["pre"]); slots[order[0]]["pre"] = []
    allG = []
    for st in range(12):
        for cb in range(8):
            t = st * 8 + cb
            G = Gaps(cb_mfmas(st, cb, ACC, WF, R, swap=4 <= st < 8))
            for g in range(16):
                if 16 * t + g in slots: G.put(g, slots[16 * t + g]["op"])
            free = [g for g in range(15) if not G.g[g]]
            extra = []; w_ = None
            if st < 3 and cb >= 4:
                q_ = cb - 4; w_ = f"WAITVM c{st+1}q{q_}"; extra = creads(st + 1)[4 * q_:4 * q_ + 4]
            pos = free[:8]
            if extra: pos = [free[0], free[0], free[1], free[1]] + free[2:6]
            if t < 95:
                for g, x in zip(pos, trreads((t + 1) // 8, (t + 1) % 8, WF, vtr, vtrb, WSL)[1:]): G.put(g, x)
            if w_: G.put(pos[-1], w_)
            for g, x in zip(free[6:10], extra): G.put(g, x)
            if t < 94: G.put(15, trreads((t + 2) // 8, (t + 2) % 8, WF, vtr, vtrb, WSL)[0])
            if t < 95:
                if cb == 7 and 7 <= st <= 10: G.put(15, f"WAITVM x{st-7} lgkm=0")
                else: G.put(15, "s_waitcnt lgkmcnt(0)")
            allG.append(G)
    prev = 0
    def place(L, lo, hi):
        g = lo
        for x in L:
            while g < hi and allG[g // 16].cost(g % 16) + icost(x) > 8: g += 1
            allG[g // 16].put(g % 16, x)
    for n, gpos in enumerate(order):
        L = (slots[order[n - 1]]["post"] if n else []) + slots[gpos]["pre"]
        lo = prev
        if slots[gpos]["pre"] and slots[gpos]["pre"][0].startswith("WAITVM"): lo = max(lo, gpos - 8)
        place(L, lo, gpos - 1)
        prev = gpos
    place(slots[order[-1]]["post"], prev, 96 * 16 - 1)
    for st in range(12):
        if st == 5: auxq += presetup
        for cb in range(8):
            G = allG[st * 8 + cb]
            if cb == 7 and st < 11:
                tags = f"w{st+1}" + (",z" if st == S0S else "")
                k(f"WAITVM {tags}"); k("s_barrier")
                if st == S0S: auxq += poll_check("pz", vinf, sDB, 0, 44) + [csignal(swave, [signal(sFL, st2)])]
            if st == 9 and cb == 0: auxq += s1set
            if st * 8 + cb == TS1: k.ext(s1sig)
            if st * 8 + cb == lastv // 16 + 1: auxq += glue(att_setup())
            if st * 8 + cb == firstkv // 16 - 1: assert not auxq
            if st * 8 + cb == firstkv // 16 + 1: auxq += wset
            if st == 4 and cb == 6 and not XT: auxq += poll_check("p0", vm1, sFL, 0, 16)
            if st == 0 and cb < 7 and cb >= opt.get("ln0", 2):
                nper = -(-len(lnq) // (7 - cb)); g = 0
                for n_ in range(nper):
                    G.put((n_ * 15) // nper, lnq.pop(0))
            if st == 0 and cb == 7:
                assert not lnq
                for g_, x in zip((12, 13), xnrd): G.put(g_, x)
            if st == 1 and cb == 0: auxq += p0adr
            sched(G, auxq, 0, 14)
            sched(G, drainq, 1, 14)
            G.emit(k)
            if st == 3 and cb % 2 == 1:
                for rb in range(4): drainq += pack(PBf((cb // 2) * 4 + rb), T(cb - 1, rb), T(cb, rb))
            if st == 7:
                for t in range(2): drainq += pack(PBf(cb * 2 + t), T(cb, 2 * t), T(cb, 2 * t + 1))
            if st == 11 and cb % 2 == 1:
                for rb in range(4): drainq += drain_q(T(cb - 1, rb), T(cb, rb), Qf(rb // 2, rb % 2, cb // 2))
        k.ext(stamp(f"st{st}"))
    assert not auxq
    seen = {}
    for n, ln in enumerate(k.L):
        if ln.startswith("v_cvt_pk") or ln.startswith("ds_read_b64_tr"): seen[ln.split()[1].rstrip(",")] = n
        if "tag=kst" in ln or ("tag=vst" in ln and str(sKV) in ln):
            b = int(re.search(r"v\[(\d+):", ln).group(1))
            assert all(seen.pop(f"v{b+j}", None) is not None for j in range(4)), ln

    OFF = {"K0": 0, "K1": 8192, "V0": 16384, "V1": 24576}
    def rd(dst, f, src, va): return f"ds_read_b128 {dst.sub(4*f,4)}, {va} offset:{OFF[src] + f*1024}"
    def ph_pv(groups, par, first=False, lfirst=False):
        mf = []; lu = {}; fu = {}
        def lsum():
            for g in groups:
                if SMF:
                    mf.append(f"v_smfmac_f32_16x16x64_bf16 {LA.sub(4*g,4)}, {SPA}, {SB[par].sub(16*g,8)}, {vidx}"); continue
                for qb in range(2):
                    l = LA.sub((g * 2 + qb) * 4, 4)
                    mf.append(f"{MF} {l}, {ONES}, {St(par,g,qb,0)}, {'0' if first else l}")
        if lfirst: lsum()
        for db in range(8):
            for g in groups:
                for qb in range(2):
                    fu.setdefault(db, len(mf)); lu[db] = len(mf)
                    mf.append(f"{MF} {O(g,db,qb)}, {FV.sub(4*db,4)}, {St(par,g,qb,0)}, {'0' if first else O(g,db,qb)}")
        if not lfirst: lsum()
        return mf, fu, lu, FV
    def ph_qk(groups, par, cfun):
        mf = []; lu = {}; fu = {}
        for kb in range(2):
            for g in groups:
                for qb in range(2):
                    d = St(par, g, qb, kb)
                    for ks in range(4):
                        f = 4 * kb + ks
                        fu.setdefault(f, len(mf)); lu[f] = len(mf)
                        mf.append(f"{MF} {d}, {FK.sub(4*f,4)}, {Qf(g,qb,ks)}, {cfun(g,qb,kb) if ks == 0 else d}")
        return mf, fu, lu, FK
    cplain = lambda g, qb, kb: NM.sub((g * 2 + qb) * 4, 4)
    def maskops(which, mtri, mc, base, full=True, MK=MK):
        L = []; tiles = {}
        for kb in range(2):
            for qb in range(2):
                t = MK.sub((qb * 2 + kb) * 4, 4); tiles[(qb, kb)] = t
                if kb < qb and which == "a" and not full:
                    tiles[(qb, kb)] = None; continue
                for r in range(4):
                    if kb == qb: m = mtri[r]
                    elif kb > qb: m = mc if which == "a" else "none"
                    else: m = None if which == "a" else mc
                    if m is None: L.append(f"v_mov_b32 {t[r]}, {base(qb, r)}")
                    elif isinstance(m, str): L.append(f"v_mov_b32 {t[r]}, {vinf}")
                    else: L.append(f"v_cndmask_b32 {t[r]}, {vinf}, {base(qb, r)}, {m}")
        return L, tiles
    def waits_last(G):
        for g in range(G.n):
            w = [y for y in G.g[g] if y.startswith("s_waitcnt")]
            G.g[g] = [y for y in G.g[g] if not y.startswith("s_waitcnt")] + w
    def build(phases, va):
        mf = []; start = []
        for p in phases:
            start.append(len(mf)); mf += p[0]
        start.append(len(mf))
        G = Gaps(mf)
        for g, m in enumerate(mf):
            if m.startswith("v_smfmac"): G.put(g, "; (longer issue)")
        for pi, (m, fu, lu, regs, nxt, w) in enumerate(phases):
            if nxt:
                for f in range(8): G.put(start[pi] + lu[f], rd(regs, f, nxt, va))
            if w == "split":
                G.put(start[pi] + fu[0] - 1, "s_waitcnt lgkmcnt(4)"); G.put(start[pi] + fu[4] - 1, "s_waitcnt lgkmcnt(0)")
            elif w is not None: G.put(start[pi] - 1, f"s_waitcnt lgkmcnt({w})")
        return G, start
    def softmax(G, lo, hi, par, groups, pre=None):
        els = [(g, qb, kb, r) for kb in range(2) for g in groups for qb in range(2) for r in range(4)]
        n = len(els)
        free = [x for x in range(lo, hi) if G.cost(x) == 0]
        if len(free) >= n: pos = [free[(i * len(free)) // n] for i in range(n)]
        else:
            cand = sorted((G.cost(x) + 8 * rep, x) for x in range(lo, hi) for rep in range(2))
            pos = sorted(x for _, x in cand[:n])
        gcv = lo
        for (g, qb, kb, r), p in zip(els, pos):
            s = St(par, g, qb, kb)
            G.put(p, f"v_exp_f32 {s[r]}, {s[r]}")
        for (g, qb, kb, r), p in zip(els, pos):
            if r % 2 == 1:
                s = St(par, g, qb, kb); c = 2 * kb + r // 2
                lo_ = max(gcv, p + 1)
                gcv = G.add(f"v_cvt_pk_bf16_f32 {St(par,g,qb,0)[c]}, {s[r-1]}, {s[r]}", lo_, min(hi, lo_ + opt.get("cvl", 10)))
    rl = TMP.sub(0, 2)
    def recip(g):
        rd_ = [f"v_accvgpr_read_b32 {rl[qb]}, {LA[(g*2+qb)*4]}" for qb in range(2)]
        if SMF:
            rd_ = [f"v_accvgpr_read_b32 {TMP[(j%2)*2 + j//2]}, {LA[4*g+j]}" for j in range(4)] + [f"v_add_f32 {rl[qb]}, {rl[qb]}, {TMP[2+qb]}" for qb in range(2)]
        return rd_ + [
            f"v_add_f32 {t1}, {rl[0]}, {rl[1]}", f"v_cmp_nlt_f32 vcc, {t1}, {vthr}", f"v_rcp_f32 {rl[0]}, {rl[0]}", f"v_rcp_f32 {rl[1]}, {rl[1]}"]
    def pair(pvA, qkA, smA, pvB, qkB, smB, dma=True, mask=None, loop=None, endwait=8, extra=(), prep=False, wpre=(),
             first=False, static=None, lastk=False, fin=None, wmix=(), head=()):
        va = static[0] if static else vra
        ph = []; pm = []
        def cf(which):
            if mask is None: return cplain
            L, tiles = maskops(which, mA if which == "a" else mB, mC, lambda qb, r: NM[(mask * 2 + qb) * 4 + r], full=False,
                               MK=SB[1].sub(0, 16) if mask == 1 and which == "b" else MK)
            if mask == 0: pm.append((len(ph) - 1, L))
            return lambda g, qb, kb: (tiles[(qb, kb)] or cplain(g, qb, kb)) if g == mask else cplain(g, qb, kb)
        ph.append(ph_pv(pvA, 0, first) + ("V0", None))
        if qkA: c = cf("a"); ph.append(ph_qk(qkA, 0, c) + ("K0", 8))
        nb = len(ph)
        if qkB:
            ph.append(ph_pv(pvB, 1) + ("V1", 8))
            c = cf("b"); ph.append(ph_qk(qkB, 1, c) + (None if lastk else "K1", 8))
        else: ph.append(ph_pv(pvB, 1, lfirst=True) + (None, "split"))
        G, start = build(ph, va)
        n = G.n
        packed = static and opt.get("pack", 1)
        if packed:
            for pi in range(4):
                rds = [(g, x) for g in range(start[pi], start[pi + 1]) for x in G.g[g] if x.startswith("ds_read")]
                for g, x in rds: G.g[g].remove(x)
                for f, (g, x) in enumerate(rds): G.put(rds[f | 1][0], x)
            G.g[start[2] - 1].remove("s_waitcnt lgkmcnt(8)"); G.put(start[2] - 2, "s_waitcnt lgkmcnt(6)")
            G.put(n - 2, f"s_waitcnt vmcnt({endwait}) lgkmcnt(6)"); endwait = None
        G.put(0, "s_barrier")
        if not static: G.put(0, f"v_xor_b32 {vra}, m0, {vrc}")
        for x in head: G.put(1, x); G.put(1, "; (several)")
        single = len(pvA) == 1
        def putmem(x, g, own):
            if own:
                while g < n - 2 and G.cost(g) != 0: g += 1
            else:
                while g < n - 2 and not (G.cost(g) == 4 and G.g[g][0].startswith("ds_read")): g += 1
            G.put(g, x); return g
        later = []
        d0 = 0
        d1 = n
        if prep == 1:
            g_ = 0; c = 0; hl_ = [f"s_mov_b32 {st0}, m0"]
            for x in ppd:
                if ismem(x):
                    g_ = putmem(x, max(g_ + 2, 2 + c * opt.get("pps", 9)), True); c += 1
                    for y in hl_: G.put(g_ - 1, y)
                    hl_ = []
                else: hl_.append(x)
            G.put(g_ + 1, f"s_mov_b32 m0, {st0}")
            d0 = g_ + 4
        if prep == 2:
            G.put(1, "s_waitcnt vmcnt(8)"); g = 2
            for x_ in range(8):
                if g % 4 == 3: g += 1
                for hf in range(2): G.put(g, f"ds_read_b64_tr_b16 {PA.sub(4*x_+2*hf,2)}, {vcr[x_%2]} offset:{hf*1024}")
                if x_ < 6: G.put(g, f"v_xor_b32 {vcr[x_%2]}, {64*((x_//2) ^ (x_//2+1))}, {vcr[x_%2]}")
                g += 1
            g_ = 0; c = 0
            G.put(20, "s_waitcnt lgkmcnt(2)")
            for x in pst:
                if ismem(x): g_ = putmem(x, 21 + c * opt.get("pss", 9), True); c += 1
                else: G.put(g_ + 1 if c else 2, x)
            d0 = g_ + 2
        mem = list(wpre); g_ = 0; c = 0
        for x in mem:
            if ismem(x): g_ = 1 + 4 * c; G.put(g_, x); c += 1; d0 = 1 if packed else d0
            else: G.put(g_ + 2, x)
        if dma:
            D = [f"buffer_load_dwordx4 {vl16 if p < 4 else vl16b}, {sKV}, {skv} offen offset:{(p%4)*1024} {SC} lds" for p in range(8)]
            pos = []; lo = 2 if static else 1
            for p in range(8):
                g = putmem(D[p], max(lo, d0 + 1 + (p * (d1 - d0 - 6)) // 8), not single or packed)
                pos.append(g); lo = g + (2 if p == 3 else 1)
            nm_ = sum(ismem(x) for x in wmix); c = 0; g_ = 1
            for x in wmix:
                if ismem(x): g_ = putmem(x, max(g_ + 2, 4 + (c * (n - 12)) // nm_), True); c += 1; assert g_ < n - 2
                else: G.put(g_ + 1, x)
            if static:
                G.put(0, f"s_mov_b32 m0, {static[1]}")
                later = [(f"s_add_u32 m0, {static[1]}, 4096", pos[3], pos[4] - 1), (f"s_add_u32 {skv}, {skv}, 16384", pos[7], n - 1)]
            else:
                later = [(f"s_add_u32 m0, m0, 4096", pos[3], pos[4] - 1),
                         (f"s_add_u32 {skv}, {skv}, 16384", pos[7], d1 - 1), (f"s_add_u32 m0, m0, {32768-4096}", pos[7], d1 - 1)]
        elif fin is None or qkA: later = [(f"s_add_u32 m0, m0, 32768", 1, n - 1)]
        if smA: softmax(G, 1, start[nb] - 2, 1, smA)
        if smB: softmax(G, start[nb], n - 2, 0, smB)
        for (pi, L) in pm: G.chain(L, start[pi] + 1, start[pi + 1] - 3)
        if fin is not None: G.chain(recip(fin), (start[nb + 1] if qkB else start[nb] + 2) + 4, n - 1)
        gl = 0
        for x, lo, hi in later: gl = G.add(x, lo, hi)
        if later and not static: gl = G.add("s_and_b32 m0, m0, 0x1ffff", gl, d1 - 1)
        if loop: G.add(f"s_sub_u32 {scnt}, {scnt}, 1", gl, n - 2)
        waits_last(G)
        k.ext(extra); G.emit(k)
        if endwait is not None: k(f"s_waitcnt vmcnt({endwait}) lgkmcnt({0 if lastk else 8})")
        if loop: k(f"s_cbranch_scc0 {loop}")
    def epilogue(kk, g, lsrc=None, fill=()):
        fill = list(fill); per = -(-len(fill) // 7)
        if lsrc is None:
            kk(f"s_cmp_lg_u64 vcc, 0"); kk(f"s_cselect_b32 {st0}, {1 << g}, 0"); kk(f"s_or_b32 {sflag}, {sflag}, {st0}")
        else:
            for qb in range(2): kk(f"v_rcp_f32 {rl[qb]}, {lsrc[qb]}")
        n = 0
        for s in range(4):
            kk(f"s_add_u32 {ssoff}, {sctx[g]}, {s*4096}")
            for qb in range(2):
                p = TMP.sub(4 + 4 * (n % 3), 4); n += 1
                sel = "op_sel_hi:[1,0]" if qb == 0 else "op_sel:[0,1]"
                for db in (2 * s, 2 * s + 1):
                    for r in (0, 2): kk(f"v_pk_mul_f32 {O(g,db,qb).sub(r,2)}, {O(g,db,qb).sub(r,2)}, {rl} {sel}")
                kk.ext(pack(p, O(g, 2 * s, qb), O(g, 2 * s + 1, qb)))
                kk(f"buffer_store_dwordx4 {p}, {vl16}, {sCT}, {ssoff} offen offset:{qb*1024} {SC} ; tag=cst")
                for _ in range(min(per, len(fill))): kk(fill.pop(0))
    k("WAITVM kv0"); k("s_barrier")
    for f in range(8): k(rd(FK, f, "V0", vl16))
    k.ext(drainq); drainq = []
    def prologue(masked):
        mx = [TMP[j] for j in range(4)]; mt = [TMP[4 + j] for j in range(4)]
        nmb = lambda qb, r: NM[qb * 4 + r]
        La, ta = maskops("a", mA, mC, nmb, full=False); Lb_, tb = maskops("b", mB, mC, nmb)
        def c0(g, qb, kb):
            if kb == 0: return MK.sub(0, 4) if masked and g == 0 and qb == 0 else "0"
            return ta[(qb, kb)] if masked and g == 0 else cplain(g, qb, kb)
        c1 = lambda g, qb, kb: tb[(qb, kb)] if masked and g == 0 else cplain(g, qb, kb)
        G, start = build([ph_qk([0, 1], 0, c0) + ("K0", None), ph_qk([0, 1], 1, c1) + ("K1", "split")], vl16)
        G.g[47] = [y.replace("lgkmcnt(0)", "lgkmcnt(4)") for y in G.g[47]]
        for f in range(8): G.put(f, rd(FV, f, "V1", vl16))
        G.put(15, "s_waitcnt lgkmcnt(12)")
        d2 = kvdma(2, "kv2"); g = 0
        for x in d2:
            if ismem(x): g += 1; G.put(g, x); g += 3
            else: G.put(g, x)
        for j in range(4):
            s = St(0, j // 2, j % 2, 0); g = 4 * j + 6
            G.put(g, f"v_max3_f32 {mx[j]}, {s[0]}, {s[1]}, {s[2]}"); G.put(g, f"v_max_f32 {mx[j]}, {mx[j]}, {s[3]}")
            G.put(g + 1, f"v_mov_b32 {mt[j]}, {mx[j]}")
            G.put(g + 3, f"v_permlane16_swap_b32 {mx[j]}, {mt[j]}"); G.put(g + 3, f"v_max_f32 {mx[j]}, {mx[j]}, {mt[j]}")
            G.put(g + 4, f"v_mov_b32 {mt[j]}, {mx[j]}")
            G.put(g + 6, f"v_permlane32_swap_b32 {mx[j]}, {mt[j]}"); G.put(g + 6, f"v_max_f32 {mx[j]}, {mx[j]}, {mt[j]}")
            for r in range(4): G.put(g + 7 + r // 2, f"v_sub_f32 {NM[4*j+r]}, 0, {mx[j]}")
            if masked and j < 2:
                for x in La[4 + 4 * j:8 + 4 * j]: G.put(g + 8, x)
        G.chain([f"v_sub_f32 {St(0,j//2,j%2,0)[r]}, {St(0,j//2,j%2,0)[r]}, {mx[j]}" for j in range(4) for r in range(4)], 25, 31)
        if masked: G.chain(Lb_, 26, 30)
        softmax(G, 32, 63, 0, [0, 1])
        waits_last(G)
        k("s_waitcnt lgkmcnt(4)")
        G.emit(k)
        k(f"s_add_u32 m0, {sldsw}, {3*32768}")
        k("s_waitcnt vmcnt(8) lgkmcnt(8)")
    k("VMRESET")
    D = [0, 1]
    pa = lambda c: csignal(c, [poll_issue("pa", vm1, sFL, 0, 128)])
    pax = lambda: [f"s_xor_b32 {st0}, {si}, 6", pa(st0), f"s_mov_b32 {mT[1][1]}, m0"]
    wls = lambda a_, b_: sum((wl(s_) for s_ in range(a_, b_)), [])
    U = Kern("x")
    vsa = vtrb; ssa = sdb
    U(f"s_lshr_b32 {ssa}, {srg[0]}, 1"); U(f"s_lshl_b32 {ssa}, {ssa}, 2"); U(f"s_lshr_b32 {st0}, {sh}, 3"); U(f"s_add_u32 {ssa}, {ssa}, {st0}"); U(f"s_lshl_b32 {ssa}, {ssa}, 9")
    U(f"v_and_b32 {t0}, 60, {vlane}"); U(f"v_lshlrev_b32 {t0}, 25, {t0}"); U(f"v_lshl_or_b32 {vsa}, {vlane}, 7, {t0}")
    sigA = lambda: csignal(snS, [signal(sFL, ssa, vsa)], [f"s_mov_b32 {snS}, 1"])
    U(f"s_bfe_u32 {st2}, s2, 0x20001"); U(f"s_lshl_b32 {st2}, {st2}, 2"); U(f"s_and_b32 {st1}, {si}, 3"); U(f"s_add_u32 {st2}, {st2}, {st1}")
    U(f"s_and_b32 {st1}, s2, 0xe0"); U(f"s_add_u32 {st2}, {st2}, {st1}"); U(f"s_and_b32 {st1}, s2, 1"); U(f"s_lshl_b32 {st1}, {st1}, 4"); U(f"s_add_u32 {st2}, {st2}, {st1}")
    U(f"s_lshl_b32 {st2}, {st2}, 7"); U(f"s_lshr_b32 {st1}, {swave}, 1"); U(f"s_lshl_b32 {st1}, {st1}, 30"); U(f"s_add_u32 {st2}, {st2}, {st1}")
    SM0 = [mT[0][0], mT[0][1], mT[1][0], mT[1][1]]; VA = [SB[0][j] for j in range(4)]
    for j in range(4):
        if j < 3: U(f"s_add_u32 {SM0[j]}, {SM0[j-1]}, 32768"); U(f"s_and_b32 {SM0[j]}, {SM0[j]}, 0x1ffff")
    tset = glue(U.L)
    k(f"s_cmp_eq_u32 {snS}, 1"); k(f"s_cbranch_scc1 {Lb('P1')}")
    prologue(False)
    k.ext(stamp("pro"))
    LAY = opt.get("lay", 1)
    def path_p1():
        target("P1", False)
        prologue(True)
        pair(D, [1], D, D, [1], [1], endwait=None, extra=pax(), first=True, fin=0)
        k(f"s_branch {Lb('TE')}")
    def path_dm0(fall):
        k.label(Lb("DM0"))
        pair(D, D, D, D, D, D, mask=0, first=True)
        if not fall: k(f"s_branch {Lb('T')}")
    def path_dmp():
        target("DMP", False)
        pair(D, D, D, D, D, D, mask=0, prep=2)
        k(signal(sFL, sfl1) + " offset:128")
        k(f"s_branch {Lb('T')}")
    def path_d(fall):
        target("D1", fall)
        pair(D, D, D, D, D, D, prep=1, first=True, endwait=16)
        k(f"s_cmp_eq_u32 {snS}, 3"); k(f"s_cbranch_scc1 {Lb('DMP')}")
        if opt.get("cyc"): k.ext(stamp("d1"))
        k(f"s_sub_u32 {snS}, {snS}, 4"); k(f"s_lshr_b32 {scnt}, {snS}, {1 if opt.get('stag', 1) else 8}"); k(f"s_sub_u32 {snS}, {snS}, {scnt}")
        k(f"s_sub_u32 {scnt}, {scnt}, 1"); k(f"s_cbranch_scc1 {Lb('P2')}")
        k(".p2align 6"); k.label(Lb("D"))
        pair(D, D, D, D, D, D, loop=Lb("D"), head=[f"s_or_b32 {st0}, {scnt}, {s7}\n" + pa(st0)])
        k(f"s_cmp_eq_u32 {snS}, -1"); k(f"s_cbranch_scc1 {Lb('DM')}")
        k.label(Lb("P2"))
        pair(D, D, D, D, D, D, prep=2)
        k(signal(sFL, sfl1) + " offset:128")
        k(f"s_xor_b32 {s7}, {si}, 7"); k(f"s_sub_u32 {scnt}, {snS}, 1"); k(f"s_mov_b32 {snS}, -1"); k(f"s_cbranch_scc0 {Lb('D')}")
        target("DM", True)
        if opt.get("cyc"): k.ext(stamp("dm"))
        k(f"s_cmp_eq_u32 {si}, 7"); k(f"s_cbranch_scc1 {Lb('DM7')}")
        pair(D, D, D, D, D, D, mask=0)
        if not fall: k(f"s_branch {Lb('T')}")
    def path_dm7():
        target("DM7", False)
        k.ext(chk7)
        pair(D, D, D, D, D, D, mask=0, wmix=wls(0, 6), endwait=32)
        k(f"s_branch {Lb('T')}")
    chk7 = poll_check("pa7", vm1, sFL, 0, 28, 128)[1:]
    main = k.L; k.L = []
    path_p1(); path_dmp(); path_dm7()
    if LAY: path_d(False)
    else: path_dm0(False)
    tail.L += k.L; k.L = main
    if LAY:
        k(f"s_cmp_lg_u32 {snS}, 2"); k(f"s_cbranch_scc1 {Lb('D1')}"); path_dm0(True)
    else:
        k(f"s_cmp_eq_u32 {snS}, 2"); k(f"s_cbranch_scc1 {Lb('DM0')}"); path_d(True)
    target("T", True)
    if opt.get("cyc"): k.ext(stamp("t"))
    pair(D, [1], D, D, [1], [1], endwait=None, extra=pax(), fin=0)
    target("TE", True)
    nml = lambda qb, r: NM[(2 + qb) * 4 + r]
    epilogue(k, 0, fill=tset + [f"s_mov_b32 {snS}, {sflag}"] + [f"v_xor_b32 {VA[j]}, {SM0[j]}, {vrc}" for j in range(4)]
             + maskops("a", mA, mC, nml, full=False)[0] + maskops("b", mB, mC, nml, MK=SB[1].sub(0, 16))[0])
    k("s_waitcnt vmcnt(16) lgkmcnt(8)")
    k.ext(stamp("sdone"))
    k(f"s_cmp_eq_u32 {si}, 7"); k(f"s_cbranch_scc1 {Lb('SM')}")
    k(f"s_sub_u32 {scnt}, 5, {si}"); k(f"s_cbranch_scc1 {Lb('SL')}")
    k(".p2align 6"); k.label(Lb("S"))
    for j in range(4):
        pair([1], [1], [1], [1], [1], [1], static=(VA[j], SM0[j]), loop=Lb("S") if j == 3 else None, wpre=[pa(scnt)] if j == 2 else [sigA()] if j == 1 else [])
    k.label(Lb("SL"))
    k.ext(poll_check("pa", vm1, sFL, 0, 28, 128)[1:])
    we = wls(0, 6)
    for j in range(4):
        L = []
        while sum(ismem(x) for x in L) < 6 or (we and not ismem(we[0])): L.append(we.pop(0))
        pair([1], [1], [1], [1], [1], [1], static=(VA[j], SM0[j]), wpre=[sigA()] if j == 1 else [], wmix=L, endwait=14)
    k(f"s_mov_b32 m0, {SM0[0]}")
    k.label(Lb("SM"))
    if opt.get("cyc"): k.ext(stamp("sm"))
    k("VMRESET")
    NW1 = opt.get("nw1", 10); NW2 = 10
    pair([1], [1], [1], [1], [1], [1], dma=False, mask=1, endwait=4 * (NW1 - 6), wpre=wls(6, NW1), lastk=True)
    k(sigA())
    k(poll_issue("p2a0", vsig, sFL, st2))
    pair([1], None, [1], [1], None, None, dma=False, endwait=None, wpre=wls(NW1, NW2), fin=1)
    k.ext(stamp("ldone"))
    S.reset(mark0)
    sng = S(); smd = S(); sme = S(); skq = S(); scg = S(); soa = S(); sflD = S(); sflE = S(); sclD = S(); sclE = S(); ssg = S()
    sexp = S(); sw0 = S(); so1 = S(); shf = S(); sxo2 = S(); sstt = S(); spl = S(); shl = S(); ssl = S(); shm = S(); sfb = S(); sfr = S()
    psk = S(3, 1)
    pX = S(2); pO = S(4); pB1 = S(2)
    sAct = S(4); sXO = S(4); sHF = S(4); sST = S(4); sW1 = S(4); sB = S(4); sHM = S(4); sPT = S(4)
    mD = [pX, pB1, sKV[0:2], sKV[2:4]]
    vb = X16.sub(0, 2); vw2 = X16.sub(2, 2); vw = X16.sub(4, 3); vrd = X16[7]; vrow = X16[8]; vg16 = X16[9]; RM = X16.sub(10, 2); ON = X16.sub(12, 4)
    DF = a(96, 48); PL = a(144, 12); XRr = [a(156, 4), v(204, 4)]; PS = v(160, 12); DA = v(172, 12); EA = v(184, 8); B1 = v(192, 12)
    STT = v(208, 8); HP = v(216, 4); SEL = v(220, 6); KC = v(228, 4); C1 = v(232, 24)
    BF = v(104, 24); EACC = v(136, 24); SL = v(160, 8); G0 = v(172, 8); PK = [v(192, 4), v(196, 4)]
    vbc = vsig
    vb4 = vm0; vb4s = vm2; vl4 = vtrb; vso = vtr; vp2 = t2
    F2A, F3, F4, FP, F2B = 0, (4, 32), (8, 36), (20, 40), 28
    def wpoll(tag, sf, imm, d=vpoll): return f"buffer_load_dword {d}, {vm1}, {sFL}, {sf} offen offset:{imm} {SC} ; tag={tag}"
    def wcheck(tag, n, sf, imm, d=vpoll, va=None):
        return ([f"s_and_b32 {sexp}, {sw0}, {n}"] if va is None else [f"s_mov_b32 {sexp}, {n}"]) + [f"s_mov_b32 {sspin}, {SPIN}"] + ([f"WAITVM {tag}"] if va is None else []) + [
                Lb("spl" + tag) + ":", f"v_readfirstlane_b32 {ssoff}, {d}", "s_nop 0",
                f"s_cmp_ge_u32 {ssoff}, {sexp}", f"s_cbranch_scc1 {Lb('back'+tag)}",
                f"NOCOUNT buffer_load_dword {d}, {va or vm1}, {sFL}, {sf} offen offset:{imm} {SC}",
                f"s_sub_u32 {sspin}, {sspin}, 1", "NOCOUNT s_waitcnt vmcnt(0)", f"s_cbranch_scc0 {Lb('spl'+tag)}",
                Lb("back" + tag) + ":"]
    U = Kern("x")
    U(f"s_load_dwordx2 {pX}, s[0:1], 0"); U(f"s_load_dwordx4 {pO}, s[0:1], 80"); U(f"s_load_dwordx2 {pB1}, s[0:1], 64")
    U(f"s_bfe_u32 {skq}, s2, 0x20001"); U(f"s_lshr_b32 {smd}, s2, 5"); U(f"s_lshl_b32 {smd}, {smd}, 1"); U(f"s_and_b32 {st0}, s2, 1"); U(f"s_add_u32 {smd}, {smd}, {st0}")
    U(f"s_lshl_b32 {sclD}, {smd}, 11"); U(f"s_and_b32 {scg}, {si}, 3"); U(f"s_lshl_b32 {ssg}, {scg}, 7"); U(f"s_add_u32 {ssg}, {ssg}, {sclD}")
    U(f"s_lshl_b32 {sflD}, {skq}, 9"); U(f"s_add_u32 {sflD}, {sflD}, {ssg}")
    srd(U, sAct, pWS, 16 * MB, WS_CTX)
    U(f"s_lshl_b32 {soa}, {smd}, 19"); U(f"s_lshl_b32 {st0}, {skq}, 17"); U(f"s_add_u32 {soa}, {soa}, {st0}"); U(f"s_add_u32 {soa}, {soa}, {sldsw}")
    U(f"s_and_b32 {st0}, {si}, {DR}"); U(f"s_lshl_b32 {st0}, {st0}, 15"); U(f"s_add_u32 {soa}, {soa}, {st0}")
    for r in range(4):
        U(f"s_xor_b32 {st0}, {skq}, {r}"); U(f"s_lshl_b32 {st0}, {st0}, 10"); U(f"v_add_u32 {DA[3*r]}, {st0}, {vl16}")
        U(f"v_add_u32 {DA[3*r+1]}, 65536, {DA[3*r]}"); U(f"v_add_u32 {DA[3*r+2]}, 131072, {DA[3*r]}")
    dset = glue(U.L)
    def a0dma():
        k(f"s_add_u32 {st1}, {soa}, {sldsw}"); k(f"s_lshl_b32 {st2}, {sldsw}, 1")
        for p in range(16):
            if p % 4 == 0: k(f"s_add_u32 m0, {st2}, {131072 + (p//4)*4096}")
            if p == 8: k(f"s_add_u32 {st1}, {st1}, 8192")
            elif p % 4 == 0: k("s_nop 0")
            k(f"NOCOUNT buffer_load_dwordx4 {vl16 if p % 8 < 4 else vl16b}, {sAct}, {st1} offen offset:{(p%4)*1024} {SC} lds")
    k("WAITVM p2a0")
    k.ext(dset[:3])
    sa0 = sw0
    k(f"s_lshr_b32 {sa0}, {swave}, 1")
    if opt.get("ea0", 0):
        k(f"s_cmp_ge_u32 {swave}, 2"); k(f"s_cbranch_scc1 {Lb('nb')}")
        k(f"v_readfirstlane_b32 {ssoff}, {vpoll}"); k.ext([x for x in dset[3:] if x.startswith("s_")])
        k(f"s_cmp_lt_u32 {ssoff}, 16"); k(f"s_cbranch_scc1 {Lb('nb0')}")
        a0dma(); k(f"s_mov_b32 {sa0}, 1")
        k.label(Lb("nb0")); k("s_barrier"); k.label(Lb("nb"))
        epilogue(k, 1, fill=dset[3:])
    else:
        epilogue(k, 1, fill=dset[3:])
        k(f"s_cmp_ge_u32 {swave}, 2"); k(f"s_cbranch_scc1 {Lb('nb')}"); k("s_barrier"); k.label(Lb("nb"))
    k(f"s_cmp_lg_u32 {sflag}, 0"); k(f"s_cbranch_scc1 {Lb('fallback')}")
    k.label(Lb("fbret"))
    f_ = tail
    f_.label(Lb("fallback"))
    f_("s_waitcnt vmcnt(0) lgkmcnt(0)")
    f_(f"v_and_b32 {t0}, 15, {vlane}"); f_(f"v_lshrrev_b32 {t1}, 4, {vlane}"); f_(f"v_lshlrev_b32 {t1}, 2, {t1}"); f_(f"v_sub_u32 {t0}, {t0}, {t1}")
    for r in range(4): f_(f"v_cmp_le_i32 {mA[r]}, {r}, {t0}")
    for g in range(2):
        F2 = ACC.sub(64 * (1 - g), 64)
        f_(f"s_and_b32 {st0}, {sflag}, {1 << g}"); f_(f"s_cbranch_scc0 {Lb(f'fbdone{g}')}")
        M = NM.sub(0, 2); AL = NM.sub(2, 2); LL = [NM.sub(4, 4), NM.sub(8, 4)]; MN = NM.sub(12, 2); MT = NM.sub(14, 2)
        for j in range(64): f_(f"v_mov_b32 {ACC[g*64+j]}, 0")
        for qb in range(2):
            f_(f"v_mov_b32 {M[qb]}, {vinf}")
            for r in range(4): f_(f"v_mov_b32 {LL[qb][r]}, 0")
        f_(f"v_mov_b32 {t2}, 0"); f_(f"s_mov_b32 {scnt}, 0")
        f_.label(Lb(f"fb{g}"))
        f_(f"s_lshl_b32 {st0}, {scnt}, 13"); f_(f"s_add_u32 {st1}, {st0}, {512*1024}")
        for f in range(16):
            f_(f"buffer_load_dwordx4 {F2.sub(4*f,4)}, {vl16 if f % 8 < 4 else vl16b}, {sKV}, {st0 if f < 8 else st1} offen offset:{(f%4)*1024} {SC}")
        f_(f"s_cmp_eq_u32 {scnt}, {srg[g]}"); f_(f"s_cselect_b64 {mX}, 0, -1")
        for r in range(4): f_(f"s_or_b64 {mT[r]}, {mA[r]}, {mX}")
        L, tiles = maskops("a", mT, mX, lambda qb, r: t2)
        f_.ext(L)
        f_("s_waitcnt vmcnt(0)")
        for kb in range(2):
            for qb in range(2):
                d = Sq(0, 0, qb).sub(4 * kb, 4)
                for ks in range(4):
                    f_(f"{MF} {d}, {F2.sub(4*(4*kb+ks),4)}, {Qf(g,qb,ks)}, {tiles[(qb,kb)] if ks == 0 else d}")
        f_("s_nop 7")
        for qb in range(2):
            s = Sq(0, 0, qb)
            f_(f"v_max3_f32 {MN[qb]}, {s[0]}, {s[1]}, {s[2]}"); f_(f"v_max3_f32 {MN[qb]}, {MN[qb]}, {s[3]}, {s[4]}")
            f_(f"v_max3_f32 {MN[qb]}, {MN[qb]}, {s[5]}, {s[6]}"); f_(f"v_max3_f32 {MN[qb]}, {MN[qb]}, {s[7]}, {M[qb]}")
        allreduce(f_, [MN[0], MN[1]], [MT[0], MT[1]], op="v_max_f32", cross_only=True)
        for qb in range(2):
            s = Sq(0, 0, qb)
            f_(f"v_sub_f32 {AL[qb]}, {M[qb]}, {MN[qb]}"); f_(f"v_exp_f32 {AL[qb]}, {AL[qb]}"); f_(f"v_mov_b32 {M[qb]}, {MN[qb]}")
            for e in range(8): f_(f"v_sub_f32 {s[e]}, {s[e]}, {MN[qb]}")
            for e in range(8): f_(f"v_exp_f32 {s[e]}, {s[e]}")
            for db in range(8):
                for r in range(4): f_(f"v_mul_f32 {O(g,db,qb)[r]}, {O(g,db,qb)[r]}, {AL[qb]}")
            for r in range(4): f_(f"v_mul_f32 {LL[qb][r]}, {LL[qb][r]}, {AL[qb]}")
            for c in range(4): f_(f"v_cvt_pk_bf16_f32 {s[c]}, {s[2*c]}, {s[2*c+1]}")
        f_("s_nop 1")
        for qb in range(2):
            for db in range(8):
                f_(f"{MF} {O(g,db,qb)}, {F2.sub(4*(8+db),4)}, {Sq(0,0,qb).sub(0,4)}, {O(g,db,qb)}")
            f_(f"{MF} {LL[qb]}, {ONES}, {Sq(0,0,qb).sub(0,4)}, {LL[qb]}")
        f_("s_nop 7")
        f_(f"s_add_u32 {scnt}, {scnt}, 1"); f_(f"s_cmp_le_u32 {scnt}, {srg[g]}"); f_(f"s_cbranch_scc1 {Lb(f'fb{g}')}")
        epilogue(f_, g, [LL[0][0], LL[1][0]])
        f_.label(Lb(f"fbdone{g}"))
    f_("s_waitcnt vmcnt(0)")
    f_(f"s_xor_b32 {sow}, {sow}, {(10 ^ 6) * 4096}"); f_.ext(wls(6, 10))
    f_(f"s_andn2_b32 {snS}, 1, {sflag}")
    f_(sigA().replace("NOCOUNT ", "")); f_("s_waitcnt vmcnt(0)"); f_.ext(dset); f_(f"s_branch {Lb('fbret')}")

    k(f"s_cmp_lg_u32 {sa0}, 0"); k(f"s_cbranch_scc1 {Lb('na0')}")
    k.ext(wcheck("p2a", 16, sflD, F2A, va=vsig))
    a0dma()
    k.label(Lb("na0"))
    k(f"s_xor_b32 {soa}, {soa}, 32768")
    k(f"s_cmp_ge_u32 {swave}, 2"); k(f"s_cbranch_scc1 {Lb('na1')}"); k("NOCOUNT s_waitcnt vmcnt(0)"); k.label(Lb("na1"))
    k("s_waitcnt lgkmcnt(0)"); k("s_barrier")
    k.ext(stamp("dgo"))
    DSL = [4, 0, 1, 2, 3, 4, 0, 1]
    def sdma(slot, sd, so, tag, inc=32768):
        L = []
        for p in range(8):
            if p % 4 == 0: L.append(f"s_add_u32 m0, {sldsw}, {slot*32768 + (p//4)*4096}")
            L.append(f"buffer_load_dwordx4 {vl16 if p < 4 else vl16b}, {sd}, {so} offen offset:{(p%4)*1024} {SC} lds ; tag={tag}")
        return L + [f"s_add_u32 {so}, {so}, {inc}" if so is so1 else f"s_xor_b32 {so}, {so}, {inc}"]
    cd = lambda st: sdma(DSL[st], sAct, soa, f"a{st}", ((st ^ (st + 1)) & 3) * 32768 + (8 * MB if st == 3 else 0))
    w1d = lambda n: sdma(2 + n, sW1, so1, f"w1{n}")
    TY = lambda ch, rb, cb: v(96 + 32 * ch + (rb * 2 + cb) * 4, 4)
    dun = [(st, rb, kh) for st in range(8) for rb in ((1, 2, 3, 0) if st % 4 == 3 else range(4)) for kh in range(2)]
    DFu = lambda u, ks: DF.sub(16 * (u % 3) + 4 * ks, 4)
    def dreads(u):
        st, rb, kh = dun[u]; o = DSL[st] * 32768
        return [f"ds_read_b128 {DFu(u,ks)}, {DA[3*rb + o // 65536]} offset:{o % 65536 + kh*16384 + ks*4096}" for ks in range(4)]
    def take_mem(src):
        L = []
        while src and not ismem(src[0]): L.append(src.pop(0))
        if src: L.append(src.pop(0))
        return L
    k.ext(dreads(0)); k.ext(dreads(1))
    U = Kern("x")
    U(f"s_cmp_eq_u32 {swave}, 0"); U(f"s_cselect_b32 {sw0}, -1, 0"); U(f"s_cselect_b32 {st0}, 0, 0x80000000")
    U(f"v_or_b32 {vm1}, {st0}, {vsig}")
    U(f"v_and_b32 {t0}, 15, {vlane}"); U(f"v_lshl_or_b32 {t0}, {t0}, 7, {st0}")
    U(f"v_and_b32 {t1}, 48, {vlane}"); U(f"v_lshl_or_b32 {vbc}, {t1}, 25, {t0}")
    U(f"v_and_b32 {t1}, 60, {vlane}"); U(f"v_lshl_or_b32 {vb4}, {t1}, 25, {t0}")
    U(f"v_and_b32 {t0}, 3, {vlane}"); U(f"v_lshl_or_b32 {t0}, {t0}, 9, {st0}"); U(f"v_lshl_or_b32 {vb4s}, {t1}, 25, {t0}")
    U(f"s_lshr_b32 {st0}, {sh}, 3"); U(f"s_lshl_b32 {st0}, {st0}, 9"); U(f"s_lshl_b32 {sdb}, {si}, 12"); U(f"s_sub_u32 {sdb}, {14*2048}, {sdb}"); U(f"s_add_u32 {sdb}, {sdb}, {st0}")
    nU0 = len(glue(U.L))
    if opt.get("emap", 0) == 0:
        U(f"s_bfe_u32 {sng}, s2, 0x40003")
        U(f"s_lshr_b32 {st0}, s2, 7"); U(f"s_lshl_b32 {st0}, {st0}, 3"); U(f"s_and_b32 {sme}, s2, 7"); U(f"s_add_u32 {sme}, {sme}, {st0}")
    else:
        U(f"s_bfe_u32 {sng}, s2, 0x10005"); U(f"s_lshl_b32 {sng}, {sng}, 1"); U(f"s_and_b32 {st0}, s2, 1"); U(f"s_add_u32 {sng}, {sng}, {st0}")
        U(f"s_lshl_b32 {sng}, {sng}, 2"); U(f"s_and_b32 {st0}, {si}, 3"); U(f"s_add_u32 {sng}, {sng}, {st0}")
        U(f"s_lshl_b32 {sme}, {skq}, 2"); U(f"s_lshr_b32 {st0}, s2, 6"); U(f"s_add_u32 {sme}, {sme}, {st0}")
    U(f"s_lshl_b32 {sclE}, {sme}, 11"); U(f"s_lshl_b32 {sflE}, {sng}, 7"); U(f"s_add_u32 {sflE}, {sflE}, {sclE}")
    U(f"s_lshl_b32 {st0}, {smd}, 2"); U(f"s_add_u32 {st0}, {st0}, {scg}"); U(f"s_mul_i32 {st0}, {st0}, {2*49152}"); U(f"s_add_u32 {st0}, {st0}, {WS_PART}")
    srd(U, sPT, pWS, 2 * 49152, st0)
    U(f"s_lshl_b32 {st2}, {swave}, 10")
    for r in range(1, 4):
        U(f"s_xor_b32 {st0}, {skq}, {r}"); U(f"s_mul_i32 {st0}, {st0}, 12288"); U(f"s_add_u32 {st0}, {st0}, {st2}"); U(f"s_add_u32 {psk[r-1]}, {st0}, {(r-1)*4096}")
    U(f"s_mul_i32 {spl}, {skq}, 12288"); U(f"s_add_u32 {spl}, {spl}, {st2}")
    U(f"s_lshl_b32 {scg}, {scg}, 2"); U(f"s_add_u32 {scg}, {scg}, {swave}")
    U(f"s_lshl_b32 {st2}, {smd}, 2"); U(f"s_add_u32 {st2}, {st2}, {skq}")
    U(f"s_lshl_b32 {shf}, {st2}, 14"); U(f"s_lshl_b32 {st0}, {scg}, 6"); U(f"s_add_u32 {sxo2}, {shf}, {st0}")
    U(f"s_lshl_b32 {st0}, {scg}, 10"); U(f"s_add_u32 {shf}, {shf}, {st0}")
    U(f"s_lshl_b32 {sstt}, {st2}, 11"); U(f"s_lshl_b32 {st0}, {scg}, 7"); U(f"s_add_u32 {sstt}, {sstt}, {st0}")
    U(f"v_and_b32 {t0}, 15, {vlane}"); U(f"v_lshrrev_b32 {t1}, 4, {vlane}"); U(f"v_lshlrev_b32 {vg16}, 4, {t1}")
    U(f"v_lshl_add_u32 {vrow}, {t0}, 10, {vg16}")
    srd(U, sXO, pX, 2 * MB); srd(U, sB, pB1, 2752)
    srd(U, sHF, pWS, 2 * MB, WS_HF); srd(U, sST, pWS, 256 * 1024, WS_STAT); srd(U, sW1, pWS, 88 * 16384, WS_W1P)
    U(f"s_mul_i32 {so1}, {sng}, {6*16384}"); U(f"s_add_u32 {so1}, {so1}, {sldsw}")
    U(f"v_bfe_u32 {t0}, {vlane}, 2, 2"); U(f"v_lshrrev_b32 {t1}, 4, {vlane}"); U(f"v_sub_u32 {t1}, {t1}, {t0}"); U(f"v_and_b32 {t1}, 3, {t1}")
    U(f"v_and_b32 {t0}, 1, {vlane}"); U(f"v_lshlrev_b32 {t0}, 4, {t0}"); U(f"v_mov_b32 {SEL[0]}, 0x3f80"); U(f"v_lshlrev_b32 {t0}, {t0}, {SEL[0]}")
    U(f"v_bfe_u32 {SEL[1]}, {vlane}, 1, 1"); U(f"v_lshl_or_b32 {SEL[1]}, {t1}, 1, {SEL[1]}")
    U(f"v_cmp_eq_u32 vcc, 0, {SEL[1]}"); U(f"v_cndmask_b32 {SEL[2]}, 0, {t0}, vcc")
    U(f"v_cmp_eq_u32 vcc, 1, {SEL[1]}"); U(f"v_cndmask_b32 {SEL[3]}, 0, {t0}, vcc")
    for j in (0, 1, 4, 5): U(f"v_mov_b32 {SEL[j]}, 0")
    U(f"v_and_b32 {t0}, 15, {vlane}"); U(f"v_lshlrev_b32 {t0}, 2, {t0}"); U(f"v_xor_b32 {vso}, 1, {t1}"); U(f"v_and_b32 {vso}, 1, {vso}")
    U(f"v_lshl_or_b32 {t0}, {vso}, 6, {t0}"); U(f"v_lshrrev_b32 {t1}, 1, {t1}"); U(f"v_lshl_or_b32 {vso}, {t1}, 31, {t0}")
    for j, c in enumerate((0x22222222, 0x44444444, 0x88888888)): U(f"s_mov_b32 {mD[j][0]}, {c}"); U(f"s_mov_b32 {mD[j][1]}, {c}")
    U(f"s_mov_b32 {mD[3][0]}, 0x00f0000f"); U(f"s_mov_b32 {mD[3][1]}, 0xf0000f00")
    for j in range(4): U(f"v_mov_b32 {ON[j]}, 0x3f803f80")
    U(f"v_lshlrev_b32 {vl4}, 2, {vlane}")
    K1 = 2 * math.sqrt(2 / math.pi) * math.log2(math.e)
    U(f"v_mov_b32 {KC[0]}, {f2h(-K1 * 0.044715)}"); U(f"v_mov_b32 {KC[1]}, {f2h(-K1)}"); U(f"v_mov_b32 {KC[2]}, 1.0")
    U(f"s_mul_i32 {st0}, {sme}, {43*4096}"); U(f"s_add_u32 {st0}, {st0}, {WS_HM}")
    srd(U, sHM, pWS, 43 * 4096, st0)
    U(f"s_mul_i32 {shm}, {sng}, {3*4096}"); U(f"s_lshl_b32 {st0}, {swave}, 10"); U(f"s_add_u32 {shm}, {shm}, {st0}")
    U(f"s_lshl_b32 {ssl}, {sme}, 2"); U(f"s_add_u32 {ssl}, {ssl}, {swave}"); U(f"s_lshl_b32 {shl}, {ssl}, 14"); U(f"s_lshl_b32 {ssl}, {ssl}, 11")
    U(f"s_and_b32 {st2}, {sng}, {opt.get('erot', 3)}"); U(f"s_lshl_b32 {st2}, {st2}, 12"); U(f"s_add_u32 {shl}, {shl}, {st2}")
    for kq in range(4):
        U(f"s_xor_b32 {st0}, {st2}, {65536 + kq*4096}"); U(f"v_add_u32 {EA[2*kq]}, {st0}, {vl16}"); U(f"v_add_u32 {EA[2*kq+1]}, 65536, {EA[2*kq]}")
    U(f"s_lshr_b32 {st0}, {sng}, 3"); U(f"s_lshl_b32 {st0}, {st0}, 1"); U(f"s_and_b32 {st2}, {swave}, 1"); U(f"s_add_u32 {st0}, {st0}, {st2}")
    U(f"s_lshl_b32 {st0}, {st0}, 10"); U(f"v_add_u32 {vb[0]}, {st0}, {vl16}"); U(f"v_xor_b32 {vb[1]}, 1024, {vb[0]}")
    U(f"s_lshr_b32 {st0}, {swave}, 1"); U(f"s_lshl_b32 {st0}, {st0}, 11"); U(f"v_add_u32 {vw2[0]}, {st0}, {vl16}"); U(f"v_xor_b32 {vw2[1]}, 2048, {vw2[0]}")
    for r in range(4):
        U(f"s_xor_b32 {st0}, {swave}, {r}"); U(f"s_mul_i32 {st0}, {st0}, 6144")
        if r > 1: U(f"s_add_u32 {st0}, {st0}, {(r-1)*2048}")
        U(f"v_add_u32 {vw[r-1] if r else vrd}, {st0}, {vl16}")
    U(f"s_mul_i32 {sfb}, {swave}, {11*4096}")
    U(f"s_lshr_b32 {sfr}, s2, 6"); U(f"s_lshl_b32 {sfr}, {sfr}, 1"); U(f"s_xor_b32 {sfr}, {sfr}, {si}"); U(f"s_and_b32 {sfr}, {sfr}, {opt.get('frot', 0)}"); U(f"s_lshl_b32 {sfr}, {sfr}, 12")
    vq = glue(U.L); nU = len(vq)
    xq = [f"buffer_load_dwordx4 {XRr[0]}, {vrow}, {sXO}, {sxo2} offen ; tag=e", f"s_add_u32 {st1}, {sxo2}, {MB}",
          f"buffer_load_dwordx4 {XRr[1]}, {vrow}, {sXO}, {st1} offen ; tag=e"]
    bq = [f"v_lshrrev_b32 {vinf}, 1, {vg16}", f"s_mul_i32 {sdb}, {sng}, 192"]
    bq += [f"buffer_load_dwordx2 {B1.sub(2*fb,2)}, {vinf}, {sB}, {sdb} offen offset:{fb*32} ; tag=e" for fb in range(6)]
    SELm = [SEL.sub(2, 4), SEL.sub(0, 4)]
    def addfrag(t0_, t1_, fr): return [f"{MF} {t}, {SELm[cb]}, {fr}, {t}" for cb, t in enumerate((t0_, t1_))]
    def pll(ch, so=st1):
        L = []
        for j in range(3):
            L += [f"s_add_u32 {so}, {spl}, {ch*49152 + j*4096}", f"buffer_load_dwordx4 {PL.sub(4*j,4)}, {vl16}, {sPT}, {so} offen {SC} ; tag=pl{ch}"]
        return L
    def red1(ch):
        L = [f"WAITVM pl{ch},e"]
        for fr in [XRr[ch]] + [PL.sub(4 * j, 4) for j in range(3)]: L += addfrag(TY(ch, 0, 0), TY(ch, 0, 1), fr)
        return L
    def red2(ch):
        return pack(HP, TY(ch, 0, 0), TY(ch, 0, 1)) + [f"buffer_store_dwordx4 {HP}, {vl16}, {sHF}, {shf} offen {SC} ; tag=hst{ch}", f"s_add_u32 {shf}, {shf}, {MB}",
                f"{MF} {STT.sub(0,4)}, {HP}, {HP}, 0", f"{MF} {STT.sub(4,4)}, {ON}, {HP}, 0"]
    def red3(ch):
        return [f"v_cndmask_b32 {STT[0]}, {STT[0]}, {STT[1+j]}, {mD[j]}" for j in range(3)] + [f"v_cndmask_b32 {STT[0]}, {STT[4]}, {STT[0]}, {mD[3]}",
                f"buffer_store_dword {STT[0]}, {vso}, {sST}, {sstt} offen {SC} ; tag=hst{ch}", f"s_add_u32 {sstt}, {sstt}, {64*2048}"]
    W2 = lambda s, cb: Wd(2 * s + cb // 2, cb % 2)
    def foff(d, s): return [f"s_xor_b32 {d}, {sfr}, {s*4096}", f"s_add_u32 {d}, {d}, {sfb}"] if s < 8 else [f"s_add_u32 {d}, {sfb}, {s*4096}"]
    def w2l(s): return foff(sow, s) + [f"buffer_load_dwordx4 {W2(s,c)}, {vw2[c//2]}, {sW}, {sow} offen offset:{(c%2)*1024} {SC} ; tag=w2" for c in range(4)]
    U = Kern("x"); U(f"s_and_b32 {st2}, {sng}, 7"); U(f"s_mul_i32 {st2}, {st2}, {43*4096}"); U(f"s_add_u32 {st2}, {st2}, {WS_W2P}"); srd(U, sW, pWS, 43 * 4096, st2)
    w2srd = glue(U.L)
    lw = lambda a_, b_: sum((wl(s) for s in range(max(a_, NW2), b_)), [])
    W2D = opt.get("w2d", (0, 0, 0))
    w2o = list(range(11))
    w2n = lambda n: sum((w2l(w2o.pop(0)) for _ in range(n)), [])
    wsig = lambda so, vo, *offs: csignal(swave, [signal(sFL, so, vo) + f" offset:{o}" for o in offs])
    sigs = {6: wsig(sdb, vb4, F2B, 2048 + F2B), 38: wsig(ssg, vb4s, FP[0]), 60: wsig(sclD, vbc, F3[0])}
    UB = opt.get("ub", 22); UC = opt.get("uc", 46); RA = opt.get("ra", UC + 6); U3 = opt.get("u3", 60)
    LATE = opt.get("late", 0); sig3a = sigs[60]
    sigs = {6: sigs[6], 38: sigs[38]}
    if not LATE: sigs[U3] = sig3a
    adds = {0: cd(1) + cd(2) + lw(0, 12) + cd(3) + lw(12, 16), UB - 3: [wpoll("p2b", sflD, F2B)], 22: cd(5) + xq + bq,
            32: cd(6) + cd(7), 40: w1d(0) + w2n(W2D[0]), UC - 3: [wpoll("ppa", sflD, FP[0])],
            48: w1d(1) + w2n(W2D[1]), 54: w1d(2) + w2n(W2D[2])}
    front = (UB - 3, UC - 3)
    mq = []; stq = []; nxt = [0]
    for u, (st, rb, kh) in enumerate(dun):
        ch = st // 4
        lg = 4 if u < 63 else 0
        tags = []
        if u % 8 < 2 and ch == 0 and 4 * st + 2 * kh + 1 >= 6: tags.append(f"dw{4*st + 2*kh + 1}")
        if u % 8 == 6 and st < 7: tags.append(f"a{st+1}")
        if u == 6: tags.append("cst")
        if u == 38: tags.append("ps0")
        if u == U3: tags += ["w11"] if LATE else ["hst0", "w11"]
        if u == UB: k.ext(wcheck("p2b", 8, sflD, F2B)); mq += cd(4)
        if u == UC: k.ext(wcheck("ppa", 4, sflD, FP[0]))
        if tags: k(f"WAITVM {','.join(tags)} lgkm={lg}")
        else: k(f"s_waitcnt lgkmcnt({lg})")
        if (u % 8 == 6 and st < 7) or u in (UB, UC, U3): k("s_barrier")
        if u in sigs: k(sigs[u])
        if u == 32: k.ext(stamp("da"))
        elif opt.get("fineD") and u % 8 == 0 and u: k.ext(stamp(f"u{u}"))
        if u in adds:
            if u in front:
                mq = adds[u] + mq
            else: mq += adds[u]
        if u == UC: mq = pll(0) + mq; nxt[0] = 0
        if u == RA: k.ext(red1(0))
        if u == RA + 1: k.ext(red2(0))
        if u == RA + 2: k.ext(red3(0))
        mf = [f"{MF} {TY(ch,rb,cb)}, {Wd(8*(st%4)+4*kh+ks,cb)}, {DFu(u,ks)}, {'0' if st % 4 == 0 and kh == 0 and ks == 0 else TY(ch,rb,cb)}" for cb in ((1, 0) if kh and opt.get("zz", 0) else (0, 1)) for ks in range(4)]
        G = Gaps(mf)
        if u < 62:
            for g, x in zip((0, 2, 4, 6), dreads(u + 2)): G.put(g, x)
        pace = opt.get("pa_", 3.0) if u < 30 else opt.get("pb_", 4.0)
        for g in (1, 3, 5):
            if 8 * u + g < nxt[0] and not (u in front and g == 1): continue
            if stq: G.put(g, stq.pop(0)); nxt[0] = max(nxt[0], 8 * u + g - 1) + 2 * pace
            elif mq:
                L = take_mem(mq)
                for x in L: G.put(g if ismem(x) else g - 1, x)
                nxt[0] = max(nxt[0], 8 * u + g - 1) + (pace if "dwordx4" in L[-1] else 2)
        sched(G, vq, 4 if st % 4 == 3 else 0, 7, stq)
        G.emit(k)
        if u == 5: assert len(vq) <= nU - nU0
        if u == 21:
            k.ext(vq); vq = []
        if st % 4 == 3 and rb and kh:
            p = PS.sub(4 * (rb - 1), 4)
            vq += pack(p, TY(ch, rb, 0), TY(ch, rb, 1)) + [("st", f"buffer_store_dwordx4 {p}, {vl16}, {sPT}, {psk[rb-1]} offen {SC} ; tag=ps{ch}")]
        if u == 38: vq += w2srd + [f"s_add_u32 {psk[r]}, {psk[r]}, 49152" for r in range(3)]
        if u == 47:
            vq.append("WAITVM e")
            for j in range(12): vq += [f"v_lshlrev_b32 {BF[2*j]}, 16, {B1[j]}", f"v_and_b32 {BF[2*j+1]}, 0xffff0000, {B1[j]}"]
    assert not vq, vq
    k.ext(stq); emit_dma(mq)
    k.ext(stamp("dmm"))

    H = a(32, 64)
    TE = lambda fb: EACC.sub(fb * 4, 4)
    seqk = [(fb, kq, ks) for kq in range(4) for fb in range(6) for ks in range(4)]
    seq = [(fb, kq, ks) for fb in range(6) for kq in range(4) for ks in range(4)] + seqk + seqk
    EWn = lambda n: DF.sub(4 * (n % 12), 4)
    def erd(n):
        fb, kq, ks = seq[n]
        return f"ds_read_b128 {EWn(n)}, {EA[2*kq + fb // 4]} offset:{(fb % 4)*16384 + ks*1024}"
    def hl(ch):
        L = []
        for kq in range(4):
            L.append(f"s_xor_b32 {st1}, {shl}, {ch*MB + kq*4096}")
            L += [f"buffer_load_dwordx4 {H.sub(16*kq+4*ks,4)}, {vl16}, {sHF}, {st1} offen offset:{ks*1024} {SC} ; tag=h{ch}{kq}" for ks in range(4)]
        L.append(f"s_add_u32 {st1}, {ssl}, {ch*64*2048}")
        return L + [f"buffer_load_dword {SL[j]}, {vl4}, {sST}, {st1} offen offset:{j*256} {SC} ; tag=st{ch}" for j in range(8)]
    def epass(ps, q0=None):
        ch = ps - 1; out = []; q = []
        for n in range(96 * ps, 96 * ps + 96):
            fb, kq, ks = seq[n]; L = []
            if ks == 0:
                lg = 8 if n + 12 <= 288 else max(0, 288 - n - 4)
                L.append(f"WAITVM h{ch}{kq} lgkm={lg}" if ps and fb == 0 else f"s_waitcnt lgkmcnt({lg})")
            d = TE(fb) if ps else C1.sub(4 * fb, 4)
            L.append(f"{MF} {d}, {EWn(n)}, {H.sub(16*kq+4*ks,4) if ps else ON}, {'0' if kq == 0 and ks == 0 else d}")
            if n + 12 < 288: L.append(erd(n + 12))
            if n % 96 == q0: q += stats(ch)
            if q and ks != 3: L.append(q.pop(0))
            out.append((L, 18))
        return out + [([x], icost(x)) for x in q]
    def play(items, hooks, mq, gap=76):
        t = 0; nxt = 0
        for n, (L, c) in enumerate(items):
            for x in hooks.pop(n, []):
                if isinstance(x, list): mq[:0] = x; nxt = t
                elif isinstance(x, tuple): mq.extend(x)
                else: k(x)
            k.ext(L); t += c
            if mq and t >= nxt:
                L2 = take_mem(mq); k.ext(L2); nxt = t + (gap if "dwordx4" in L2[-1] else 24); t += 8
        assert not hooks, hooks
    def stats(ch):
        L = Kern("x")
        L(f"WAITVM st{ch}")
        for d in (4, 2, 1):
            for j in range(d): L(f"v_add_f32 {SL[j]}, {SL[j]}, {SL[j+d]}")
        mu, qq, aa, bb = SL[0], SL[1], SL[2], SL[3]
        L(f"v_mov_b32 {qq}, {mu}"); L(f"v_permlane32_swap_b32 {mu}, {qq}"); L(f"v_add_f32 {mu}, {mu}, {qq}")
        L(f"v_mul_f32 {mu}, {f2h(1/512)}, {mu}"); L(f"v_mov_b32 {qq}, {mu}")
        L(f"v_permlane16_swap_b32 {mu}, {qq}")
        L(f"v_fma_f32 {qq}, -{mu}, {mu}, {qq}"); L(f"v_max_f32 {qq}, 0, {qq}")
        L(f"v_add_f32 {aa}, {f2h(1e-5)}, {qq}"); L(f"v_rsq_f32 {aa}, {aa}")
        L(f"v_mul_f32 {bb}, {aa}, {aa}"); L(f"v_mul_f32 {bb}, {bb}, {qq}"); L(f"v_add_f32 {bb}, {f2h(1e-5)}, {bb}")
        L(f"v_rsq_f32 {bb}, {bb}")
        L(f"v_mul_f32 {RM[0]}, {aa}, {bb}"); L(f"v_mul_f32 {RM[1]}, -{mu}, {RM[0]}")
        return L.L
    def gelu(ch, pp):
        ts = [TE(fb).sub(r, 2) for fb in (2 * pp, 2 * pp + 1) for r in (0, 2)]
        cs = [(C1.sub(4 * fb + r, 2), BF.sub(4 * fb + r, 2)) for fb in (2 * pp, 2 * pp + 1) for r in (0, 2)]
        g = [G0.sub(2 * j, 2) for j in range(4)]
        L = [f"v_pk_fma_f32 {g[j]}, {RM}, {cs[j][0]}, {cs[j][1]} op_sel:[1,0,0]" for j in range(4)]
        L += [f"v_pk_fma_f32 {ts[j]}, {RM}, {ts[j]}, {g[j]} op_sel_hi:[0,1,1]" for j in range(4)]
        L += [f"v_pk_mul_f32 {g[j]}, {ts[j]}, {ts[j]}" for j in range(4)]
        L += [f"v_pk_fma_f32 {g[j]}, {g[j]}, {KC.sub(0,2)}, {KC.sub(0,2)} op_sel:[0,0,1] op_sel_hi:[1,0,1]" for j in range(4)]
        L += [f"v_pk_mul_f32 {g[j]}, {g[j]}, {ts[j]}" for j in range(4)]
        L += [f"v_exp_f32 {G0[j]}, {G0[j]}" for j in range(8)]
        L += [f"v_pk_add_f32 {g[j]}, {g[j]}, {KC.sub(2,2)} op_sel_hi:[1,0]" for j in range(4)]
        L += [f"v_rcp_f32 {G0[j]}, {G0[j]}" for j in range(8)]
        L += [f"v_pk_mul_f32 {ts[j]}, {ts[j]}, {g[j]}" for j in range(4)]
        L += pack(PK[pp % 2], TE(2 * pp), TE(2 * pp + 1))
        L += [f"s_add_u32 {st2}, {shm}, {pp*4096}", f"buffer_store_dwordx4 {PK[pp%2]}, {vl16}, {sHM}, {st2} offen {SC} ; tag=mst{ch}"]
        return L
    def gelu_all(ch):
        out = []
        for x in sum((gelu(ch, pp) for pp in range(3)), []):
            if ismem(x): out[-1][0].append(x)
            else: out.append(([x], icost(x)))
        return out
    T_ = dict(p3a=10, b1=40, ppb=72, b2=95, rb=135, b3=190, p3b=300); T_.update(opt.get("T", {}))
    W2E = opt.get("w2e", (0, 2, 2, 3))
    for n in range(12): k(erd(n))
    mq = w2n(W2E[0])
    items = epass(0) + epass(1, q0=60) + gelu_all(0)
    hooks = {T_["p3a"]: [[wpoll("p3a", sflE, F3[0])]],
             T_["b1"]: wcheck("p3a", 16, sflE, F3[0]) + ["WAITVM ps1,w12", "s_barrier", wsig(ssg, vb4s, FP[1])] + stamp("g3a") + [hl(0)],
             T_["ppb"]: [[wpoll("ppb", sflD, FP[1], vp2)]],
             T_["b2"]: wcheck("ppb", 4, sflD, FP[1], vp2) + ["s_barrier"] + pll(1, st2) + stamp("gpb") + [tuple(w2n(W2E[1]))],
             T_["rb"]: red1(1), T_["rb"] + 6: red2(1), T_["rb"] + 12: red3(1) + [tuple(w2n(W2E[2]))],
             T_["b3"]: ["WAITVM hst1", "s_barrier", wsig(sclD, vbc, F3[1])] + stamp("ea") + [tuple(w2n(W2E[3]))],
             min(T_["p3b"], len(items) - 1): [[wpoll("p3b", sflE, F3[1])]]}
    assert T_["b1"] <= 51
    if LATE:
        hooks[T_["b1"]] = ["WAITVM ps1,w12,hst0", "s_barrier", sig3a, wsig(ssg, vb4s, FP[1])]
        hooks[T_["c3a"]] = wcheck("p3a", 16, sflE, F3[0]) + ["s_barrier"] + hl(0)[:10] + [hl(0)[10:]]
    play(items, hooks, mq)
    k.ext(mq)
    k(f"s_mov_b32 {sAct[0]}, {sHM[0]}"); k(f"s_mov_b32 {sAct[1]}, {sHM[1]}"); k(f"s_mov_b32 {sAct[2]}, {43*4096}")
    k(f"s_add_u32 {sHM[0]}, {sHM[0]}, {16*43*4096}"); k(f"s_addc_u32 {sHM[1]}, {sHM[1]}, 0")
    srd(k, sXO, pO[2:4], 2 * MB); srd(k, sB, pO[0:2], 1024)
    k(f"s_lshl_b32 {shf}, {sme}, 2"); k(f"s_lshr_b32 {st0}, {sng}, 3"); k(f"s_lshl_b32 {st0}, {st0}, 1"); k(f"s_add_u32 {shf}, {shf}, {st0}")
    k(f"s_and_b32 {st0}, {swave}, 1"); k(f"s_add_u32 {shf}, {shf}, {st0}"); k(f"s_lshl_b32 {shf}, {shf}, 14")
    k(f"s_and_b32 {st0}, {sng}, 7"); k(f"s_lshl_b32 {st0}, {st0}, 1"); k(f"s_lshr_b32 {st2}, {swave}, 1"); k(f"s_add_u32 {st0}, {st0}, {st2}")
    k(f"s_lshl_b32 {spl}, {st0}, 6"); k(f"s_add_u32 {sxo2}, {shf}, {spl}"); k(f"s_lshl_b32 {st0}, {st0}, 10"); k(f"s_add_u32 {shf}, {shf}, {st0}")
    pool = [a(b_ + 4 * j, 4) for b_ in (16, 144) for j in range(4)] + [v(b_ + 4 * j, 4) for b_, n_ in ((96, 2), (128, 2), (168, 1), (180, 1), (200, 5)) for j in range(n_)] + [a(32 + 4 * j, 4) for j in range(3)]
    Af = lambda s, rb: pool[2 * s + rb]
    HR = [a(44, 4), a(48, 4)]; BRr = a(52, 4)
    def fl(ch, s): return foff(soa, s) + [f"buffer_load_dwordx4 {Af(s,r)}, {vb[r]}, {sAct}, {soa} offen {SC} ; tag=fa{ch}_{s}" for r in range(2)]
    if opt.get("dec", 1):
        k.ext(wcheck("p3b", 16, sflE, F3[1])); k("s_barrier")
        k.ext(stamp("g3b"))
        mq = hl(1)
        for _ in range(opt.get("nh", 8)): k.ext(take_mem(mq))
        k("WAITVM mst0"); k("s_barrier"); k(wsig(sclE, vbc, F4[0]))
        for _ in range(4): k.ext(take_mem(mq))
    else:
        k.ext(wcheck("p3b", 16, sflE, F3[1])); k("WAITVM mst0"); k("s_barrier")
        k(wsig(sclE, vbc, F4[0]))
        k.ext(stamp("g3b"))
        mq = hl(1)
        for _ in range(opt.get("nh", 12)): k.ext(take_mem(mq))
    mq += w2n(len(w2o))
    late = fl(0, 9) + fl(0, 10) + [f"buffer_load_dwordx4 {HR[0]}, {vl16}, {sHF}, {shf} offen {SC} ; tag=fe", f"s_add_u32 {shf}, {shf}, {MB}",
           f"buffer_load_dwordx4 {HR[1]}, {vl16}, {sHF}, {shf} offen {SC} ; tag=fe", f"buffer_load_dwordx4 {BRr}, {vg16}, {sB}, {spl} offen ; tag=fe"]
    eb = epass(2, q0=60)
    P4 = opt.get("p4", 8)
    play(eb + gelu_all(1), {P4: [[wpoll("p4a", sflE, F4[0])]], P4 + 32: wcheck("p4a", 16, sflE, F4[0]) + ["s_barrier", tuple(sum((fl(0, s) for s in range(9)), []))],
                            len(eb): stamp("eb") + [tuple(late)]}, mq)
    k.ext(stamp("gb"))

    FACC = v(160, 8); RD = v(104, 24); OP = PK[0]
    TD = lambda cb, rb: a(88 + ((cb // 2) * 4 + rb * 2 + cb % 2) * 4, 4) if cb // 2 or rb else FACC.sub(4 * cb, 4)
    def fpass(ch, hooks, nf):
        for s in range(11):
            if s in hooks: k.ext(hooks[s])
            need = [f"tag=fa{ch}_{s}"] + (["tag=w2"] if s == 0 else []) + (["tag=fe"] if s == 10 else [])
            while any(x.endswith(t_) for x in mq for t_ in need): k.ext(take_mem(mq))
            k(f"WAITVM fa{ch}_{s}" + (",w2" if s == 0 and ch == 0 else "") + (",fe" if s == 10 and ch == 0 else ""))
            grp = (1, 2, 3, 0) if s == 10 else range(4)
            mf = [f"{MF} {TD(2*(r//2)+t, r%2)}, {W2(s,2*(r//2)+t)}, {Af(s,r%2)}, {'0' if s == 0 else TD(2*(r//2)+t, r%2)}" for r in grp for t in range(2)]
            if s == 10: mf += addfrag(TD(0, 0), TD(1, 0), HR[ch]) + addfrag(TD(0, 0), TD(1, 0), BRr)
            G = Gaps(mf)
            if nf is not None and s + nf < 11:
                L = fl(ch, s + nf)
                for x in L[:-2]: G.put(0, x)
                G.put(1, L[-2]); G.put(5, L[-1])
            for g in (1, 5):
                for x in take_mem(mq): G.put(g if ismem(x) else g - 1, x)
            if s == 10:
                for r in range(1, 4):
                    for t in range(2): G.put(min(2 * r + 4 + t, 11), f"ds_write_b128 {vw[r-1]}, {TD(2*(r//2)+t, r%2)} offset:{ch*24576 + t*1024}")
            G.emit(k)
    def finish(ch, hook=()):
        k("s_waitcnt lgkmcnt(0)"); k("s_barrier")
        for j in range(6): k(f"ds_read_b128 {RD.sub(4*j,4)}, {vrd} offset:{ch*24576 + j*1024}")
        k.ext(hook)
        for p in range(3):
            k(f"s_waitcnt lgkmcnt({4-2*p})")
            for j in range(0, 8, 2): k(f"v_pk_add_f32 {FACC.sub(j,2)}, {FACC.sub(j,2)}, {RD.sub(8*p+j,2)}")
        k.ext(pack(OP, TD(0, 0), TD(1, 0)))
        k(f"buffer_store_dwordx4 {OP}, {vrow}, {sXO}, {sxo2} offen {opt.get('of', '')}")
    fpass(0, {opt.get("s4", 6): ["WAITVM mst1", "s_barrier", wsig(sclE, vbc, F4[1])]}, None)
    finish(0, [wpoll("p4b", sflE, F4[1]), f"s_mov_b32 {sAct[0]}, {sHM[0]}", f"s_mov_b32 {sAct[1]}, {sHM[1]}"])
    k(f"s_add_u32 {sxo2}, {sxo2}, {MB}")
    k.ext(stamp("fa"))
    k.ext(wcheck("p4b", 16, sflE, F4[1])); k("s_barrier")
    k.ext(stamp("g4b"))
    NF = opt.get("nf", 6)
    for s in range(NF): k.ext(fl(1, s))
    fpass(1, {}, NF)
    k.ext(stamp("fmm"))
    finish(1)
    if echo:
        k("s_waitcnt vmcnt(0)"); k.ext(stamp("end"))
        k("s_nop 4"); k(f"v_readlane_b32 {st0}, v0, 0"); k(f"v_readlane_b32 {st1}, v0, 1"); k("s_nop 4")
        k(f"s_sub_u32 {st0}, {st1}, {st0}"); k(f"s_lshl_b32 {st0}, {st0}, 2"); k(f"s_min_u32 {st0}, {st0}, 100000")
        k("s_memrealtime s[100:101]"); k("s_waitcnt lgkmcnt(0)"); k(f"s_mov_b32 {st1}, s100")
        k.label(Lb("echo"))
        k("s_memrealtime s[100:101]"); k("s_waitcnt lgkmcnt(0)"); k(f"s_sub_u32 {st2}, s100, {st1}")
        k(f"s_cmp_lt_u32 {st2}, {st0}"); k(f"s_cbranch_scc1 {Lb('echo')}")
    if dbg:
        k("s_waitcnt vmcnt(0)"); k.ext(stamp("end"))
        srd(k, sW, pWS, MB, WS_DBG)
        k(f"s_lshl_b32 {st0}, s2, 2"); k(f"s_add_u32 {st0}, {st0}, {swave}"); k(f"s_lshl_b32 {st0}, {st0}, 8")
        k(f"v_lshlrev_b32 {t0}, 2, {vlane}")
        k(f"buffer_store_dword v0, {t0}, {sW}, {st0} offen")
    k.label(E)
    k("s_endpgm")
    tail.label(Lb("codeend")); tail("s_endpgm")
    k.L = resolve_waits(k.L) + [x.replace("NOCOUNT ", "") for x in tail.L]
    return k, names

def build(path, **kw):
    import hazard
    k, names = gen(KNAME + "_kernel", **kw)
    k.L, nfix = hazard.fix(k.L, k.name)
    if nfix: print("padded", nfix, "hazards")
    bad = hazard.check(k.L, k.name)
    ref = open("cdna_kernels/" + KNAME + ".s.ref").read().split("\n")
    hdr = "\n".join(ref[:next(n for n, l in enumerate(ref) if l.startswith("; Override"))]) + "\n" + """;
; One persistent launch, 256 workgroups (one per CU) of 4 waves with 512 registers; emitted by my own python generator.
;  1. LayerNorm(x) (8 rows per workgroup), K = c Wuk, V = c Wuv for 256 keys of one head, Q for the 128-row blocks i and 15-i.
;  2. Causal flash attention, 16x16x32 bf16 MFMA. The subtracted maximum starts as the true maximum of the first 16 keys and
;     enters through the C operand; it never exceeds the row maximum, so only overflow is possible. The row sums are checked
;     at the end and a wave whose sum is >= 2^60 or not finite recomputes its rows with the running true maximum.
;  3. Output projection + residual, LayerNorm(LayerNorm(.)) folded around the up projection, GELU(tanh), down projection.
; Hand-offs between workgroups: sc1 stores, vmcnt wait, barrier, counter add; consumers poll, then load with sc1.
; The counters live in d_ws and are cleared inside the launch (announced through d_debug); every poll is bounded.
"""
    open(path, "w").write(build_single(k, 512, 256, 102, 256, 256, 163840, hdr))
    check_file(path)
    if names: open(path[:-2] + ".names", "w").write(" ".join(names))
    return bad

if __name__ == "__main__":
    build("m.s"); build("m_dbg.s", dbg=True); build("m_force.s", thr=0.5)
```

```python
import random, sys
from asmlib import check_file
src = open("m.s").read().split("\n")
for seed in range(1, 5):
    random.seed(seed); out = []; n = 0
    for l in src:
        if l.strip() == "s_barrier":
            n += 1
            mode = random.choice(["w", "w", "g"]); N = random.choice([4, 10, 20, 40])
            if mode == "w": c = [f"    s_cmp_eq_u32 s3, {random.randrange(4)}"]
            else: c = [f"    s_bitcmp1_b32 s2, {random.randrange(8)}"]
            blk = c + [f"    s_cbranch_scc0 L_j{n}", f"    s_sleep {N}", f"L_j{n}:"]
            if random.random() < 0.7: out += [l] + blk
            else: out += blk + [l]
        else: out.append(l)
    p = f"j{seed}.s"; open(p, "w").write("\n".join(out)); check_file(p)
```

```python
from asmlib import *
from layout import *
from k1 import f2h, MF, setup_wstream, wdma, trreads, cb_mfmas, pack
import math, re

NEGINF = "0xff800000"
SPIN = 200000

def sched(G, q, lo, hi=None, stq=None, second=False):
    hi = G.n - 1 if hi is None else hi
    g = lo
    while q and g <= hi:
        x = q[0]
        if isinstance(x, tuple):
            stq.append(x[1]); q.pop(0); continue
        full = G.cost(g) + icost(x) > G.cap
        clash = ismem(x) and len(G.g[g]) > 0 and not (second and len(G.g[g]) == 1 and G.g[g][0].startswith("ds_"))
        if full or clash:
            g += 1; continue
        G.g[g].append(x); q.pop(0)
    while q and isinstance(q[0], tuple):
        stq.append(q[0][1]); q.pop(0)

def glue(L):
    out = []
    for x in L:
        if x.startswith("s_addc") or x.startswith("s_cselect"): out[-1] += "\n" + x
        else: out.append(x)
    return out

def gen(name, dbg=False, thr=2.0**60, opt=None):
    opt = opt or {}
    SC = "sc1"; STF = opt.get("stf", "sc1")
    k = Kern(name)
    tail = Kern("tail")
    v = lambda b, n=1: Reg('v', b, n)
    a = lambda b, n=1: Reg('a', b, n)
    Lb = lambda s: f"L_{s}"
    E = Lb("end")
    vlane, vl16, vl16b, t0, t1, t2, vsig, vone, vpoll, vtr, vtrb, vinf, vm0, vm1, vm2 = [v(i) for i in range(1, 16)]
    X16 = v(16, 16); ACC = v(32, 128); WFr = v(160, 32); PB = v(192, 64)
    vW = X16.sub(0, 8); vco = X16.sub(8, 4); vcr = X16.sub(12, 4)
    WF = [WFr.sub(0, 16), WFr.sub(16, 16)]
    R = a(0, 256)
    S = Alloc("s", 3, 100)
    swave = S(); sh = S(); si = S(); st0 = S(); st1 = S(); st2 = S(); ssoff = S(); sldsw = S(); sspin = S()
    srg = S(2, 1); pWS = S(2)
    sFL = S(4); sKV = S(4); sXN = S(4); ssc = S(); sdb = S()
    mark0 = S.mark()
    nst = [0]; names = []
    echo = opt.get("echo")
    def stamp(nm):
        if echo:
            if nm == "start": return ["v_writelane_b32 v0, s100, 0"] + (["s_memrealtime s[100:101]", "s_waitcnt lgkmcnt(0)", "v_writelane_b32 v0, s100, 1"] if echo == nm else [])
            return ["s_memrealtime s[100:101]", "s_waitcnt lgkmcnt(0)", "v_writelane_b32 v0, s100, 1"] if nm == echo else []
        if not dbg or (opt.get("mini") and nm not in ("start", "st11", "ldone", "dmm", "end")): return []
        r = ["s_memtime s[100:101]" if opt.get("cyc") else "s_memrealtime s[100:101]", "s_waitcnt lgkmcnt(0)", f"v_writelane_b32 v0, s100, {nst[0]}"]
        nst[0] += 1; names.append(nm); return r
    def poll_issue(tag, vaddr, sd, soff, imm=0):
        return f"buffer_load_dword {vpoll}, {vaddr}, {sd}, {soff} offen offset:{imm} {SC} ; tag={tag}"
    def poll_check(tag, vaddr, sd, soff, n, imm=0):
        tail.label(Lb("spin" + tag)); tail(f"s_mov_b32 {sspin}, {SPIN}")
        tail.label(Lb("spl" + tag))
        tail(f"buffer_load_dword {vpoll}, {vaddr}, {sd}, {soff} offen offset:{imm} {SC}")
        tail("s_waitcnt vmcnt(0)"); tail(f"v_cmp_gt_u32 vcc, {n}, {vpoll}"); tail("s_nop 0")
        tail(f"s_cbranch_vccz {Lb('back'+tag)}")
        tail(f"s_sub_u32 {sspin}, {sspin}, 1"); tail(f"s_cbranch_scc0 {Lb('spl'+tag)}"); tail(f"s_branch {Lb('back'+tag)}")
        return [f"WAITVM {tag}", f"v_cmp_gt_u32 vcc, {n}, {vpoll}", "s_nop 0", f"s_cbranch_vccnz {Lb('spin'+tag)}", Lb("back" + tag) + ":"]
    def signal(sd, soff, vo=None): return f"buffer_atomic_add {vone}, {vo or vsig}, {sd}, {soff} offen"
    nsig = [0]
    def csignal(cond, ops, after=()):
        nsig[0] += 1; l = Lb(f"sg{nsig[0]}")
        return "\n".join([f"s_cmp_lg_u32 {cond}, 0", f"s_cbranch_scc1 {l}"] + ["NOCOUNT " + x for x in ops] + list(after) + [l + ":", ";"])
    def emit_dma(L):
        for x in L:
            k(x)
            if "m0" in x.split(",")[0]: k("s_nop 0")

    sldsc = sdb; scr = S(4, 2); sst = S(4, 2); sxr = S(4, 1); srot = S(); spe3 = S()
    sC = S(4); sWk = S(4); sWv = S(4); sWq = S(4); sDB = S(4); sP = S(4); sPD = S(4)
    sprow = S(); spA = S(); spB = S(); spd = S(); spe1 = S(); spe2 = S(); spstr = S(); spcs = S(); spxs = S(); sxo = S()
    pD = S(2); pA = S(4); pB = S(4); pC = S(4); pE = S(2); pF = sDB[0:2]
    sX = sXN
    k(f"s_cmp_ge_u32 s2, 256"); k(f"s_cbranch_scc1 {E}")
    if echo or opt.get("entry"): k("s_memrealtime s[100:101]")
    if opt.get("perm") == 1:
        k(f"s_and_b32 {st0}, s2, 7"); k(f"s_lshl_b32 {st0}, {st0}, 5"); k(f"s_lshr_b32 s2, s2, 3"); k(f"s_or_b32 s2, s2, {st0}")
    if opt.get("perm") == 2:
        k(f"s_and_b32 {st0}, s2, 7"); k(f"s_lshl_b32 {st0}, {st0}, 3"); k(f"s_bfe_u32 {st1}, s2, 0x30003"); k(f"s_and_b32 s2, s2, 0xc0"); k(f"s_or_b32 s2, s2, {st0}"); k(f"s_or_b32 s2, s2, {st1}")
    k(f"s_load_dwordx4 {pA}, s[0:1], 0")
    k(f"s_load_dwordx4 {pB}, s[0:1], 16")
    k(f"s_load_dwordx4 {pC}, s[0:1], 32")
    k(f"s_load_dwordx2 {pD}, s[0:1], 56")
    k(f"s_load_dwordx2 {pE}, s[0:1], 72")
    k(f"s_load_dwordx2 {pF}, s[0:1], 96")
    k(f"s_load_dwordx2 {pWS}, s[0:1], 104")
    k(f"v_lshrrev_b32 {t0}, 6, v0"); k(f"v_and_b32 {vlane}, 63, v0"); k(f"v_readfirstlane_b32 {swave}, {t0}")
    k(f"v_lshlrev_b32 {vl16}, 4, {vlane}")
    k(f"s_and_b32 {st0}, s2, 7"); k(f"s_lshl_b32 {st0}, {st0}, 2"); k(f"s_lshr_b32 {sh}, s2, 6"); k(f"s_add_u32 {sh}, {sh}, {st0}")
    k(f"s_bfe_u32 {si}, s2, 0x30003")
    TV = [t0, t1, vpoll, vpoll, t0, t1, vpoll, vpoll, vpoll]; touches = []
    def tc():
        return [[f"s_lshr_b32 {sspin}, s2, 3", f"s_lshl_b32 {sspin}, {sspin}, 2", f"s_add_u32 {sspin}, {sspin}, {swave}", f"s_lshl_b32 {sspin}, {sspin}, 14",
                 f"v_lshrrev_b32 {TV[0]}, 2, {vlane}", f"v_and_b32 {TV[1]}, 3, {vlane}", f"v_lshlrev_b32 {TV[1]}, 7, {TV[1]}", f"v_lshl_add_u32 {TV[0]}, {TV[0]}, 10, {TV[1]}",
                 f"buffer_load_dword {TV[2]}, {TV[0]}, {sC}, {sspin} offen offset:256"],
                [f"v_and_b32 {TV[1]}, 2, {vlane}", f"v_lshl_or_b32 {TV[0]}, {TV[1]}, 30, {TV[0]}",
                 f"buffer_load_dword {TV[3]}, {TV[0]}, {sC}, {sspin} offen offset:768"]]
    def tw(sd, row0, nrow, n):
        return [f"v_lshrrev_b32 {TV[4]}, 1, {vlane}", f"v_and_b32 {TV[5]}, 1, {vlane}", f"v_lshlrev_b32 {TV[5]}, 7, {TV[5]}", f"v_lshl_add_u32 {TV[5]}, {TV[4]}, 13, {TV[5]}",
                f"v_and_b32 {TV[4]}, {(~(nrow-1)) & 31}, {TV[4]}", f"v_lshl_or_b32 {TV[5]}, {TV[4]}, 26, {TV[5]}",
                f"s_mul_i32 {sspin}, {srg[0]}, {nrow*8192}", f"s_add_u32 {sspin}, {sspin}, {row0*8192}",
                f"buffer_load_dword {TV[6+n]}, {TV[5]}, {sd}, {sspin} offen"]
    tt = opt.get("touch", {"v": 3.5, "q": 10.4})
    if "c" in tt: touches += [(tt["c"], x) for x in tc()]
    if "k" in tt: touches.append((tt["k"], tw(sWk, 256, 8, 0)))
    if "v" in tt: touches.append((tt["v"], tw(sWv, 0, 16, 1)))
    if "q" in tt: touches.append((tt["q"], tw(sWq, 0, 16, 2)))
    if "p" in tt:
        touches.append((tt["p"], [f"v_bfe_u32 {t0}, {vlane}, 1, 2", f"v_and_b32 {t1}, 1, {vlane}", f"v_lshlrev_b32 {t1}, 7, {t1}", f"v_mad_u32_u24 {t1}, {t0}, {spstr}, {t1}",
                 f"v_bfe_u32 {t0}, {vlane}, 3, 1", f"v_mad_u32_u24 {t1}, {t0}, {spA}, {t1}", f"v_lshrrev_b32 {t0}, 4, {vlane}", f"v_mad_u32_u24 {t1}, {t0}, {spB}, {t1}",
                 f"buffer_load_dword {vpoll}, {t1}, {sP}, {sprow} offen"]))
        assert tt["p"] >= 0
    def tlb_touch(sh_):
        return [f"v_min_u32 {t2}, 39, {vlane}", f"v_lshlrev_b32 {t2}, 21, {t2}", f"v_mov_b32 {t1}, {pWS[1]}",
                f"v_add_co_u32 {t0}, vcc, {pWS[0]}, {t2}", "s_nop 1", f"v_addc_co_u32 {t1}, vcc, 0, {t1}, vcc",
                f"global_load_dword {vpoll}, v[{t0.base}:{t1.base}], off {SC}"]
    if "tlb" in tt: touches.append((tt["tlb"], tlb_touch(21)))
    def code_touch():
        pc = PB.sub(28, 2)
        k(f"s_getpc_b64 {sPD[0:2]}"); k.label(Lb("pc"))
        k(f"s_lshr_b32 {sspin}, s2, 3"); k(f"s_lshl_b32 {sspin}, {sspin}, 2"); k(f"s_add_u32 {sspin}, {sspin}, {swave}")
        k(f"v_lshl_add_u32 {t0}, {vlane}, 7, {sspin}"); k(f"v_lshlrev_b32 {t0}, 7, {t0}")
        k(f"v_min_u32 {t0}, {Lb('codeend')}-{Lb('pc')}-4, {t0}")
        k(f"v_mov_b32 {pc[1]}, {sPD[1]}"); k(f"v_add_co_u32 {pc[0]}, vcc, {sPD[0]}, {t0}"); k("s_nop 1"); k(f"v_addc_co_u32 {pc[1]}, vcc, 0, {pc[1]}, vcc")
        k("s_mov_b64 exec, 63"); k(f"global_load_dword {vpoll}, {pc}, off"); k("s_mov_b64 exec, -1")
    if opt.get("code", 1) == 1: code_touch()
    setup_wstream(k, vW, vtrb, vlane, swave, t0, t1, t2, st0)
    k(f"v_and_b32 {t0}, 15, {vlane}"); k(f"v_lshrrev_b32 {t1}, 4, {vlane}")
    k(f"s_lshl_b32 {sldsc}, {swave}, 14"); k(f"s_add_u32 {sldsc}, {sldsc}, {96*1024}")
    k(f"v_xor_b32 {t2}, {t0}, {t1}"); k(f"v_lshlrev_b32 {t2}, 4, {t2}")
    k(f"v_lshl_add_u32 {vco[0]}, {t1}, 10, {t2}")
    k(f"v_lshl_add_u32 {vcr[0]}, {t0}, 8, {t2}"); k(f"v_add_u32 {vcr[0]}, {sldsc}, {vcr[0]}")
    for q in range(1, 4):
        k(f"v_xor_b32 {vco[q]}, {q*64}, {vco[0]}"); k(f"v_add_u32 {vco[q]}, {q*4096 - q*1024}, {vco[q]}")
        k(f"v_xor_b32 {vcr[q]}, {q*64}, {vcr[0]}")
    k(f"s_lshl_b32 {st0}, {si}, 2"); k(f"s_add_u32 {srg[0]}, {st0}, {swave}")
    k(f"s_sub_u32 {srg[1]}, 60, {st0}"); k(f"s_add_u32 {srg[1]}, {srg[1]}, {swave}")
    ROT = opt.get("rot", 1)
    if opt.get("w5", 1): WSL = [0, 1, 2, 0, 1, 2, 3, 0, 4, 1, 2, 3]; WREL = [8, 7, 15, 23, 31, 31, 31, 39, 47, 55]
    else: WSL = [0, 1, 2] * 4; WREL = [8] + [8 * s_ - 17 for s_ in range(3, 12)]
    k(f"s_add_u32 {srot}, {sh if ROT == 2 else 's2'}, {si}"); k(f"s_and_b32 {srot}, {srot}, {3 if ROT else 0}")
    k(f"s_lshl_b32 {st1}, {srot}, 8"); k(f"s_lshl_b32 {srot}, {srot}, 20")
    k(f"s_lshl_b32 {scr[0]}, {srg[0]}, 16"); k(f"s_add_u32 {scr[0]}, {scr[0]}, {st1}")
    for rb in range(1, 4): k(f"s_add_u32 {scr[rb]}, {scr[0]}, {rb*16384}")
    k(f"s_lshl_b32 {sldsw}, {swave}, 13")
    k(f"s_lshl_b32 {ssc}, s2, 2"); k(f"s_add_u32 {ssc}, {ssc}, {swave}"); k(f"s_lshl_b32 {ssc}, {ssc}, 11")
    k(f"s_lshl_b32 {st0}, {sh}, 8"); k(f"s_sub_u32 {st1}, {4*MB}, {st0}")
    k(f"s_waitcnt lgkmcnt(0)")
    if opt.get("entry"): k(f"v_writelane_b32 v0, s100, {nst[0]}"); nst[0] += 1; names.append("entry")
    k.ext(stamp("start"))
    srd(k, sX, pA[0:2], 2 * MB); srd(k, sC, pA[2:4], 2 * MB)
    srd(k, sWk, pB[2:4], st1, st0)
    XR = [PB.sub(0, 4), PB.sub(4, 4)]; XF = [PB.sub(8, 8), PB.sub(16, 8)]; vs = PB.sub(24, 2); vt_ = PB.sub(26, 2)
    srd(k, sFL, pWS, 512 * 128, WS_FLG)
    k(f"s_cmp_ge_u32 s2, 11"); k(f"s_cselect_b32 {sspin}, 1, 0"); k(f"s_cbranch_scc1 {Lb('nz')}")
    for j in range(4): k(f"v_mov_b32 {XF[0][j]}, 0")
    k(f"s_lshr_b32 {ssoff}, {ssc}, 1")
    k(f"NOCOUNT buffer_store_dwordx4 {XF[0].sub(0,4)}, {vl16}, {sFL}, {ssoff} offen {SC}")
    k.label(Lb("nz"))
    k(f"v_add_u32 {vinf}, {ssc}, {vl16}")
    def cdma(ch):
        L = []
        for rb in range(4):
            L += [f"s_xor_b32 {ssc}, {scr[rb]}, {ch*256}", f"s_add_u32 m0, {sldsc}, {rb*4096}"]
            L += [f"buffer_load_dwordx4 {vco[q]}, {sC}, {ssc} offen offset:{q*1024} lds ; tag=c{ch}q{rb}" for q in range(4)]
        return L
    def creads(ch):
        return [f"ds_read_b128 {R.sub(((4*ch+ks)*4+rb)*4,4)}, {vcr[ks]} offset:{rb*4096}" for rb in range(4) for ks in range(4)]
    def wd(st):
        L = wdma(st, vW, (sWk, sWv, sWq)[st // 4], ssoff, sldsw, f"w{st}", WSL)
        if st < 8: L[0] = f"s_xor_b32 {ssoff}, {srot}, {(st % 4) << 20}"
        if st == 8 and opt.get("xrot", 1):
            L = [f"s_and_b32 {srot}, {sh}, 3", f"s_lshl_b32 {srot}, {srot}, 18"] + [f"v_xor_b32 {vW[p]}, {srot}, {vW[p]}" for p in range(8)] + L
        return L
    fine = opt.get("fine")
    NC0 = opt.get("nc0", 0)
    emit_dma(wd(0)); emit_dma(cdma(0)[:6 * NC0])
    if fine: k.ext(stamp("iw0"))
    srd(k, sWv, pC[0:2], st1, st0); srd(k, sWq, pB[0:2], st1, st0)
    k(f"s_lshl_b32 {st1}, {sh}, 20")
    srd(k, sKV, pWS, MB, st1)
    k(f"s_mov_b32 {sDB[2]}, 256"); k(f"s_mov_b32 {sDB[3]}, 0x20000")
    k(f"v_add_u32 {vl16b}, 4096, {vl16}")
    k(f"v_mov_b32 {vone}, 1")
    k(f"v_cmp_eq_u32 vcc, 0, {vlane}"); k(f"v_mov_b32 {t0}, 0x80000000"); k(f"v_mov_b32 {t1}, 0")
    k(f"v_cndmask_b32 {vsig}, {t0}, {t1}, vcc")
    k(f"s_lshl_b32 {sst[0]}, {srg[0]}, 14")
    for rb in range(1, 4): k(f"s_add_u32 {sst[rb]}, {sst[0]}, {rb*4096}")
    for g in range(2):
        k(f"s_lshl_b32 {sxr[2*g]}, {srg[g]}, 15")
        if opt.get("xrot", 1): k(f"s_and_b32 {st0}, {sh}, 3"); k(f"s_lshl_b32 {st0}, {st0}, 10"); k(f"s_add_u32 {sxr[2*g]}, {sxr[2*g]}, {st0}")
        k(f"s_add_u32 {sxr[2*g+1]}, {sxr[2*g]}, 16384")
    k(f"s_mul_i32 {st2}, {sh}, 7"); k(f"s_add_u32 {st2}, {st2}, {si}"); k(f"s_lshl_b32 {st2}, {st2}, 2"); k(f"s_add_u32 {st2}, {st2}, {swave}")
    k(f"s_sub_u32 {st2}, {st2}, 4"); k(f"s_cmp_eq_u32 {si}, 0"); k(f"s_cselect_b32 {st2}, 1000, {st2}")
    k(f"s_cmp_ge_u32 {st2}, 684"); k(f"s_cbranch_scc1 {Lb('pw1')}")
    k(f"s_mov_b32 {sP[2]}, {4*MB}"); k(f"s_mov_b32 {spe2}, {128*2048}"); k(f"s_mov_b32 {spe3}, {128*4096}")
    k(f"s_cmp_ge_u32 {st2}, 512")
    k(f"s_cselect_b32 {sP[0]}, {pE[0]}, {pC[2]}"); k(f"s_cselect_b32 {sP[1]}, {pE[1]}, {pC[3]}")
    k(f"s_cselect_b32 {sP[2]}, {1376*1024}, {sP[2]}"); k(f"s_cselect_b32 {spe2}, 2048, {spe2}"); k(f"s_cselect_b32 {spe3}, {43*4096}, {spe3}")
    k(f"s_cselect_b32 {spd}, {WS_W2P - WS_WOP}, 0"); k(f"s_cselect_b32 {spA}, 12, 11")
    k(f"s_and_b32 {st0}, {st2}, 511"); k(f"s_lshr_b32 {sprow}, {st0}, 2"); k(f"s_and_b32 {st0}, {st0}, 3")
    k(f"s_lshl_b32 {st1}, {sprow}, {spA}"); k(f"s_add_u32 {spd}, {spd}, {st1}")
    k(f"s_mul_i32 {st1}, {st0}, {spe3}"); k(f"s_lshl_b32 {st1}, {st1}, 1"); k(f"s_add_u32 {spd}, {spd}, {st1}")
    k(f"s_lshl_b32 {sprow}, {sprow}, 15"); k(f"s_lshl_b32 {st0}, {st0}, 8"); k(f"s_add_u32 {sprow}, {sprow}, {st0}")
    k(f"s_mov_b32 {spA}, {16*1024}"); k(f"s_mov_b32 {spB}, {4*1024}"); k(f"s_mov_b32 {spe1}, 1024")
    k(f"s_mov_b32 {spstr}, 1024"); k(f"s_mov_b32 {spcs}, 16"); k(f"s_mov_b32 {spxs}, 8")
    k(f"s_mov_b32 {sPD[2]}, {8*MB}")
    k(f"s_branch {Lb('pdone')}")
    k.label(Lb("pw1"))
    k(f"s_mov_b32 {sP[0]}, {pD[0]}"); k(f"s_mov_b32 {sP[1]}, {pD[1]}")
    k(f"s_cmp_ge_u32 {st2}, 860")
    k(f"s_cselect_b32 {sP[2]}, 0, {512*2752}"); k(f"s_cselect_b32 {sPD[2]}, 0, {8*MB}")
    k(f"s_sub_u32 {st0}, {st2}, 684"); k(f"s_and_b32 {sprow}, {st0}, 15"); k(f"s_lshr_b32 {st0}, {st0}, 4")
    k(f"s_lshl_b32 {spd}, {st0}, 17"); k(f"s_lshl_b32 {st1}, {sprow}, 10"); k(f"s_add_u32 {spd}, {spd}, {st1}")
    k(f"s_add_u32 {spd}, {spd}, {WS_W1P - WS_WOP}")
    k(f"s_mul_i32 {sprow}, {sprow}, {32*2752}")
    k(f"s_lshl_b32 {st0}, {st0}, 8"); k(f"s_add_u32 {sprow}, {sprow}, {st0}")
    k(f"s_mov_b32 {spA}, {4*2752}"); k(f"s_mov_b32 {spB}, {8*2752}"); k(f"s_mov_b32 {spe1}, 16384"); k(f"s_mov_b32 {spe2}, 32768"); k(f"s_mov_b32 {spe3}, 65536")
    k(f"s_mov_b32 {spstr}, 2752"); k(f"s_mov_b32 {spcs}, 8"); k(f"s_mov_b32 {spxs}, 32")
    k.label(Lb("pdone"))
    k(f"s_mov_b32 {sP[3]}, 0x20000")
    k(f"s_add_u32 {sPD[0]}, {pWS[0]}, {WS_WOP}"); k(f"s_addc_u32 {sPD[1]}, {pWS[1]}, 0"); k(f"s_mov_b32 {sPD[3]}, 0x20000")
    k(f"v_lshrrev_b32 {t0}, 4, {vlane}"); k(f"v_and_b32 {t1}, 15, {vlane}"); k(f"v_lshlrev_b32 {t1}, 7, {t1}")
    k(f"v_lshl_add_u32 {vm0}, {t0}, 13, {t1}"); k(f"s_lshl_b32 {st0}, {swave}, 5"); k(f"s_add_u32 {st0}, {st0}, 65536")
    k(f"v_lshrrev_b32 {t0}, 3, {vlane}"); k(f"v_and_b32 {t1}, 7, {vlane}"); k(f"v_lshlrev_b32 {t1}, 4, {t1}")
    if opt.get("gsw", 1):
        k(f"v_or_b32 {vm0}, {vm0}, {t1}"); k(f"v_xor_b32 {vm0}, {st0}, {vm0}")
        k(f"s_add_u32 {st0}, {sldsw}, 65536"); k(f"v_lshlrev_b32 {vm1}, 4, {t0}"); k(f"v_xor_b32 {vm1}, {vm1}, {vl16}"); k(f"v_add_u32 {vm1}, {st0}, {vm1}")
    else:
        k(f"v_xor_b32 {vm0}, {st0}, {vm0}"); k(f"s_add_u32 {st0}, {sldsw}, 65536"); k(f"v_add_u32 {vm1}, {st0}, {vl16}")
    k(f"v_lshl_add_u32 {vm2}, {t0}, 8, {t1}")
    k(f"s_lshr_b32 {sxo}, s2, 1"); k(f"s_lshl_b32 {sxo}, {sxo}, 14"); k(f"s_and_b32 {st0}, s2, 1"); k(f"s_lshl_b32 {st0}, {st0}, 7")
    k(f"s_add_u32 {sxo}, {sxo}, {st0}"); k(f"s_lshl_b32 {st0}, {swave}, 12"); k(f"s_add_u32 {sxo}, {sxo}, {st0}")
    WARM = opt.get("warm", ("P1", "D1", "T", "TE", "DM", "DMP", "DM7"))
    for t_ in WARM:
        k(f"s_branch {Lb('wu'+t_)}"); k.label(Lb("wb" + t_))
    def target(t_, fall=False):
        if t_ in WARM:
            if fall: k(f"s_branch {Lb(t_)}")
            k(".p2align 6"); k.label(Lb("wu" + t_)); k(f"s_branch {Lb('wb'+t_)}")
        k.label(Lb(t_))
    if fine: k.ext(stamp("setup"))
    emit_dma(cdma(0)[6 * NC0:])
    if fine: k.ext(stamp("ic0"))
    for tm, L in touches:
        if tm < 0: k.ext(L)
    for j in range(2): k(f"buffer_load_dwordx4 {XR[j]}, {vinf}, {sX}, 0 offen offset:{1024*j} ; tag=x")
    srd(k, sXN, pWS, 2 * MB, WS_XN)
    mark_ln = len(k.L)
    k("WAITVM x")
    for i in range(2):
        for j in range(4):
            k(f"v_lshlrev_b32 {XF[i][2*j]}, 16, {XR[i][j]}"); k(f"v_and_b32 {XF[i][2*j+1]}, 0xffff0000, {XR[i][j]}")
        k(f"v_add_f32 {vs[i]}, {XF[i][0]}, {XF[i][1]}")
        for j in range(2, 8): k(f"v_add_f32 {vs[i]}, {vs[i]}, {XF[i][j]}")
    allreduce(k, [vs[0], vs[1]], [vt_[0], vt_[1]])
    for i in range(2):
        k(f"v_mul_f32 {vs[i]}, {f2h(1/512)}, {vs[i]}")
        for j in range(8): k(f"v_sub_f32 {XF[i][j]}, {XF[i][j]}, {vs[i]}")
        k(f"v_mul_f32 {vs[i]}, {XF[i][0]}, {XF[i][0]}")
        for j in range(1, 8): k(f"v_fmac_f32 {vs[i]}, {XF[i][j]}, {XF[i][j]}")
    allreduce(k, [vs[0], vs[1]], [vt_[0], vt_[1]])
    for i in range(2):
        k(f"v_mov_b32 {vt_[i]}, {f2h(1e-5)}"); k(f"v_fmac_f32 {vt_[i]}, {f2h(1/512)}, {vs[i]}"); k(f"v_rsq_f32 {vs[i]}, {vt_[i]}")
    k("s_nop 0")
    for i in range(2):
        k(f"v_mul_f32 {vs[i]}, {f2h(QSCALE)}, {vs[i]}")
        for j in range(8): k(f"v_mul_f32 {XF[i][j]}, {XF[i][j]}, {vs[i]}")
        for j in range(4): k(f"v_cvt_pk_bf16_f32 {XR[i][j]}, {XF[i][2*j]}, {XF[i][2*j+1]}")
        if i: k(f"v_xor_b32 {vm0}, 16, {vm0}")
        k(f"ds_write_b128 {vm0}, {XR[i]}")
    lnq = [x for x in k.L[mark_ln:] if not x.startswith("s_nop")]; del k.L[mark_ln:]
    w1_ = wd(1); cr = creads(0)
    for q in range(4):
        for _ in range(2):
            while not ismem(w1_[0]): k(w1_.pop(0))
            k(w1_.pop(0))
        k(f"WAITVM c0q{q}" + (" lgkm=4" if q == 3 else "")); k.ext(cr[4 * q:4 * q + 4])
    k(csignal(sspin, [signal(sDB, 0)]))
    k.ext(stamp("ln"))
    k("s_barrier"); k("s_waitcnt lgkmcnt(4)")
    k.ext(trreads(0, 0, WF, vtr, vtrb, WSL))
    xnrd = [f"ds_read_b128 {XF[0].sub(4*j,4)}, {vm1} offset:{1024*j}" for j in range(2)]
    xnst = [f"buffer_store_dwordx4 {XF[0].sub(4*j,4)}, {vm2}, {sXN}, {sxo} offen offset:{2048*j} {SC} ; tag=z" for j in range(2)]
    k(f"s_lshr_b32 {st2}, s2, 4"); k(f"s_lshl_b32 {st2}, {st2}, 7"); k(f"s_add_u32 {st2}, {st2}, {320*128}")
    k(f"s_lshl_b32 {st0}, {si}, 1"); k(f"s_sub_u32 {st0}, 15, {st0}"); k(f"v_and_b32 {t2}, 1, {vlane}")
    k(f"v_mul_u32_u24 {t2}, {st0}, {t2}"); k(f"v_add_u32 {t2}, {si}, {t2}"); k(f"v_mov_b32 {vinf}, 0")
    p0adr = [f"v_lshlrev_b32 {vm1}, 7, {t2}", f"v_add_u32 {vm1}, {320*128}, {vm1}"]
    k("s_waitcnt lgkmcnt(0)")
    k.ext(stamp("go"))

    S2 = Alloc('s', sC.base, sWq.base)
    pool = [r.sub(2 * i, 2) for r in (sDB, scr, sst, pA, pB, pC, pD, pE) for i in range(r.n // 2)]
    assert all(p.base % 2 == 0 for p in pool)
    S3 = lambda n: pool.pop(0)
    skv = S2(); scnt = S2(); snS = S2(); sflag = S2(); sctx = S2(2, 1); mC = S2(2); sCT = S2(4)
    mA = [S3(2) for _ in range(4)]; mB = [S3(2) for _ in range(4)]; mT = [S3(2) for _ in range(4)]; mU = S3(2); mX = S3(2)
    SB = [WFr, PB.sub(0, 32)]; NM = PB.sub(32, 16); MK = PB.sub(48, 16); TMP = X16
    vra, vrc, vthr = vtr, vm2, vm0
    Q = a(0, 64); FK = a(64, 32); FV = a(128, 32); LA = a(96, 16); ONES = a(112, 4)
    O = lambda grp, db, qb: ACC.sub(grp * 64 + (db * 2 + qb) * 4, 4)
    Sq = lambda par, grp, qb: SB[par].sub((grp * 2 + qb) * 8, 8)
    St = lambda par, grp, qb, kb: SB[par].sub(grp * 16 + kb * 8 + qb * 4, 4)
    SMF = opt.get("smf", 1); SPA = a(116, 4); vidx = t2
    Qf = lambda grp, qb, ks: Q.sub(((grp * 2 + qb) * 4 + ks) * 4, 4)
    T = lambda cb, rb: ACC.sub((cb * 4 + rb) * 4, 4)
    XR_ = opt.get("xrot", 1)
    def xloads(ch):
        L = []
        if XR_:
            for ks in range(4):
                for rb in range(4):
                    L += [f"s_xor_b32 {ssc}, {sxr[rb]}, {ch*4096 + ks*1024}", f"buffer_load_dwordx4 {R.sub(((4*ch+ks)*4+rb)*4,4)}, {vl16}, {sXN}, {ssc} offen {SC} ; tag=x{ch}"]
            return L
        for rb in range(4):
            L.append(f"s_add_u32 {ssc}, {sxr[rb]}, {ch*4096}")
            L += [f"buffer_load_dwordx4 {R.sub(((4*ch+ks)*4+rb)*4,4)}, {vl16}, {sXN}, {ssc} offen offset:{ks*1024} {SC} ; tag=x{ch}" for ks in range(4)]
        return L
    def kvdma(j, tag):
        L = []
        for p in range(8):
            if p % 4 == 0: L.append(f"s_add_u32 m0, {sldsw}, {(j%4)*32768 + (p//4)*4096}")
            L.append(f"buffer_load_dwordx4 {vl16 if p < 4 else vl16b}, {sKV}, {scnt if j == 0 else skv} offen offset:{(p%4)*1024} {SC} lds ; tag={tag}")
        L.append(f"s_add_u32 {skv}, {skv}, 16384")
        return L
    presetup = []
    def prep_dma():
        presetup.extend([f"v_lshrrev_b32 {t0}, 4, {vlane}", f"v_bfe_u32 {t1}, {vlane}, 2, 2", f"v_and_b32 {t2}, 3, {vlane}",
              f"v_mul_u32_u24 {vcr[0]}, {spcs}, {t2}", f"v_add_u32 {vcr[1]}, {spxs}, {vcr[0]}",
              f"v_and_b32 {t2}, 1, {t0}", f"v_lshl_or_b32 {t2}, {t2}, 2, {t1}", f"v_lshlrev_b32 {t2}, 5, {t2}",
              f"v_lshl_or_b32 {t2}, {t1}, 8, {t2}", f"v_lshl_or_b32 {t2}, {t0}, 11, {t2}",
              f"s_add_u32 {sldsc}, {sldsw}, 131072", f"v_or_b32 {t2}, {sldsc}, {t2}",
              f"v_xor_b32 {vcr[0]}, {vcr[0]}, {t2}", f"v_xor_b32 {vcr[1]}, {vcr[1]}, {t2}",
              f"v_and_b32 {t1}, 15, {vlane}", f"v_lshlrev_b32 {t2}, 1, {t0}", f"v_xor_b32 {t1}, {t1}, {t2}", f"v_lshlrev_b32 {t1}, 4, {t1}",
              f"v_mad_u32_u24 {vco[0]}, {t0}, {spstr}, {t1}", f"v_xor_b32 {t1}, 128, {t1}", f"v_mad_u32_u24 {vco[1]}, {t0}, {spstr}, {t1}"])
        L = []
        for p in range(8):
            L.append(f"s_add_u32 m0, {sldsc}, {p*1024}")
            if p % 2: L.append(f"s_add_u32 {sxo}, {sprow}, {spA}")
            elif p: L.append(f"s_add_u32 {sprow}, {sprow}, {spB}")
            L.append(f"buffer_load_dwordx4 {vco[(p >> 1) & 1]}, {sP}, {sxo if p % 2 else sprow} offen lds ; tag=pp")
        return L
    def att_setup():
        L = Kern("x")
        srd(L, sCT, pWS, 16 * MB, WS_CTX)
        L(f"v_mov_b32 {vinf}, {NEGINF}")
        L(f"s_or_b32 {st0}, {sldsw}, 0x10000"); L(f"v_or_b32 {vrc}, {st0}, {vl16}")
        L(f"s_and_b32 {st0}, {swave}, 1"); L(f"s_lshl_b32 {skv}, {st0}, 13")
        L(f"s_cmp_ge_u32 {swave}, 2"); L(f"s_cselect_b32 {st1}, {512*1024-16384}, 0"); L(f"s_add_u32 {skv}, {skv}, {st1}"); L(f"s_add_u32 {skv}, {skv}, 8192")
        L(f"s_cmp_eq_u32 {swave}, 2"); L(f"s_cselect_b32 {scnt}, 0, {skv}")
        for g in range(2):
            L(f"s_lshr_b32 {st1}, {srg[g]}, 1"); L(f"s_lshl_b32 {sctx[g]}, {st1}, 19")
            L(f"s_lshl_b32 {st1}, {sh}, 14"); L(f"s_add_u32 {sctx[g]}, {sctx[g]}, {st1}")
            L(f"s_lshl_b32 {st1}, {st0}, 11"); L(f"s_add_u32 {sctx[g]}, {sctx[g]}, {st1}")
        L(f"s_lshr_b32 {snS}, {srg[0]}, 1"); L(f"s_add_u32 {snS}, {snS}, 1")
        L(f"s_mov_b32 {sflag}, 0")
        L(f"v_and_b32 {t0}, 15, {vlane}"); L(f"v_lshrrev_b32 {t1}, 4, {vlane}"); L(f"v_lshlrev_b32 {t1}, 2, {t1}"); L(f"v_sub_u32 {t0}, {t0}, {t1}")
        for r in range(4): L(f"v_cmp_le_i32 {mT[r]}, {r}, {t0}")
        L(f"s_cmp_eq_u32 {st0}, 0"); L(f"s_cselect_b64 {mC}, 0, -1")
        for r in range(4):
            L(f"s_or_b64 {mA[r]}, {mT[r]}, {mC}"); L(f"s_and_b64 {mB[r]}, {mT[r]}, {mC}")
        L(f"v_mov_b32 {t0}, 0x3f803f80"); L(f"v_mov_b32 {t1}, 0")
        for j in range(4): L(f"v_accvgpr_write_b32 {ONES[j]}, {t0}")
        for r in range(4): L(f"v_cndmask_b32 {MK[r]}, {vinf}, {t1}, {mA[r]}")
        L(f"v_mov_b32 {vthr}, {f2h(thr)}")
        if SMF:
            L(f"v_lshrrev_b32 {t1}, 4, {vlane}"); L(f"v_xor_b32 {t1}, {t1}, {vlane}"); L(f"v_bfe_u32 {t1}, {t1}, 1, 1"); L(f"v_add_u32 {t1}, -1, {t1}"); L(f"v_and_b32 {t1}, {t0}, {t1}")
            for j in range(4): L(f"v_accvgpr_write_b32 {SPA[j]}, {t1}")
            for j in range(8): L(f"v_accvgpr_write_b32 {LA[j]}, 0")
            L(f"v_and_b32 {t1}, 1, {vlane}"); L(f"v_mul_u32_u24 {t1}, 0xaaaa, {t1}"); L(f"v_add_u32 {vidx}, 0x4444, {t1}")
        return L.L
    streams = []
    def add_ops(L, rel, dl, dma=False):
        pre = []; n = 0; out = []
        for x in L:
            if x.startswith("buffer_") or x.startswith("global_"):
                out.append(dict(rel=rel[n] * 16, dl=dl[n] * 16, pre=pre, op=x, post=[], dma=dma)); pre = []; n += 1
            else: pre.append(x)
        assert n == len(rel) == len(dl), (n, len(rel))
        out[-1]["post"] = pre
        streams.append(out)
    lin = lambda t0_, t1_, n: [t0_ + (t1_ - t0_) * i / n for i in range(n)]
    rep = lambda L, n: [x for x in L for _ in range(n)]
    PBf = lambda n: PB.sub(4 * n, 4)
    PA = a(160, 32)
    kst = [f"buffer_store_dwordx4 {PBf(s*4+rb)}, {vl16}, {sKV}, {sst[rb]} offen offset:{s*1024} {STF} ; tag=kst" for s in range(4) for rb in range(4)]
    vst = [f"buffer_store_dwordx4 {PBf(cb*2+t)}, {vl16}, {sKV}, {sst[2*t+cb//4]} offen offset:{(cb%4)*1024} {STF} ; tag=vst" for cb in range(8) for t in range(2)]
    pst = [f"s_add_u32 {sprow}, {spd}, {spe3}"]
    for x in range(8):
        pst.append(f"buffer_store_dwordx4 {PA.sub(4*x,4)}, {vl16}, {sPD}, {spA if x % 2 else spd} offen {STF} ; tag=pst")
        if x % 2 == 0: pst.append(f"s_add_u32 {spA}, {spd}, {spe1}")
        elif x % 4 == 1: pst.append(f"s_add_u32 {spd}, {spd}, {spe2}")
        elif x == 3: pst.append(f"s_mov_b32 {spd}, {sprow}")
    sfl1 = st2
    LC = opt.get("lc", 4.5); SCST = opt.get("sc", 11.5); SMIN = opt.get("smin", 14)
    add_ops(cdma(1) + cdma(2) + cdma(3), rep([0, 0, 0, 0, 5, 6, 7, 8, 13, 14, 15, 16], 4), rep([0, 1, 2, 3, 7, 8, 9, 10, 15, 16, 17, 18], 4), True)
    WL = opt.get("wl", 9)
    add_ops(sum((wd(st) for st in range(2, 12)), []), rep(WREL, 8),
            rep([4, 11, 19], 8) + sum((lin(8 * st - 1 - WL - 6, 8 * st - 1 - WL + 2, 8) for st in range(5, 12)), []), True)
    XT = opt.get("xt"); S0S = 1 if XT else 2
    add_ops(xnst, [8, 8], [0, 0] if XT else [10.5, 10.6])
    add_ops([poll_issue("pz", vinf, sDB, 0)], [13], [0 if XT else 13])
    add_ops(kst, [max(27.2 + 2 * (n // 4), opt.get("k0", 27)) for n in range(16)], lin(28, opt.get("k1", 42), 16))
    for tm, L in touches:
        if tm >= 0: add_ops(L, [tm], [tm])
    TP0 = opt.get("tp0", 19) if XT else 33
    add_ops([poll_issue("p0", vm1, sFL, 0)], [TP0], [0 if XT else 33])
    if XT:
        nl = 128 // len(XT)
        L = poll_check("p0", vm1, sFL, 0, 16) + [f"s_bitcmp1_b32 {sh}, 1\ns_cselect_b32 {st0}, {srg[1]}, {srg[0]}", f"s_lshl_b32 {st0}, {st0}, 1", f"s_and_b32 {st1}, {sh}, 1",
             f"s_add_u32 {st0}, {st0}, {st1}", f"s_lshl_b32 {st0}, {st0}, 14", f"v_and_b32 {t0}, {64 - nl}, {vlane}", f"v_lshlrev_b32 {t0}, 25, {t0}", f"v_lshl_or_b32 {t0}, {vlane}, 7, {t0}"]
        for n_ in range(len(XT)):
            L += [f"buffer_load_dword {vpoll}, {t0}, {sXN}, {st0} offen {SC}", f"s_add_u32 {st0}, {st0}, {nl*128}"]
        add_ops(L, list(XT), list(XT))
    add_ops(sum((xloads(c) for c in range(4)), []), rep([40, 48, 56, 64], 16),
            lin(42, 50, 16) + lin(50, 58, 16) + lin(58, 74, 16) + lin(opt.get("x3", 74), 83, 16))
    add_ops(([f"s_lshl_b32 {st1}, {swave}, 24"] + [f"s_add_u32 {sst[i]}, {sst[i]}, {st1}" for i in range(4)] if opt.get("xv") else []) + [f"s_add_u32 {sst[i]}, {sst[i]}, {512*1024}" for i in range(4)] + vst, [58.2 + n // 2 for n in range(16)], lin(58, opt.get("v1", 77), 16))
    ppd = prep_dma()
    tp1 = opt.get("tp1", 88); TS1 = int(opt.get("ts1", 85)); s1e = sxo; s1l = srot
    s1set = [f"s_lshl_b32 {sfl1}, {sh}, 10", f"s_lshl_b32 {s1l}, {si}, 7", f"s_add_u32 {s1l}, {s1l}, {sfl1}",
             f"v_and_b32 {vm1}, 56, {vlane}", f"v_lshlrev_b32 {vm1}, 25, {vm1}", f"v_lshl_or_b32 {vm1}, {vlane}, 7, {vm1}",
             f"s_cmp_eq_u32 {swave}, 0\ns_cselect_b32 {s1e}, 8, 0"]
    s1sig = ["WAITVM vst", "s_barrier", csignal(swave, [signal(sFL, sfl1, vm1) + " offset:12"]),
             f"s_lshl_b32 {sfl1}, {swave}, 28", f"v_mov_b32 {vm1}, {sfl1}", f"s_lshl_b32 {sfl1}, {sh}, 8", f"s_add_u32 {sfl1}, {sfl1}, 32768"]
    add_ops([poll_issue("p1", vm1, sFL, s1l, 12)], [tp1], [0])
    add_ops(poll_check("p1", vm1, sFL, s1l, s1e, 12) + ["s_barrier"] + kvdma(0, "kv0") + kvdma(1, "kv1"), [tp1 + 2.5] * 16, [90] * 16, True)
    slots = {}; Tp = 1.0; owner = None; lastst = -99
    while any(streams):
        cand = []
        for sm in streams:
            if not sm: continue
            o = sm[0]
            if o["dma"] and owner is not None and owner is not sm: continue
            r = o["rel"]
            if "store_dwordx4" in o["op"]: r = max(r, lastst + SMIN)
            cand.append((max(r, Tp), o["dl"], id(sm), sm))
        now = min(c[0] for c in cand)
        sm = min((c for c in cand if c[0] <= now + 1), key=lambda c: c[1])[3]
        o = sm.pop(0)
        g = int(math.ceil(max(now, o["rel"])))
        while g % 16 == 15 or g in slots: g += 1
        slots[g] = o
        big = "dwordx4" in o["op"]
        st_ = "store" in o["op"]
        lc_ = opt.get("lc2", 5.0) if 40 * 16 <= g < 88 * 16 else LC
        Tp = max(now, g - 1) + (((opt.get("scv", SCST) if "vst" in o["op"] else SCST) if st_ else lc_) if big else (2 if "atomic" in o["op"] or "tag=p" in o["op"] else 8))
        if big and st_: lastst = g
        if o["dma"]: owner = sm if sm and not any("m0" in x for x in sm[0]["pre"]) else None
    assert max(slots) < 96 * 16 - 2, max(slots)
    lastv = max(79 * 16, max(g for g in slots if "tag=vst" in slots[g]["op"])); firstkv = min(g for g in slots if "tag=kv0" in slots[g]["op"])
    assert lastv < TS1 * 16 - 8 and tp1 >= TS1
    if opt.get("showsched"):
        for g in sorted(slots):
            m_ = re.search(r"tag=(\S+)", slots[g]["op"]); print(f"{g/16:.2f}:{m_.group(1) if m_ else '-'}", end=" ")
        print()
    sW = sXN; sow = ssc; s7 = mU[0]
    Wd = lambda ks, cb: a(160 + ks * 8 + cb * 4, 4) if ks < 12 else v(32 + (ks - 12) * 8 + cb * 4, 4) if ks < 20 else a((ks - 20) * 8 + cb * 4, 4)
    def wl(s): return [f"buffer_load_dwordx4 {Wd(2*s+c//2,c%2)}, {vl16}, {sW}, {sow} offen offset:{c*1024} {SC} ; tag=dw{s}" for c in range(4)] + [f"s_xor_b32 {sow}, {sow}, {(s ^ (s + 1)) * 4096}"]
    U = Kern("x")
    srd(U, sW, pWS, 4 * MB, WS_WOP)
    U(f"s_and_b32 {st0}, {si}, 3"); U(f"s_lshl_b32 {st0}, {st0}, 2"); U(f"s_add_u32 {st0}, {st0}, {swave}"); U(f"s_lshl_b32 {sow}, {st0}, 18")
    U(f"s_bfe_u32 {st0}, s2, 0x20001"); U(f"s_lshl_b32 {st0}, {st0}, 16"); U(f"s_add_u32 {sow}, {sow}, {st0}")
    DR = 3 if opt.get("drot", 0) else 0
    U(f"s_and_b32 {st0}, {si}, {DR}"); U(f"s_lshl_b32 {st0}, {st0}, 14"); U(f"s_add_u32 {sow}, {sow}, {st0}")
    U(f"v_and_b32 {vm1}, 31, {vlane}"); U(f"v_lshlrev_b32 {vm1}, 8, {vm1}"); U(f"v_add_u32 {vm1}, 32768, {vm1}"); U(f"s_mov_b32 {s7}, 1"); U(f"s_mov_b32 {mX[1]}, 0")
    wset = glue(U.L)
    U = Kern("x"); ssa = mU[1]; sp2 = mX[0]
    U(f"s_lshr_b32 {ssa}, {srg[0]}, 1"); U(f"s_lshl_b32 {ssa}, {ssa}, 2"); U(f"s_lshr_b32 {st0}, {sh}, 3"); U(f"s_add_u32 {ssa}, {ssa}, {st0}"); U(f"s_lshl_b32 {ssa}, {ssa}, 9")
    U(f"s_bfe_u32 {sp2}, s2, 0x20001"); U(f"s_lshl_b32 {sp2}, {sp2}, 2"); U(f"s_and_b32 {st1}, {si}, 3"); U(f"s_add_u32 {sp2}, {sp2}, {st1}")
    U(f"s_and_b32 {st1}, s2, 0xe0"); U(f"s_add_u32 {sp2}, {sp2}, {st1}"); U(f"s_and_b32 {st1}, s2, 1"); U(f"s_lshl_b32 {st1}, {st1}, 4"); U(f"s_add_u32 {sp2}, {sp2}, {st1}")
    U(f"s_lshl_b32 {sp2}, {sp2}, 7"); U(f"s_lshr_b32 {st1}, {swave}, 1"); U(f"s_lshl_b32 {st1}, {st1}, 30"); U(f"s_add_u32 {sp2}, {sp2}, {st1}")
    wset0 = glue(U.L)
    drainq = []; auxq = []; carry = []; npk = [0]
    def drain_q(ta, tb, dst):
        p = PB.sub(4 * (npk[0] % 4), 4); npk[0] += 1
        return pack(p, ta, tb) + [f"v_accvgpr_write_b32 {dst[j]}, {p[j]}" for j in range(4)]
    k(trreads(0, 1, WF, vtr, vtrb, WSL)[0])
    order = sorted(slots)
    k.ext(slots[order[0]]["pre"]); slots[order[0]]["pre"] = []
    allG = []
    for st in range(12):
        for cb in range(8):
            t = st * 8 + cb
            G = Gaps(cb_mfmas(st, cb, ACC, WF, R, swap=4 <= st < 8))
            for g in range(16):
                if 16 * t + g in slots: G.put(g, slots[16 * t + g]["op"])
            free = [g for g in range(15) if not G.g[g]]
            extra = []; w_ = None
            if st < 3 and cb >= 4:
                q_ = cb - 4; w_ = f"WAITVM c{st+1}q{q_}"; extra = creads(st + 1)[4 * q_:4 * q_ + 4]
            pos = free[:8]
            if extra: pos = [free[0], free[0], free[1], free[1]] + free[2:6]
            if t < 95:
                for g, x in zip(pos, trreads((t + 1) // 8, (t + 1) % 8, WF, vtr, vtrb, WSL)[1:]): G.put(g, x)
            if w_: G.put(pos[-1], w_)
            for g, x in zip(free[6:10], extra): G.put(g, x)
            if t < 94: G.put(15, trreads((t + 2) // 8, (t + 2) % 8, WF, vtr, vtrb, WSL)[0])
            if t < 95:
                if cb == 7 and 7 <= st <= 10: G.put(15, f"WAITVM x{st-7} lgkm=0")
                else: G.put(15, "s_waitcnt lgkmcnt(0)")
            allG.append(G)
    prev = 0
    def place(L, lo, hi):
        g = lo
        for x in L:
            while g < hi and allG[g // 16].cost(g % 16) + icost(x) > 8: g += 1
            allG[g // 16].put(g % 16, x)
    for n, gpos in enumerate(order):
        L = (slots[order[n - 1]]["post"] if n else []) + slots[gpos]["pre"]
        lo = prev
        if slots[gpos]["pre"] and slots[gpos]["pre"][0].startswith("WAITVM"): lo = max(lo, gpos - 8)
        place(L, lo, gpos - 1)
        prev = gpos
    place(slots[order[-1]]["post"], prev, 96 * 16 - 1)
    for st in range(12):
        if st == 5: auxq += presetup
        for cb in range(8):
            G = allG[st * 8 + cb]
            if cb == 7 and st < 11:
                tags = f"w{st+1}" + (",z" if st == S0S else "")
                k(f"WAITVM {tags}"); k("s_barrier")
                if st == S0S: auxq += poll_check("pz", vinf, sDB, 0, 44) + [csignal(swave, [signal(sFL, st2)])]
            if st == 9 and cb == 0: auxq += s1set + wset0
            if st * 8 + cb == TS1: k.ext(s1sig)
            if st * 8 + cb == lastv // 16 + 1: auxq += glue(att_setup())
            if st * 8 + cb == firstkv // 16 - 1: assert not auxq
            if st * 8 + cb == firstkv // 16 + 1: auxq += wset
            if st == 4 and cb == 6 and not XT: auxq += poll_check("p0", vm1, sFL, 0, 16)
            if st == 0 and cb < 7 and cb >= opt.get("ln0", 2):
                nper = -(-len(lnq) // (7 - cb)); g = 0
                for n_ in range(nper):
                    G.put((n_ * 15) // nper, lnq.pop(0))
            if st == 0 and cb == 7:
                assert not lnq
                for g_, x in zip((12, 13), xnrd): G.put(g_, x)
            if st == 1 and cb == 0: auxq += p0adr
            sched(G, auxq, 0, 14)
            sched(G, drainq, 1, 14)
            G.emit(k)
            if st == 3 and cb % 2 == 1:
                for rb in range(4): drainq += pack(PBf((cb // 2) * 4 + rb), T(cb - 1, rb), T(cb, rb))
            if st == 7:
                for t in range(2): drainq += pack(PBf(cb * 2 + t), T(cb, 2 * t), T(cb, 2 * t + 1))
            if st == 11 and cb % 2 == 1:
                for rb in range(4): drainq += drain_q(T(cb - 1, rb), T(cb, rb), Qf(rb // 2, rb % 2, cb // 2))
        k.ext(stamp(f"st{st}"))
    assert not auxq
    seen = {}
    for n, ln in enumerate(k.L):
        if ln.startswith("v_cvt_pk") or ln.startswith("ds_read_b64_tr"): seen[ln.split()[1].rstrip(",")] = n
        if "tag=kst" in ln or ("tag=vst" in ln and str(sKV) in ln):
            b = int(re.search(r"v\[(\d+):", ln).group(1))
            assert all(seen.pop(f"v{b+j}", None) is not None for j in range(4)), ln

    OFF = {"K0": 0, "K1": 8192, "V0": 16384, "V1": 24576}
    def rd(dst, f, src, va): return f"ds_read_b128 {dst.sub(4*f,4)}, {va} offset:{OFF[src] + f*1024}"
    def ph_pv(groups, par, first=False, lfirst=False):
        mf = []; lu = {}; fu = {}
        def lsum():
            for g in groups:
                if SMF:
                    mf.append(f"v_smfmac_f32_16x16x64_bf16 {LA.sub(4*g,4)}, {SPA}, {SB[par].sub(16*g,8)}, {vidx}"); continue
                for qb in range(2):
                    l = LA.sub((g * 2 + qb) * 4, 4)
                    mf.append(f"{MF} {l}, {ONES}, {St(par,g,qb,0)}, {'0' if first else l}")
        if lfirst: lsum()
        for db in range(8):
            for g in groups:
                for qb in range(2):
                    fu.setdefault(db, len(mf)); lu[db] = len(mf)
                    mf.append(f"{MF} {O(g,db,qb)}, {FV.sub(4*db,4)}, {St(par,g,qb,0)}, {'0' if first else O(g,db,qb)}")
        if not lfirst: lsum()
        return mf, fu, lu, FV
    def ph_qk(groups, par, cfun):
        mf = []; lu = {}; fu = {}
        for kb in range(2):
            for g in groups:
                for qb in range(2):
                    d = St(par, g, qb, kb)
                    for ks in range(4):
                        f = 4 * kb + ks
                        fu.setdefault(f, len(mf)); lu[f] = len(mf)
                        mf.append(f"{MF} {d}, {FK.sub(4*f,4)}, {Qf(g,qb,ks)}, {cfun(g,qb,kb) if ks == 0 else d}")
        return mf, fu, lu, FK
    cplain = lambda g, qb, kb: NM.sub((g * 2 + qb) * 4, 4)
    def maskops(which, mtri, mc, base, full=True, MK=MK):
        L = []; tiles = {}
        for kb in range(2):
            for qb in range(2):
                t = MK.sub((qb * 2 + kb) * 4, 4); tiles[(qb, kb)] = t
                if kb < qb and which == "a" and not full:
                    tiles[(qb, kb)] = None; continue
                for r in range(4):
                    if kb == qb: m = mtri[r]
                    elif kb > qb: m = mc if which == "a" else "none"
                    else: m = None if which == "a" else mc
                    if m is None: L.append(f"v_mov_b32 {t[r]}, {base(qb, r)}")
                    elif isinstance(m, str): L.append(f"v_mov_b32 {t[r]}, {vinf}")
                    else: L.append(f"v_cndmask_b32 {t[r]}, {vinf}, {base(qb, r)}, {m}")
        return L, tiles
    def waits_last(G):
        for g in range(G.n):
            w = [y for y in G.g[g] if y.startswith("s_waitcnt")]
            G.g[g] = [y for y in G.g[g] if not y.startswith("s_waitcnt")] + w
    def build(phases, va):
        mf = []; start = []
        for p in phases:
            start.append(len(mf)); mf += p[0]
        start.append(len(mf))
        G = Gaps(mf)
        for g, m in enumerate(mf):
            if m.startswith("v_smfmac"): G.put(g, "; (longer issue)")
        for pi, (m, fu, lu, regs, nxt, w) in enumerate(phases):
            if nxt:
                for f in range(8): G.put(start[pi] + lu[f], rd(regs, f, nxt, va))
            if w == "split":
                G.put(start[pi] + fu[0] - 1, "s_waitcnt lgkmcnt(4)"); G.put(start[pi] + fu[4] - 1, "s_waitcnt lgkmcnt(0)")
            elif w is not None: G.put(start[pi] - 1, f"s_waitcnt lgkmcnt({w})")
        return G, start
    def softmax(G, lo, hi, par, groups, pre=None):
        els = [(g, qb, kb, r) for kb in range(2) for g in groups for qb in range(2) for r in range(4)]
        n = len(els)
        free = [x for x in range(lo, hi) if G.cost(x) == 0]
        if len(free) >= n: pos = [free[(i * len(free)) // n] for i in range(n)]
        else:
            cand = sorted((G.cost(x) + 8 * rep, x) for x in range(lo, hi) for rep in range(2))
            pos = sorted(x for _, x in cand[:n])
        gcv = lo
        for (g, qb, kb, r), p in zip(els, pos):
            s = St(par, g, qb, kb)
            G.put(p, f"v_exp_f32 {s[r]}, {s[r]}")
        for (g, qb, kb, r), p in zip(els, pos):
            if r % 2 == 1:
                s = St(par, g, qb, kb); c = 2 * kb + r // 2
                lo_ = max(gcv, p + 1)
                gcv = G.add(f"v_cvt_pk_bf16_f32 {St(par,g,qb,0)[c]}, {s[r-1]}, {s[r]}", lo_, min(hi, lo_ + opt.get("cvl", 10)))
    DEF = opt.get("defsig", 0); spd_ = mX[1]
    def sigP():
        return f"s_sub_u32 {spd_}, {spd_}, 1\n" + csignal(spd_, [signal(sFL, sfl1) + " offset:128"])
    rl = TMP.sub(0, 2)
    def recip(g):
        rd_ = [f"v_accvgpr_read_b32 {rl[qb]}, {LA[(g*2+qb)*4]}" for qb in range(2)]
        if SMF:
            rd_ = [f"v_accvgpr_read_b32 {TMP[(j%2)*2 + j//2]}, {LA[4*g+j]}" for j in range(4)] + [f"v_add_f32 {rl[qb]}, {rl[qb]}, {TMP[2+qb]}" for qb in range(2)]
        return rd_ + [
            f"v_add_f32 {t1}, {rl[0]}, {rl[1]}", f"v_cmp_nlt_f32 vcc, {t1}, {vthr}", f"v_rcp_f32 {rl[0]}, {rl[0]}", f"v_rcp_f32 {rl[1]}, {rl[1]}"]
    def pair(pvA, qkA, smA, pvB, qkB, smB, dma=True, mask=None, loop=None, endwait=8, extra=(), prep=False, wpre=(),
             first=False, static=None, lastk=False, fin=None, wmix=(), head=()):
        va = static[0] if static else vra
        ph = []; pm = []
        def cf(which):
            if mask is None: return cplain
            L, tiles = maskops(which, mA if which == "a" else mB, mC, lambda qb, r: NM[(mask * 2 + qb) * 4 + r], full=False,
                               MK=SB[1].sub(0, 16) if mask == 1 and which == "b" else MK)
            if mask == 0: pm.append((len(ph) - 1, L))
            return lambda g, qb, kb: (tiles[(qb, kb)] or cplain(g, qb, kb)) if g == mask else cplain(g, qb, kb)
        ph.append(ph_pv(pvA, 0, first) + ("V0", None))
        if qkA: c = cf("a"); ph.append(ph_qk(qkA, 0, c) + ("K0", 8))
        nb = len(ph)
        if qkB:
            ph.append(ph_pv(pvB, 1) + ("V1", 8))
            c = cf("b"); ph.append(ph_qk(qkB, 1, c) + (None if lastk else "K1", 8))
        else: ph.append(ph_pv(pvB, 1, lfirst=True) + (None, "split"))
        G, start = build(ph, va)
        n = G.n
        packed = static and opt.get("pack", 1)
        if packed:
            for pi in range(4):
                rds = [(g, x) for g in range(start[pi], start[pi + 1]) for x in G.g[g] if x.startswith("ds_read")]
                for g, x in rds: G.g[g].remove(x)
                for f, (g, x) in enumerate(rds):
                    if packed == 2 and pi % 2: G.g[g if f >= 4 else start[pi] + (5 if f < 2 else opt.get("rr2", 8))].insert(0 if f >= 4 else 9, x)
                    else: G.put(rds[f | 1][0], x)
            if packed == 2:
                G.put(n - 1, f"s_waitcnt vmcnt({endwait}) lgkmcnt(8)"); endwait = None
            else:
                G.g[start[2] - 1].remove("s_waitcnt lgkmcnt(8)"); G.put(start[2] - 2, "s_waitcnt lgkmcnt(6)")
                G.put(n - 2, f"s_waitcnt vmcnt({endwait}) lgkmcnt(6)"); endwait = None
        G.put(0, "s_barrier")
        if not static: G.put(0, f"v_xor_b32 {vra}, m0, {vrc}")
        for n_, x in enumerate(head): G.put(1 + n_, x); G.put(1 + n_, "; (several)")
        single = len(pvA) == 1
        def putmem(x, g, own):
            if own:
                while g < n - 2 and G.cost(g) != 0: g += 1
            else:
                while g < n - 2 and not (G.cost(g) == 4 and G.g[g][0].startswith("ds_read")): g += 1
            G.put(g, x); return g
        later = []
        d0 = 0
        d1 = n
        if prep == 1:
            g_ = 0; c = 0; hl_ = [f"s_mov_b32 {st0}, m0"]
            for x in ppd:
                if ismem(x):
                    g_ = putmem(x, max(g_ + 2, 2 + c * opt.get("pps", 9)), True); c += 1
                    for y in hl_: G.put(g_ - 1, y)
                    hl_ = []
                else: hl_.append(x)
            G.put(g_ + 1, f"s_mov_b32 m0, {st0}")
            d0 = g_ + 4
        if prep == 2:
            G.put(1, "s_waitcnt vmcnt(8)"); g = 2
            for x_ in range(8):
                if g % 4 == 3: g += 1
                for hf in range(2): G.put(g, f"ds_read_b64_tr_b16 {PA.sub(4*x_+2*hf,2)}, {vcr[x_%2]} offset:{hf*1024}")
                if x_ < 6: G.put(g, f"v_xor_b32 {vcr[x_%2]}, {64*((x_//2) ^ (x_//2+1))}, {vcr[x_%2]}")
                g += 1
            g_ = 0; c = 0
            G.put(20, "s_waitcnt lgkmcnt(2)")
            for x in pst:
                if ismem(x): g_ = putmem(x, 21 + c * opt.get("pss", 14 if DEF else 9), True); c += 1
                else: G.put(g_ + 1 if c else 2, x)
            d0 = 12 if DEF else g_ + 2
        mem = list(wpre); g_ = 0; c = 0
        for x in mem:
            if ismem(x): g_ = 1 + 4 * c; G.put(g_, x); c += 1; d0 = 1 if packed else d0
            else: G.put(g_ + 2, x)
        if dma:
            D = [f"buffer_load_dwordx4 {vl16 if p < 4 else vl16b}, {sKV}, {skv} offen offset:{(p%4)*1024} {SC} lds" for p in range(8)]
            pos = []; lo = 2 if static else 1
            for p in range(8):
                g = putmem(D[p], max(lo, d0 + 1 + (p * (d1 - d0 - 6)) // 8), not single or packed)
                pos.append(g); lo = g + (2 if p == 3 else 1)
            nm_ = sum(ismem(x) for x in wmix); c = 0; g_ = 1
            for x in wmix:
                if ismem(x): g_ = putmem(x, max(g_ + 2, 4 + (c * (n - 12)) // nm_), True); c += 1; assert g_ < n - 2
                else: G.put(g_ + 1, x)
            if static:
                G.put(0, f"s_mov_b32 m0, {static[1]}")
                later = [(f"s_add_u32 m0, {static[1]}, 4096", pos[3], pos[4] - 1), (f"s_add_u32 {skv}, {skv}, 16384", pos[7], n - 1)]
            else:
                later = [(f"s_add_u32 m0, m0, 4096", pos[3], pos[4] - 1),
                         (f"s_add_u32 {skv}, {skv}, 16384", pos[7], d1 - 1), (f"s_add_u32 m0, m0, {32768-4096}", pos[7], d1 - 1)]
        elif fin is None or qkA: later = [(f"s_add_u32 m0, m0, 32768", 1, n - 1)]
        if smA: softmax(G, 1, start[nb] - 2, 1, smA)
        if smB: softmax(G, start[nb], n - 2, 0, smB)
        for (pi, L) in pm: G.chain(L, start[pi] + 1, start[pi + 1] - 3)
        if fin is not None: G.chain(recip(fin), (start[nb + 1] if qkB else start[nb] + 2) + 4, n - 1)
        gl = 0
        for x, lo, hi in later: gl = G.add(x, lo, hi)
        if later and not static: gl = G.add("s_and_b32 m0, m0, 0x1ffff", gl, d1 - 1)
        if loop: G.add(f"s_sub_u32 {scnt}, {scnt}, 1", gl, n - 2)
        waits_last(G)
        k.ext(extra); G.emit(k)
        if endwait is not None: k(f"s_waitcnt vmcnt({endwait}) lgkmcnt({0 if lastk else 8})")
        if loop: k(f"s_cbranch_scc0 {loop}")
    def epilogue(kk, g, lsrc=None, fill=()):
        fill = list(fill); per = -(-len(fill) // 7)
        if lsrc is None:
            kk(f"s_cmp_lg_u64 vcc, 0"); kk(f"s_cselect_b32 {st0}, {1 << g}, 0"); kk(f"s_or_b32 {sflag}, {sflag}, {st0}")
        else:
            for qb in range(2): kk(f"v_rcp_f32 {rl[qb]}, {lsrc[qb]}")
        n = 0
        for s in range(4):
            kk(f"s_add_u32 {ssoff}, {sctx[g]}, {s*4096}")
            for qb in range(2):
                p = TMP.sub(4 + 4 * (n % 3), 4); n += 1
                sel = "op_sel_hi:[1,0]" if qb == 0 else "op_sel:[0,1]"
                for db in (2 * s, 2 * s + 1):
                    for r in (0, 2): kk(f"v_pk_mul_f32 {O(g,db,qb).sub(r,2)}, {O(g,db,qb).sub(r,2)}, {rl} {sel}")
                kk.ext(pack(p, O(g, 2 * s, qb), O(g, 2 * s + 1, qb)))
                kk(f"buffer_store_dwordx4 {p}, {vl16}, {sCT}, {ssoff} offen offset:{qb*1024} {SC} ; tag=cst")
                for _ in range(min(per, len(fill))): kk(fill.pop(0))
    k("WAITVM kv0"); k("s_barrier")
    for f in range(8): k(rd(FK, f, "V0", vl16))
    k.ext(drainq); drainq = []
    def prologue(masked):
        mx = [TMP[j] for j in range(4)]; mt = [TMP[4 + j] for j in range(4)]
        nmb = lambda qb, r: NM[qb * 4 + r]
        La, ta = maskops("a", mA, mC, nmb, full=False); Lb_, tb = maskops("b", mB, mC, nmb)
        def c0(g, qb, kb):
            if kb == 0: return MK.sub(0, 4) if masked and g == 0 and qb == 0 else "0"
            return ta[(qb, kb)] if masked and g == 0 else cplain(g, qb, kb)
        c1 = lambda g, qb, kb: tb[(qb, kb)] if masked and g == 0 else cplain(g, qb, kb)
        G, start = build([ph_qk([0, 1], 0, c0) + ("K0", None), ph_qk([0, 1], 1, c1) + ("K1", "split")], vl16)
        G.g[47] = [y.replace("lgkmcnt(0)", "lgkmcnt(4)") for y in G.g[47]]
        for f in range(8): G.put(f, rd(FV, f, "V1", vl16))
        G.put(15, "s_waitcnt lgkmcnt(12)")
        d2 = kvdma(2, "kv2"); g = 0
        for x in d2:
            if ismem(x): g += 1; G.put(g, x); g += 3
            else: G.put(g, x)
        for j in range(4):
            s = St(0, j // 2, j % 2, 0); g = 4 * j + 6
            G.put(g, f"v_max3_f32 {mx[j]}, {s[0]}, {s[1]}, {s[2]}"); G.put(g, f"v_max_f32 {mx[j]}, {mx[j]}, {s[3]}")
            G.put(g + 1, f"v_mov_b32 {mt[j]}, {mx[j]}")
            G.put(g + 3, f"v_permlane16_swap_b32 {mx[j]}, {mt[j]}"); G.put(g + 3, f"v_max_f32 {mx[j]}, {mx[j]}, {mt[j]}")
            G.put(g + 4, f"v_mov_b32 {mt[j]}, {mx[j]}")
            G.put(g + 6, f"v_permlane32_swap_b32 {mx[j]}, {mt[j]}"); G.put(g + 6, f"v_max_f32 {mx[j]}, {mx[j]}, {mt[j]}")
            for r in range(4): G.put(g + 7 + r // 2, f"v_sub_f32 {NM[4*j+r]}, 0, {mx[j]}")
            if masked and j < 2:
                for x in La[4 + 4 * j:8 + 4 * j]: G.put(g + 8, x)
        G.chain([f"v_sub_f32 {St(0,j//2,j%2,0)[r]}, {St(0,j//2,j%2,0)[r]}, {mx[j]}" for j in range(4) for r in range(4)], 25, 31)
        if masked: G.chain(Lb_, 26, 30)
        softmax(G, 32, 63, 0, [0, 1])
        waits_last(G)
        k("s_waitcnt lgkmcnt(4)")
        G.emit(k)
        k(f"s_add_u32 m0, {sldsw}, {3*32768}")
        k("s_waitcnt vmcnt(8) lgkmcnt(8)")
    k("VMRESET")
    D = [0, 1]
    pa = lambda c: csignal(c, [poll_issue("pa", vm1, sFL, 0, 128)])
    pax = lambda: [f"s_xor_b32 {st0}, {si}, 6", pa(st0), f"s_mov_b32 {mT[1][1]}, m0"]
    hp = lambda: [sigP()] if DEF else []
    wls = lambda a_, b_: sum((wl(s_) for s_ in range(a_, b_)), [])
    U = Kern("x")
    vsa = vtrb
    U(f"v_and_b32 {t0}, 60, {vlane}"); U(f"v_lshlrev_b32 {t0}, 25, {t0}"); U(f"v_lshl_or_b32 {vsa}, {vlane}, 7, {t0}")
    sigA = lambda: csignal(snS, [signal(sFL, ssa, vsa)], [f"s_mov_b32 {snS}, 1"])
    SM0 = [mT[0][0], mT[0][1], mT[1][0], mT[1][1]]; VA = [SB[0][j] for j in range(4)]
    for j in range(4):
        if j < 3: U(f"s_add_u32 {SM0[j]}, {SM0[j-1]}, 32768"); U(f"s_and_b32 {SM0[j]}, {SM0[j]}, 0x1ffff")
    tset = glue(U.L)
    k(f"s_cmp_eq_u32 {snS}, 1"); k(f"s_cbranch_scc1 {Lb('P1')}")
    prologue(False)
    k.ext(stamp("pro"))
    LAY = opt.get("lay", 1)
    def path_p1():
        target("P1", False)
        prologue(True)
        pair(D, [1], D, D, [1], [1], endwait=None, extra=pax(), first=True, fin=0)
        k(f"s_branch {Lb('TE')}")
    def path_dm0(fall):
        k.label(Lb("DM0"))
        pair(D, D, D, D, D, D, mask=0, first=True)
        if not fall: k(f"s_branch {Lb('T')}")
    def path_dmp():
        target("DMP", False)
        pair(D, D, D, D, D, D, mask=0, prep=2, endwait=16 if DEF else 8)
        k(f"s_mov_b32 {spd_}, 2" if DEF else signal(sFL, sfl1) + " offset:128")
        k(f"s_branch {Lb('T')}")
    def path_d(fall):
        target("D1", fall)
        pair(D, D, D, D, D, D, prep=1, first=True, endwait=16)
        k(f"s_cmp_eq_u32 {snS}, 3"); k(f"s_cbranch_scc1 {Lb('DMP')}")
        if opt.get("cyc"): k.ext(stamp("d1"))
        k(f"s_sub_u32 {snS}, {snS}, 4"); k(f"s_lshr_b32 {scnt}, {snS}, {1 if opt.get('stag', 1) else 8}"); k(f"s_sub_u32 {snS}, {snS}, {scnt}")
        k(f"s_sub_u32 {scnt}, {scnt}, 1"); k(f"s_cbranch_scc1 {Lb('P2')}")
        k(".p2align 6"); k.label(Lb("D"))
        pair(D, D, D, D, D, D, loop=Lb("D"), head=[f"s_or_b32 {st0}, {scnt}, {s7}\n" + pa(st0)] + hp())
        k(f"s_cmp_eq_u32 {snS}, -1"); k(f"s_cbranch_scc1 {Lb('DM')}")
        k.label(Lb("P2"))
        pair(D, D, D, D, D, D, prep=2, endwait=16 if DEF else 8)
        k(f"s_mov_b32 {spd_}, 2" if DEF else signal(sFL, sfl1) + " offset:128")
        k(f"s_xor_b32 {s7}, {si}, 7"); k(f"s_sub_u32 {scnt}, {snS}, 1"); k(f"s_mov_b32 {snS}, -1"); k(f"s_cbranch_scc0 {Lb('D')}")
        target("DM", True)
        if opt.get("cyc"): k.ext(stamp("dm"))
        k(f"s_cmp_eq_u32 {si}, 7"); k(f"s_cbranch_scc1 {Lb('DM7')}")
        pair(D, D, D, D, D, D, mask=0, head=hp())
        if not fall: k(f"s_branch {Lb('T')}")
    def path_dm7():
        target("DM7", False)
        k.ext(chk7)
        pair(D, D, D, D, D, D, mask=0, wmix=wls(0, 6), endwait=32)
        k(f"s_branch {Lb('T')}")
    chk7 = poll_check("pa7", vm1, sFL, 0, 28, 128)[1:]
    main = k.L; k.L = []
    path_p1(); path_dmp(); path_dm7()
    if LAY: path_d(False)
    else: path_dm0(False)
    tail.L += k.L; k.L = main
    if LAY:
        k(f"s_cmp_lg_u32 {snS}, 2"); k(f"s_cbranch_scc1 {Lb('D1')}"); path_dm0(True)
    else:
        k(f"s_cmp_eq_u32 {snS}, 2"); k(f"s_cbranch_scc1 {Lb('DM0')}"); path_d(True)
    target("T", True)
    if opt.get("cyc"): k.ext(stamp("t"))
    pair(D, [1], D, D, [1], [1], endwait=None, extra=pax(), fin=0, head=hp())
    target("TE", True)
    nml = lambda qb, r: NM[(2 + qb) * 4 + r]
    epilogue(k, 0, fill=tset + [f"s_mov_b32 {snS}, {sflag}"] + [f"v_xor_b32 {VA[j]}, {SM0[j]}, {vrc}" for j in range(4)]
             + maskops("a", mA, mC, nml, full=False)[0] + maskops("b", mB, mC, nml, MK=SB[1].sub(0, 16))[0])
    k("s_waitcnt vmcnt(16) lgkmcnt(8)")
    k.ext(hp())
    k.ext(stamp("sdone"))
    k(f"s_cmp_eq_u32 {si}, 7"); k(f"s_cbranch_scc1 {Lb('SM')}")
    k(f"s_sub_u32 {scnt}, 5, {si}"); k(f"s_cbranch_scc1 {Lb('SL')}")
    k(".p2align 6"); k.label(Lb("S"))
    for j in range(4):
        pair([1], [1], [1], [1], [1], [1], static=(VA[j], SM0[j]), loop=Lb("S") if j == 3 else None, wpre=[pa(scnt)] if j == 2 else [sigA()] if j == 1 else [])
    k.label(Lb("SL"))
    k.ext(poll_check("pa", vm1, sFL, 0, 28, 128)[1:])
    we = wls(0, 6)
    for j in range(4):
        L = []
        while sum(ismem(x) for x in L) < 6 or (we and not ismem(we[0])): L.append(we.pop(0))
        pair([1], [1], [1], [1], [1], [1], static=(VA[j], SM0[j]), wpre=[sigA()] if j == 1 else [], wmix=L, endwait=14)
    k(f"s_mov_b32 m0, {SM0[0]}")
    k.label(Lb("SM"))
    if opt.get("cyc"): k.ext(stamp("sm"))
    k("VMRESET")
    NW1 = opt.get("nw1", 10); NW2 = 10
    pair([1], [1], [1], [1], [1], [1], dma=False, mask=1, endwait=4 * (NW1 - 6), wpre=wls(6, NW1), lastk=True)
    k(sigA())
    k(poll_issue("p2a0", vsig, sFL, sp2))
    pair([1], None, [1], [1], None, None, dma=False, endwait=None, wpre=wls(NW1, NW2), fin=1)
    k.ext(stamp("ldone"))
    S.reset(mark0)
    sng = S(); smd = S(); sme = S(); skq = S(); scg = S(); soa = S(); sflD = S(); sflE = S(); sclD = S(); sclE = S(); ssg = S()
    sexp = S(); sw0 = S(); so1 = S(); shf = S(); sxo2 = S(); sstt = S(); spl = S(); shl = S(); ssl = S(); shm = S(); sfb = S(); sfr = S()
    psk = S(3, 1)
    pX = S(2); pO = S(4); pB1 = S(2)
    sAct = S(4); sXO = S(4); sHF = S(4); sST = S(4); sW1 = S(4); sB = S(4); sHM = S(4); sPT = S(4)
    mD = [pX, pB1, sKV[0:2], sKV[2:4]]
    vb = X16.sub(0, 2); vw2 = X16.sub(2, 2); vw = X16.sub(4, 3); vrd = X16[7]; vrow = X16[8]; vg16 = X16[9]; RM = X16.sub(10, 2); ON = X16.sub(12, 4)
    DF = a(96, 48); PL = a(144, 12); XRr = [a(156, 4), v(204, 4)]; PS = v(160, 12); DA = v(172, 12); EA = v(184, 8); B1 = v(192, 12)
    STT = v(208, 8); HP = v(216, 4); SEL = v(220, 6); KC = v(228, 4); C1 = v(232, 24)
    BF = v(104, 24); EACC = v(136, 24); SL = v(160, 8); G0 = v(172, 8); PK = [v(192, 4), v(196, 4)]
    vbc = vsig
    vb4 = vm0; vb4s = vm2; vl4 = vtrb; vso = vtr; vp2 = t2
    F2A, F3, F4, FP, F2B = 0, (4, 32), (8, 36), (20, 40), 28
    def wpoll(tag, sf, imm, d=vpoll): return f"buffer_load_dword {d}, {vm1}, {sFL}, {sf} offen offset:{imm} {SC} ; tag={tag}"
    def wcheck(tag, n, sf, imm, d=vpoll, va=None):
        return ([f"s_and_b32 {sexp}, {sw0}, {n}"] if va is None else [f"s_mov_b32 {sexp}, {n}"]) + [f"s_mov_b32 {sspin}, {SPIN}"] + ([f"WAITVM {tag}"] if va is None else []) + [
                Lb("spl" + tag) + ":", f"v_readfirstlane_b32 {ssoff}, {d}", "s_nop 0",
                f"s_cmp_ge_u32 {ssoff}, {sexp}", f"s_cbranch_scc1 {Lb('back'+tag)}",
                f"NOCOUNT buffer_load_dword {d}, {va or vm1}, {sFL}, {sf} offen offset:{imm} {SC}",
                f"s_sub_u32 {sspin}, {sspin}, 1", "NOCOUNT s_waitcnt vmcnt(0)", f"s_cbranch_scc0 {Lb('spl'+tag)}",
                Lb("back" + tag) + ":"]
    U = Kern("x")
    U(f"s_load_dwordx2 {pX}, s[0:1], 0"); U(f"s_load_dwordx4 {pO}, s[0:1], 80"); U(f"s_load_dwordx2 {pB1}, s[0:1], 64")
    U(f"s_bfe_u32 {skq}, s2, 0x20001"); U(f"s_lshr_b32 {smd}, s2, 5"); U(f"s_lshl_b32 {smd}, {smd}, 1"); U(f"s_and_b32 {st0}, s2, 1"); U(f"s_add_u32 {smd}, {smd}, {st0}")
    U(f"s_lshl_b32 {sclD}, {smd}, 11"); U(f"s_and_b32 {scg}, {si}, 3"); U(f"s_lshl_b32 {ssg}, {scg}, 7"); U(f"s_add_u32 {ssg}, {ssg}, {sclD}")
    U(f"s_lshl_b32 {sflD}, {skq}, 9"); U(f"s_add_u32 {sflD}, {sflD}, {ssg}")
    srd(U, sAct, pWS, 16 * MB, WS_CTX)
    U(f"s_lshl_b32 {soa}, {smd}, 19"); U(f"s_lshl_b32 {st0}, {skq}, 17"); U(f"s_add_u32 {soa}, {soa}, {st0}"); U(f"s_add_u32 {soa}, {soa}, {sldsw}")
    U(f"s_and_b32 {st0}, {si}, {DR}"); U(f"s_lshl_b32 {st0}, {st0}, 15"); U(f"s_add_u32 {soa}, {soa}, {st0}")
    for r in range(4):
        U(f"s_xor_b32 {st0}, {skq}, {r}"); U(f"s_lshl_b32 {st0}, {st0}, 10"); U(f"v_add_u32 {DA[3*r]}, {st0}, {vl16}")
        U(f"v_add_u32 {DA[3*r+1]}, 65536, {DA[3*r]}"); U(f"v_add_u32 {DA[3*r+2]}, 131072, {DA[3*r]}")
    dset = glue(U.L)
    def a0dma():
        k(f"s_add_u32 {st1}, {soa}, {sldsw}"); k(f"s_lshl_b32 {st2}, {sldsw}, 1")
        for p in range(16):
            if p % 4 == 0: k(f"s_add_u32 m0, {st2}, {131072 + (p//4)*4096}")
            if p == 8: k(f"s_add_u32 {st1}, {st1}, 8192")
            elif p % 4 == 0: k("s_nop 0")
            k(f"NOCOUNT buffer_load_dwordx4 {vl16 if p % 8 < 4 else vl16b}, {sAct}, {st1} offen offset:{(p%4)*1024} {SC} lds")
    k("WAITVM p2a0")
    k.ext(dset[:3])
    sa0 = sw0
    k(f"s_lshr_b32 {sa0}, {swave}, 1")
    if opt.get("ea0", 0):
        k(f"s_cmp_ge_u32 {swave}, 2"); k(f"s_cbranch_scc1 {Lb('nb')}")
        k(f"v_readfirstlane_b32 {ssoff}, {vpoll}"); k.ext([x for x in dset[3:] if x.startswith("s_")])
        k(f"s_cmp_lt_u32 {ssoff}, 16"); k(f"s_cbranch_scc1 {Lb('nb0')}")
        a0dma(); k(f"s_mov_b32 {sa0}, 1")
        k.label(Lb("nb0")); k("s_barrier"); k.label(Lb("nb"))
        epilogue(k, 1, fill=dset[3:])
    else:
        epilogue(k, 1, fill=dset[3:])
        k(f"s_cmp_ge_u32 {swave}, 2"); k(f"s_cbranch_scc1 {Lb('nb')}"); k("s_barrier"); k.label(Lb("nb"))
    k(f"s_cmp_lg_u32 {sflag}, 0"); k(f"s_cbranch_scc1 {Lb('fallback')}")
    k.label(Lb("fbret"))
    f_ = tail
    f_.label(Lb("fallback"))
    f_("s_waitcnt vmcnt(0) lgkmcnt(0)")
    f_(f"v_and_b32 {t0}, 15, {vlane}"); f_(f"v_lshrrev_b32 {t1}, 4, {vlane}"); f_(f"v_lshlrev_b32 {t1}, 2, {t1}"); f_(f"v_sub_u32 {t0}, {t0}, {t1}")
    for r in range(4): f_(f"v_cmp_le_i32 {mA[r]}, {r}, {t0}")
    for g in range(2):
        F2 = ACC.sub(64 * (1 - g), 64)
        f_(f"s_and_b32 {st0}, {sflag}, {1 << g}"); f_(f"s_cbranch_scc0 {Lb(f'fbdone{g}')}")
        M = NM.sub(0, 2); AL = NM.sub(2, 2); LL = [NM.sub(4, 4), NM.sub(8, 4)]; MN = NM.sub(12, 2); MT = NM.sub(14, 2)
        for j in range(64): f_(f"v_mov_b32 {ACC[g*64+j]}, 0")
        for qb in range(2):
            f_(f"v_mov_b32 {M[qb]}, {vinf}")
            for r in range(4): f_(f"v_mov_b32 {LL[qb][r]}, 0")
        f_(f"v_mov_b32 {t2}, 0"); f_(f"s_mov_b32 {scnt}, 0")
        f_.label(Lb(f"fb{g}"))
        f_(f"s_lshl_b32 {st0}, {scnt}, 13"); f_(f"s_add_u32 {st1}, {st0}, {512*1024}")
        for f in range(16):
            f_(f"buffer_load_dwordx4 {F2.sub(4*f,4)}, {vl16 if f % 8 < 4 else vl16b}, {sKV}, {st0 if f < 8 else st1} offen offset:{(f%4)*1024} {SC}")
        f_(f"s_cmp_eq_u32 {scnt}, {srg[g]}"); f_(f"s_cselect_b64 {mX}, 0, -1")
        for r in range(4): f_(f"s_or_b64 {mT[r]}, {mA[r]}, {mX}")
        L, tiles = maskops("a", mT, mX, lambda qb, r: t2)
        f_.ext(L)
        f_("s_waitcnt vmcnt(0)")
        for kb in range(2):
            for qb in range(2):
                d = Sq(0, 0, qb).sub(4 * kb, 4)
                for ks in range(4):
                    f_(f"{MF} {d}, {F2.sub(4*(4*kb+ks),4)}, {Qf(g,qb,ks)}, {tiles[(qb,kb)] if ks == 0 else d}")
        f_("s_nop 7")
        for qb in range(2):
            s = Sq(0, 0, qb)
            f_(f"v_max3_f32 {MN[qb]}, {s[0]}, {s[1]}, {s[2]}"); f_(f"v_max3_f32 {MN[qb]}, {MN[qb]}, {s[3]}, {s[4]}")
            f_(f"v_max3_f32 {MN[qb]}, {MN[qb]}, {s[5]}, {s[6]}"); f_(f"v_max3_f32 {MN[qb]}, {MN[qb]}, {s[7]}, {M[qb]}")
        allreduce(f_, [MN[0], MN[1]], [MT[0], MT[1]], op="v_max_f32", cross_only=True)
        for qb in range(2):
            s = Sq(0, 0, qb)
            f_(f"v_sub_f32 {AL[qb]}, {M[qb]}, {MN[qb]}"); f_(f"v_exp_f32 {AL[qb]}, {AL[qb]}"); f_(f"v_mov_b32 {M[qb]}, {MN[qb]}")
            for e in range(8): f_(f"v_sub_f32 {s[e]}, {s[e]}, {MN[qb]}")
            for e in range(8): f_(f"v_exp_f32 {s[e]}, {s[e]}")
            for db in range(8):
                for r in range(4): f_(f"v_mul_f32 {O(g,db,qb)[r]}, {O(g,db,qb)[r]}, {AL[qb]}")
            for r in range(4): f_(f"v_mul_f32 {LL[qb][r]}, {LL[qb][r]}, {AL[qb]}")
            for c in range(4): f_(f"v_cvt_pk_bf16_f32 {s[c]}, {s[2*c]}, {s[2*c+1]}")
        f_("s_nop 1")
        for qb in range(2):
            for db in range(8):
                f_(f"{MF} {O(g,db,qb)}, {F2.sub(4*(8+db),4)}, {Sq(0,0,qb).sub(0,4)}, {O(g,db,qb)}")
            f_(f"{MF} {LL[qb]}, {ONES}, {Sq(0,0,qb).sub(0,4)}, {LL[qb]}")
        f_("s_nop 7")
        f_(f"s_add_u32 {scnt}, {scnt}, 1"); f_(f"s_cmp_le_u32 {scnt}, {srg[g]}"); f_(f"s_cbranch_scc1 {Lb(f'fb{g}')}")
        epilogue(f_, g, [LL[0][0], LL[1][0]])
        f_.label(Lb(f"fbdone{g}"))
    f_("s_waitcnt vmcnt(0)")
    f_(f"s_xor_b32 {sow}, {sow}, {(10 ^ 6) * 4096}"); f_.ext(wls(6, 10))
    f_(f"s_andn2_b32 {snS}, 1, {sflag}")
    f_(sigA().replace("NOCOUNT ", "")); f_("s_waitcnt vmcnt(0)"); f_.ext(dset); f_(f"s_branch {Lb('fbret')}")

    k(f"s_cmp_lg_u32 {sa0}, 0"); k(f"s_cbranch_scc1 {Lb('na0')}")
    k.ext(wcheck("p2a", 16, sflD, F2A, va=vsig))
    a0dma()
    k.label(Lb("na0"))
    k(f"s_xor_b32 {soa}, {soa}, 32768")
    k(f"s_cmp_ge_u32 {swave}, 2"); k(f"s_cbranch_scc1 {Lb('na1')}"); k("NOCOUNT s_waitcnt vmcnt(0)"); k.label(Lb("na1"))
    k("s_waitcnt lgkmcnt(0)"); k("s_barrier")
    k.ext(stamp("dgo"))
    DSL = [4, 0, 1, 2, 3, 4, 0, 1]
    def sdma(slot, sd, so, tag, inc=32768):
        L = []
        for p in range(8):
            if p % 4 == 0: L.append(f"s_add_u32 m0, {sldsw}, {slot*32768 + (p//4)*4096}")
            L.append(f"buffer_load_dwordx4 {vl16 if p < 4 else vl16b}, {sd}, {so} offen offset:{(p%4)*1024} {SC} lds ; tag={tag}")
        return L + [f"s_add_u32 {so}, {so}, {inc}" if so is so1 else f"s_xor_b32 {so}, {so}, {inc}"]
    cd = lambda st: sdma(DSL[st], sAct, soa, f"a{st}", ((st ^ (st + 1)) & 3) * 32768 + (8 * MB if st == 3 else 0))
    w1d = lambda n: sdma(2 + n, sW1, so1, f"w1{n}")
    TY = lambda ch, rb, cb: v(96 + 32 * ch + (rb * 2 + cb) * 4, 4)
    dun = [(st, rb, kh) for st in range(8) for rb in ((1, 2, 3, 0) if st % 4 == 3 else range(4)) for kh in range(2)]
    DFu = lambda u, ks: DF.sub(16 * (u % 3) + 4 * ks, 4)
    def dreads(u):
        st, rb, kh = dun[u]; o = DSL[st] * 32768
        return [f"ds_read_b128 {DFu(u,ks)}, {DA[3*rb + o // 65536]} offset:{o % 65536 + kh*16384 + ks*4096}" for ks in range(4)]
    def take_mem(src):
        L = []
        while src and not ismem(src[0]): L.append(src.pop(0))
        if src: L.append(src.pop(0))
        return L
    k.ext(dreads(0)); k.ext(dreads(1))
    U = Kern("x")
    U(f"s_cmp_eq_u32 {swave}, 0"); U(f"s_cselect_b32 {sw0}, -1, 0"); U(f"s_cselect_b32 {st0}, 0, 0x80000000")
    U(f"v_or_b32 {vm1}, {st0}, {vsig}")
    U(f"v_and_b32 {t0}, 15, {vlane}"); U(f"v_lshl_or_b32 {t0}, {t0}, 7, {st0}")
    U(f"v_and_b32 {t1}, 48, {vlane}"); U(f"v_lshl_or_b32 {vbc}, {t1}, 25, {t0}")
    U(f"v_and_b32 {t1}, 60, {vlane}"); U(f"v_lshl_or_b32 {vb4}, {t1}, 25, {t0}")
    U(f"v_and_b32 {t0}, 3, {vlane}"); U(f"v_lshl_or_b32 {t0}, {t0}, 9, {st0}"); U(f"v_lshl_or_b32 {vb4s}, {t1}, 25, {t0}")
    U(f"s_lshr_b32 {st0}, {sh}, 3"); U(f"s_lshl_b32 {st0}, {st0}, 9"); U(f"s_lshl_b32 {sdb}, {si}, 12"); U(f"s_sub_u32 {sdb}, {14*2048}, {sdb}"); U(f"s_add_u32 {sdb}, {sdb}, {st0}")
    nU0 = len(glue(U.L))
    if opt.get("emap", 0) == 0:
        U(f"s_bfe_u32 {sng}, s2, 0x40003")
        U(f"s_lshr_b32 {st0}, s2, 7"); U(f"s_lshl_b32 {st0}, {st0}, 3"); U(f"s_and_b32 {sme}, s2, 7"); U(f"s_add_u32 {sme}, {sme}, {st0}")
    else:
        U(f"s_bfe_u32 {sng}, s2, 0x10005"); U(f"s_lshl_b32 {sng}, {sng}, 1"); U(f"s_and_b32 {st0}, s2, 1"); U(f"s_add_u32 {sng}, {sng}, {st0}")
        U(f"s_lshl_b32 {sng}, {sng}, 2"); U(f"s_and_b32 {st0}, {si}, 3"); U(f"s_add_u32 {sng}, {sng}, {st0}")
        U(f"s_lshl_b32 {sme}, {skq}, 2"); U(f"s_lshr_b32 {st0}, s2, 6"); U(f"s_add_u32 {sme}, {sme}, {st0}")
    U(f"s_lshl_b32 {sclE}, {sme}, 11"); U(f"s_lshl_b32 {sflE}, {sng}, 7"); U(f"s_add_u32 {sflE}, {sflE}, {sclE}")
    U(f"s_lshl_b32 {st0}, {smd}, 2"); U(f"s_add_u32 {st0}, {st0}, {scg}"); U(f"s_mul_i32 {st0}, {st0}, {2*49152}"); U(f"s_add_u32 {st0}, {st0}, {WS_PART}")
    srd(U, sPT, pWS, 2 * 49152, st0)
    U(f"s_lshl_b32 {st2}, {swave}, 10")
    for r in range(1, 4):
        U(f"s_xor_b32 {st0}, {skq}, {r}"); U(f"s_mul_i32 {st0}, {st0}, 12288"); U(f"s_add_u32 {st0}, {st0}, {st2}"); U(f"s_add_u32 {psk[r-1]}, {st0}, {(r-1)*4096}")
    U(f"s_mul_i32 {spl}, {skq}, 12288"); U(f"s_add_u32 {spl}, {spl}, {st2}")
    U(f"s_lshl_b32 {scg}, {scg}, 2"); U(f"s_add_u32 {scg}, {scg}, {swave}")
    U(f"s_lshl_b32 {st2}, {smd}, 2"); U(f"s_add_u32 {st2}, {st2}, {skq}")
    U(f"s_lshl_b32 {shf}, {st2}, 14"); U(f"s_lshl_b32 {st0}, {scg}, 6"); U(f"s_add_u32 {sxo2}, {shf}, {st0}")
    U(f"s_lshl_b32 {st0}, {scg}, 10"); U(f"s_add_u32 {shf}, {shf}, {st0}")
    U(f"s_lshl_b32 {sstt}, {st2}, 11"); U(f"s_lshl_b32 {st0}, {scg}, 7"); U(f"s_add_u32 {sstt}, {sstt}, {st0}")
    U(f"v_and_b32 {t0}, 15, {vlane}"); U(f"v_lshrrev_b32 {t1}, 4, {vlane}"); U(f"v_lshlrev_b32 {vg16}, 4, {t1}")
    U(f"v_lshl_add_u32 {vrow}, {t0}, 10, {vg16}")
    srd(U, sXO, pX, 2 * MB); srd(U, sB, pB1, 2752)
    srd(U, sHF, pWS, 2 * MB, WS_HF); srd(U, sST, pWS, 256 * 1024, WS_STAT); srd(U, sW1, pWS, 88 * 16384, WS_W1P)
    U(f"s_mul_i32 {so1}, {sng}, {6*16384}"); U(f"s_add_u32 {so1}, {so1}, {sldsw}")
    U(f"v_bfe_u32 {t0}, {vlane}, 2, 2"); U(f"v_lshrrev_b32 {t1}, 4, {vlane}"); U(f"v_sub_u32 {t1}, {t1}, {t0}"); U(f"v_and_b32 {t1}, 3, {t1}")
    U(f"v_and_b32 {t0}, 1, {vlane}"); U(f"v_lshlrev_b32 {t0}, 4, {t0}"); U(f"v_mov_b32 {SEL[0]}, 0x3f80"); U(f"v_lshlrev_b32 {t0}, {t0}, {SEL[0]}")
    U(f"v_bfe_u32 {SEL[1]}, {vlane}, 1, 1"); U(f"v_lshl_or_b32 {SEL[1]}, {t1}, 1, {SEL[1]}")
    U(f"v_cmp_eq_u32 vcc, 0, {SEL[1]}"); U(f"v_cndmask_b32 {SEL[2]}, 0, {t0}, vcc")
    U(f"v_cmp_eq_u32 vcc, 1, {SEL[1]}"); U(f"v_cndmask_b32 {SEL[3]}, 0, {t0}, vcc")
    for j in (0, 1, 4, 5): U(f"v_mov_b32 {SEL[j]}, 0")
    U(f"v_and_b32 {t0}, 15, {vlane}"); U(f"v_lshlrev_b32 {t0}, 2, {t0}"); U(f"v_xor_b32 {vso}, 1, {t1}"); U(f"v_and_b32 {vso}, 1, {vso}")
    U(f"v_lshl_or_b32 {t0}, {vso}, 6, {t0}"); U(f"v_lshrrev_b32 {t1}, 1, {t1}"); U(f"v_lshl_or_b32 {vso}, {t1}, 31, {t0}")
    for j, c in enumerate((0x22222222, 0x44444444, 0x88888888)): U(f"s_mov_b32 {mD[j][0]}, {c}"); U(f"s_mov_b32 {mD[j][1]}, {c}")
    U(f"s_mov_b32 {mD[3][0]}, 0x00f0000f"); U(f"s_mov_b32 {mD[3][1]}, 0xf0000f00")
    for j in range(4): U(f"v_mov_b32 {ON[j]}, 0x3f803f80")
    U(f"v_lshlrev_b32 {vl4}, 2, {vlane}")
    K1 = 2 * math.sqrt(2 / math.pi) * math.log2(math.e)
    U(f"v_mov_b32 {KC[0]}, {f2h(-K1 * 0.044715)}"); U(f"v_mov_b32 {KC[1]}, {f2h(-K1)}"); U(f"v_mov_b32 {KC[2]}, 1.0")
    U(f"s_mul_i32 {st0}, {sme}, {43*4096}"); U(f"s_add_u32 {st0}, {st0}, {WS_HM}")
    srd(U, sHM, pWS, 43 * 4096, st0)
    U(f"s_mul_i32 {shm}, {sng}, {3*4096}"); U(f"s_lshl_b32 {st0}, {swave}, 10"); U(f"s_add_u32 {shm}, {shm}, {st0}")
    U(f"s_lshl_b32 {ssl}, {sme}, 2"); U(f"s_add_u32 {ssl}, {ssl}, {swave}"); U(f"s_lshl_b32 {shl}, {ssl}, 14"); U(f"s_lshl_b32 {ssl}, {ssl}, 11")
    U(f"s_and_b32 {st2}, {sng}, {opt.get('erot', 3)}"); U(f"s_lshl_b32 {st2}, {st2}, 12"); U(f"s_add_u32 {shl}, {shl}, {st2}")
    for kq in range(4):
        U(f"s_xor_b32 {st0}, {st2}, {65536 + kq*4096}"); U(f"v_add_u32 {EA[2*kq]}, {st0}, {vl16}"); U(f"v_add_u32 {EA[2*kq+1]}, 65536, {EA[2*kq]}")
    U(f"s_lshr_b32 {st0}, {sng}, 3"); U(f"s_lshl_b32 {st0}, {st0}, 1"); U(f"s_and_b32 {st2}, {swave}, 1"); U(f"s_add_u32 {st0}, {st0}, {st2}")
    U(f"s_lshl_b32 {st0}, {st0}, 10"); U(f"v_add_u32 {vb[0]}, {st0}, {vl16}"); U(f"v_xor_b32 {vb[1]}, 1024, {vb[0]}")
    U(f"s_lshr_b32 {st0}, {swave}, 1"); U(f"s_lshl_b32 {st0}, {st0}, 11"); U(f"v_add_u32 {vw2[0]}, {st0}, {vl16}"); U(f"v_xor_b32 {vw2[1]}, 2048, {vw2[0]}")
    for r in range(4):
        U(f"s_xor_b32 {st0}, {swave}, {r}"); U(f"s_mul_i32 {st0}, {st0}, 6144")
        if r > 1: U(f"s_add_u32 {st0}, {st0}, {(r-1)*2048}")
        U(f"v_add_u32 {vw[r-1] if r else vrd}, {st0}, {vl16}")
    U(f"s_mul_i32 {sfb}, {swave}, {11*4096}")
    U(f"s_lshr_b32 {sfr}, s2, 6"); U(f"s_lshl_b32 {sfr}, {sfr}, 1"); U(f"s_xor_b32 {sfr}, {sfr}, {si}"); U(f"s_and_b32 {sfr}, {sfr}, {opt.get('frot', 0)}"); U(f"s_lshl_b32 {sfr}, {sfr}, 12")
    vq = glue(U.L); nU = len(vq)
    xq = [f"buffer_load_dwordx4 {XRr[0]}, {vrow}, {sXO}, {sxo2} offen ; tag=e", f"s_add_u32 {st1}, {sxo2}, {MB}",
          f"buffer_load_dwordx4 {XRr[1]}, {vrow}, {sXO}, {st1} offen ; tag=e"]
    bq = [f"v_lshrrev_b32 {vinf}, 1, {vg16}", f"s_mul_i32 {sdb}, {sng}, 192"]
    bq += [f"buffer_load_dwordx2 {B1.sub(2*fb,2)}, {vinf}, {sB}, {sdb} offen offset:{fb*32} ; tag=e" for fb in range(6)]
    SELm = [SEL.sub(2, 4), SEL.sub(0, 4)]
    def addfrag(t0_, t1_, fr): return [f"{MF} {t}, {SELm[cb]}, {fr}, {t}" for cb, t in enumerate((t0_, t1_))]
    def pll(ch, so=st1):
        L = []
        for j in range(3):
            L += [f"s_add_u32 {so}, {spl}, {ch*49152 + j*4096}", f"buffer_load_dwordx4 {PL.sub(4*j,4)}, {vl16}, {sPT}, {so} offen {SC} ; tag=pl{ch}"]
        return L
    def red1(ch):
        L = [f"WAITVM pl{ch},e"]
        for fr in [XRr[ch]] + [PL.sub(4 * j, 4) for j in range(3)]: L += addfrag(TY(ch, 0, 0), TY(ch, 0, 1), fr)
        return L
    def red2(ch):
        return pack(HP, TY(ch, 0, 0), TY(ch, 0, 1)) + [f"buffer_store_dwordx4 {HP}, {vl16}, {sHF}, {shf} offen {SC} ; tag=hst{ch}", f"s_add_u32 {shf}, {shf}, {MB}",
                f"{MF} {STT.sub(0,4)}, {HP}, {HP}, 0", f"{MF} {STT.sub(4,4)}, {ON}, {HP}, 0"]
    def red3(ch):
        return [f"v_cndmask_b32 {STT[0]}, {STT[0]}, {STT[1+j]}, {mD[j]}" for j in range(3)] + [f"v_cndmask_b32 {STT[0]}, {STT[4]}, {STT[0]}, {mD[3]}",
                f"buffer_store_dword {STT[0]}, {vso}, {sST}, {sstt} offen {SC} ; tag=hst{ch}", f"s_add_u32 {sstt}, {sstt}, {64*2048}"]
    W2 = lambda s, cb: Wd(2 * s + cb // 2, cb % 2)
    def foff(d, s): return [f"s_xor_b32 {d}, {sfr}, {s*4096}", f"s_add_u32 {d}, {d}, {sfb}"] if s < 8 else [f"s_add_u32 {d}, {sfb}, {s*4096}"]
    def w2l(s): return foff(sow, s) + [f"buffer_load_dwordx4 {W2(s,c)}, {vw2[c//2]}, {sW}, {sow} offen offset:{(c%2)*1024} {SC} ; tag=w2" for c in range(4)]
    U = Kern("x"); U(f"s_and_b32 {st2}, {sng}, 7"); U(f"s_mul_i32 {st2}, {st2}, {43*4096}"); U(f"s_add_u32 {st2}, {st2}, {WS_W2P}"); srd(U, sW, pWS, 43 * 4096, st2)
    w2srd = glue(U.L)
    lw = lambda a_, b_: sum((wl(s) for s in range(max(a_, NW2), b_)), [])
    W2D = opt.get("w2d", (0, 0, 0))
    w2o = list(range(11))
    w2n = lambda n: sum((w2l(w2o.pop(0)) for _ in range(n)), [])
    wsig = lambda so, vo, *offs: csignal(swave, [signal(sFL, so, vo) + f" offset:{o}" for o in offs])
    sigs = {6: wsig(sdb, vb4, F2B, 2048 + F2B), 38: wsig(ssg, vb4s, FP[0]), 60: wsig(sclD, vbc, F3[0])}
    UB = opt.get("ub", 22); UC = opt.get("uc", 46); RA = opt.get("ra", UC + 6); U3 = opt.get("u3", 60)
    LATE = opt.get("late", 0); sig3a = sigs[60]
    sigs = {6: sigs[6], 38: sigs[38]}
    if not LATE: sigs[U3] = sig3a
    adds = {0: cd(1) + cd(2) + lw(0, 12) + cd(3) + lw(12, 16), UB - 3: [wpoll("p2b", sflD, F2B)], 22: cd(5) + xq + bq,
            32: cd(6) + cd(7), 40: w1d(0) + w2n(W2D[0]), UC - 3: [wpoll("ppa", sflD, FP[0])],
            48: w1d(1) + w2n(W2D[1]), 54: w1d(2) + w2n(W2D[2])}
    front = (UB - 3, UC - 3)
    mq = []; stq = []; nxt = [0]
    for u, (st, rb, kh) in enumerate(dun):
        ch = st // 4
        lg = 4 if u < 63 else 0
        tags = []
        if u % 8 < 2 and ch == 0 and 4 * st + 2 * kh + 1 >= 6: tags.append(f"dw{4*st + 2*kh + 1}")
        if u % 8 == 6 and st < 7: tags.append(f"a{st+1}")
        if u == 6: tags.append("cst")
        if u == 38: tags.append("ps0")
        if u == U3: tags += ["w11"] if LATE else ["hst0", "w11"]
        if u == UB: k.ext(wcheck("p2b", 8, sflD, F2B)); mq += cd(4)
        if u == UC: k.ext(wcheck("ppa", 4, sflD, FP[0]))
        if tags: k(f"WAITVM {','.join(tags)} lgkm={lg}")
        else: k(f"s_waitcnt lgkmcnt({lg})")
        if (u % 8 == 6 and st < 7) or u in (UB, UC, U3): k("s_barrier")
        if u in sigs: k(sigs[u])
        if u == 32: k.ext(stamp("da"))
        elif opt.get("fineD") and u % 8 == 0 and u: k.ext(stamp(f"u{u}"))
        if u in adds:
            if u in front:
                mq = adds[u] + mq
            else: mq += adds[u]
        if u == UC: mq = pll(0) + mq; nxt[0] = 0
        if u == RA: k.ext(red1(0))
        if u == RA + 1: k.ext(red2(0))
        if u == RA + 2: k.ext(red3(0))
        mf = [f"{MF} {TY(ch,rb,cb)}, {Wd(8*(st%4)+4*kh+ks,cb)}, {DFu(u,ks)}, {'0' if st % 4 == 0 and kh == 0 and ks == 0 else TY(ch,rb,cb)}" for cb in ((1, 0) if kh and opt.get("zz", 0) else (0, 1)) for ks in range(4)]
        G = Gaps(mf)
        if u < 62:
            for g, x in zip((0, 2, 4, 6), dreads(u + 2)): G.put(g, x)
        pace = opt.get("pa_", 3.0) if u < 30 else opt.get("pb_", 4.0)
        for g in (1, 3, 5):
            if 8 * u + g < nxt[0] and not (u in front and g == 1): continue
            if stq: G.put(g, stq.pop(0)); nxt[0] = max(nxt[0], 8 * u + g - 1) + 2 * pace
            elif mq:
                L = take_mem(mq)
                for x in L: G.put(g if ismem(x) else g - 1, x)
                nxt[0] = max(nxt[0], 8 * u + g - 1) + (pace if "dwordx4" in L[-1] else 2)
        sched(G, vq, 4 if st % 4 == 3 else 0, 7, stq)
        G.emit(k)
        if u == 5: assert len(vq) <= nU - nU0
        if u == 21:
            k.ext(vq); vq = []
        if st % 4 == 3 and rb and kh:
            p = PS.sub(4 * (rb - 1), 4)
            vq += pack(p, TY(ch, rb, 0), TY(ch, rb, 1)) + [("st", f"buffer_store_dwordx4 {p}, {vl16}, {sPT}, {psk[rb-1]} offen {SC} ; tag=ps{ch}")]
        if u == 38: vq += w2srd + [f"s_add_u32 {psk[r]}, {psk[r]}, 49152" for r in range(3)]
        if u == 47:
            vq.append("WAITVM e")
            for j in range(12): vq += [f"v_lshlrev_b32 {BF[2*j]}, 16, {B1[j]}", f"v_and_b32 {BF[2*j+1]}, 0xffff0000, {B1[j]}"]
    assert not vq, vq
    k.ext(stq); emit_dma(mq)
    k.ext(stamp("dmm"))

    H = a(32, 64)
    TE = lambda fb: EACC.sub(fb * 4, 4)
    seqk = [(fb, kq, ks) for kq in range(4) for fb in range(6) for ks in range(4)]
    seq = [(fb, kq, ks) for fb in range(6) for kq in range(4) for ks in range(4)] + seqk + seqk
    EWn = lambda n: DF.sub(4 * (n % 12), 4)
    def erd(n):
        fb, kq, ks = seq[n]
        return f"ds_read_b128 {EWn(n)}, {EA[2*kq + fb // 4]} offset:{(fb % 4)*16384 + ks*1024}"
    def hl(ch):
        L = []
        for kq in range(4):
            L.append(f"s_xor_b32 {st1}, {shl}, {ch*MB + kq*4096}")
            L += [f"buffer_load_dwordx4 {H.sub(16*kq+4*ks,4)}, {vl16}, {sHF}, {st1} offen offset:{ks*1024} {SC} ; tag=h{ch}{kq}" for ks in range(4)]
        L.append(f"s_add_u32 {st1}, {ssl}, {ch*64*2048}")
        return L + [f"buffer_load_dword {SL[j]}, {vl4}, {sST}, {st1} offen offset:{j*256} {SC} ; tag=st{ch}" for j in range(8)]
    def epass(ps, q0=None):
        ch = ps - 1; out = []; q = []
        for n in range(96 * ps, 96 * ps + 96):
            fb, kq, ks = seq[n]; L = []
            if ks == 0:
                lg = 8 if n + 12 <= 288 else max(0, 288 - n - 4)
                L.append(f"WAITVM h{ch}{kq} lgkm={lg}" if ps and fb == 0 else f"s_waitcnt lgkmcnt({lg})")
            d = TE(fb) if ps else C1.sub(4 * fb, 4)
            L.append(f"{MF} {d}, {EWn(n)}, {H.sub(16*kq+4*ks,4) if ps else ON}, {'0' if kq == 0 and ks == 0 else d}")
            if n + 12 < 288: L.append(erd(n + 12))
            if n % 96 == q0: q += stats(ch)
            if q and ks != 3: L.append(q.pop(0))
            out.append((L, 18))
        return out + [([x], icost(x)) for x in q]
    def play(items, hooks, mq, gap=76):
        t = 0; nxt = 0
        for n, (L, c) in enumerate(items):
            for x in hooks.pop(n, []):
                if isinstance(x, list): mq[:0] = x; nxt = t
                elif isinstance(x, tuple): mq.extend(x)
                else: k(x)
            k.ext(L); t += c
            if mq and t >= nxt:
                L2 = take_mem(mq); k.ext(L2); nxt = t + (gap if "dwordx4" in L2[-1] else 24); t += 8
        assert not hooks, hooks
    def stats(ch):
        L = Kern("x")
        L(f"WAITVM st{ch}")
        for d in (4, 2, 1):
            for j in range(d): L(f"v_add_f32 {SL[j]}, {SL[j]}, {SL[j+d]}")
        mu, qq, aa, bb = SL[0], SL[1], SL[2], SL[3]
        L(f"v_mov_b32 {qq}, {mu}"); L(f"v_permlane32_swap_b32 {mu}, {qq}"); L(f"v_add_f32 {mu}, {mu}, {qq}")
        L(f"v_mul_f32 {mu}, {f2h(1/512)}, {mu}"); L(f"v_mov_b32 {qq}, {mu}")
        L(f"v_permlane16_swap_b32 {mu}, {qq}")
        L(f"v_fma_f32 {qq}, -{mu}, {mu}, {qq}"); L(f"v_max_f32 {qq}, 0, {qq}")
        L(f"v_add_f32 {aa}, {f2h(1e-5)}, {qq}"); L(f"v_rsq_f32 {aa}, {aa}")
        L(f"v_mul_f32 {bb}, {aa}, {aa}"); L(f"v_mul_f32 {bb}, {bb}, {qq}"); L(f"v_add_f32 {bb}, {f2h(1e-5)}, {bb}")
        L(f"v_rsq_f32 {bb}, {bb}")
        L(f"v_mul_f32 {RM[0]}, {aa}, {bb}"); L(f"v_mul_f32 {RM[1]}, -{mu}, {RM[0]}")
        return L.L
    def gelu(ch, pp):
        ts = [TE(fb).sub(r, 2) for fb in (2 * pp, 2 * pp + 1) for r in (0, 2)]
        cs = [(C1.sub(4 * fb + r, 2), BF.sub(4 * fb + r, 2)) for fb in (2 * pp, 2 * pp + 1) for r in (0, 2)]
        g = [G0.sub(2 * j, 2) for j in range(4)]
        L = [f"v_pk_fma_f32 {g[j]}, {RM}, {cs[j][0]}, {cs[j][1]} op_sel:[1,0,0]" for j in range(4)]
        L += [f"v_pk_fma_f32 {ts[j]}, {RM}, {ts[j]}, {g[j]} op_sel_hi:[0,1,1]" for j in range(4)]
        L += [f"v_pk_mul_f32 {g[j]}, {ts[j]}, {ts[j]}" for j in range(4)]
        L += [f"v_pk_fma_f32 {g[j]}, {g[j]}, {KC.sub(0,2)}, {KC.sub(0,2)} op_sel:[0,0,1] op_sel_hi:[1,0,1]" for j in range(4)]
        L += [f"v_pk_mul_f32 {g[j]}, {g[j]}, {ts[j]}" for j in range(4)]
        L += [f"v_exp_f32 {G0[j]}, {G0[j]}" for j in range(8)]
        L += [f"v_pk_add_f32 {g[j]}, {g[j]}, {KC.sub(2,2)} op_sel_hi:[1,0]" for j in range(4)]
        L += [f"v_rcp_f32 {G0[j]}, {G0[j]}" for j in range(8)]
        L += [f"v_pk_mul_f32 {ts[j]}, {ts[j]}, {g[j]}" for j in range(4)]
        L += pack(PK[pp % 2], TE(2 * pp), TE(2 * pp + 1))
        L += [f"s_add_u32 {st2}, {shm}, {pp*4096}", f"buffer_store_dwordx4 {PK[pp%2]}, {vl16}, {sHM}, {st2} offen {SC} ; tag=mst{ch}"]
        return L
    def gelu_all(ch):
        out = []
        for x in sum((gelu(ch, pp) for pp in range(3)), []):
            if ismem(x): out[-1][0].append(x)
            else: out.append(([x], icost(x)))
        return out
    T_ = dict(p3a=10, b1=40, ppb=72, b2=95, rb=135, b3=190, p3b=300); T_.update(opt.get("T", {}))
    W2E = opt.get("w2e", (0, 2, 2, 3))
    for n in range(12): k(erd(n))
    mq = w2n(W2E[0])
    items = epass(0) + epass(1, q0=60) + gelu_all(0)
    hooks = {T_["p3a"]: [[wpoll("p3a", sflE, F3[0])]],
             T_["b1"]: wcheck("p3a", 16, sflE, F3[0]) + ["WAITVM ps1,w12", "s_barrier", wsig(ssg, vb4s, FP[1])] + stamp("g3a") + [hl(0)],
             T_["ppb"]: [[wpoll("ppb", sflD, FP[1], vp2)]],
             T_["b2"]: wcheck("ppb", 4, sflD, FP[1], vp2) + ["s_barrier"] + pll(1, st2) + stamp("gpb") + [tuple(w2n(W2E[1]))],
             T_["rb"]: red1(1), T_["rb"] + 6: red2(1), T_["rb"] + 12: red3(1) + [tuple(w2n(W2E[2]))],
             T_["b3"]: ["WAITVM hst1", "s_barrier", wsig(sclD, vbc, F3[1])] + stamp("ea") + [tuple(w2n(W2E[3]))],
             min(T_["p3b"], len(items) - 1): [[wpoll("p3b", sflE, F3[1])]]}
    assert T_["b1"] <= 51
    if LATE:
        hooks[T_["b1"]] = ["WAITVM ps1,w12,hst0", "s_barrier", sig3a, wsig(ssg, vb4s, FP[1])]
        hooks[T_["c3a"]] = wcheck("p3a", 16, sflE, F3[0]) + ["s_barrier"] + hl(0)[:10] + [hl(0)[10:]]
    play(items, hooks, mq)
    k.ext(mq)
    k(f"s_mov_b32 {sAct[0]}, {sHM[0]}"); k(f"s_mov_b32 {sAct[1]}, {sHM[1]}"); k(f"s_mov_b32 {sAct[2]}, {43*4096}")
    k(f"s_add_u32 {sHM[0]}, {sHM[0]}, {16*43*4096}"); k(f"s_addc_u32 {sHM[1]}, {sHM[1]}, 0")
    srd(k, sXO, pO[2:4], 2 * MB); srd(k, sB, pO[0:2], 1024)
    k(f"s_lshl_b32 {shf}, {sme}, 2"); k(f"s_lshr_b32 {st0}, {sng}, 3"); k(f"s_lshl_b32 {st0}, {st0}, 1"); k(f"s_add_u32 {shf}, {shf}, {st0}")
    k(f"s_and_b32 {st0}, {swave}, 1"); k(f"s_add_u32 {shf}, {shf}, {st0}"); k(f"s_lshl_b32 {shf}, {shf}, 14")
    k(f"s_and_b32 {st0}, {sng}, 7"); k(f"s_lshl_b32 {st0}, {st0}, 1"); k(f"s_lshr_b32 {st2}, {swave}, 1"); k(f"s_add_u32 {st0}, {st0}, {st2}")
    k(f"s_lshl_b32 {spl}, {st0}, 6"); k(f"s_add_u32 {sxo2}, {shf}, {spl}"); k(f"s_lshl_b32 {st0}, {st0}, 10"); k(f"s_add_u32 {shf}, {shf}, {st0}")
    pool = [a(b_ + 4 * j, 4) for b_ in (16, 144) for j in range(4)] + [v(b_ + 4 * j, 4) for b_, n_ in ((96, 2), (128, 2), (168, 1), (180, 1), (200, 5)) for j in range(n_)] + [a(32 + 4 * j, 4) for j in range(3)]
    Af = lambda s, rb: pool[2 * s + rb]
    HR = [a(44, 4), a(48, 4)]; BRr = a(52, 4)
    def fl(ch, s): return foff(soa, s) + [f"buffer_load_dwordx4 {Af(s,r)}, {vb[r]}, {sAct}, {soa} offen {SC} ; tag=fa{ch}_{s}" for r in range(2)]
    if opt.get("dec", 1):
        k.ext(wcheck("p3b", 16, sflE, F3[1])); k("s_barrier")
        k.ext(stamp("g3b"))
        mq = hl(1)
        for _ in range(opt.get("nh", 8)): k.ext(take_mem(mq))
        k("WAITVM mst0"); k("s_barrier"); k(wsig(sclE, vbc, F4[0]))
        for _ in range(4): k.ext(take_mem(mq))
    else:
        k.ext(wcheck("p3b", 16, sflE, F3[1])); k("WAITVM mst0"); k("s_barrier")
        k(wsig(sclE, vbc, F4[0]))
        k.ext(stamp("g3b"))
        mq = hl(1)
        for _ in range(opt.get("nh", 12)): k.ext(take_mem(mq))
    mq += w2n(len(w2o))
    late = fl(0, 9) + fl(0, 10) + [f"buffer_load_dwordx4 {HR[0]}, {vl16}, {sHF}, {shf} offen {SC} ; tag=fe", f"s_add_u32 {shf}, {shf}, {MB}",
           f"buffer_load_dwordx4 {HR[1]}, {vl16}, {sHF}, {shf} offen {SC} ; tag=fe", f"buffer_load_dwordx4 {BRr}, {vg16}, {sB}, {spl} offen ; tag=fe"]
    eb = epass(2, q0=60)
    P4 = opt.get("p4", 8)
    play(eb + gelu_all(1), {P4: [[wpoll("p4a", sflE, F4[0])]], P4 + 32: wcheck("p4a", 16, sflE, F4[0]) + ["s_barrier", tuple(sum((fl(0, s) for s in range(9)), []))],
                            len(eb): stamp("eb") + [tuple(late)]}, mq)
    k.ext(stamp("gb"))

    FACC = v(160, 8); RD = v(104, 24); OP = PK[0]
    TD = lambda cb, rb: a(88 + ((cb // 2) * 4 + rb * 2 + cb % 2) * 4, 4) if cb // 2 or rb else FACC.sub(4 * cb, 4)
    def fpass(ch, hooks, nf):
        for s in range(11):
            if s in hooks: k.ext(hooks[s])
            need = [f"tag=fa{ch}_{s}"] + (["tag=w2"] if s == 0 else []) + (["tag=fe"] if s == 10 else [])
            while any(x.endswith(t_) for x in mq for t_ in need): k.ext(take_mem(mq))
            k(f"WAITVM fa{ch}_{s}" + (",w2" if s == 0 and ch == 0 else "") + (",fe" if s == 10 and ch == 0 else ""))
            grp = (1, 2, 3, 0) if s == 10 else range(4)
            mf = [f"{MF} {TD(2*(r//2)+t, r%2)}, {W2(s,2*(r//2)+t)}, {Af(s,r%2)}, {'0' if s == 0 else TD(2*(r//2)+t, r%2)}" for r in grp for t in range(2)]
            if s == 10: mf += addfrag(TD(0, 0), TD(1, 0), HR[ch]) + addfrag(TD(0, 0), TD(1, 0), BRr)
            G = Gaps(mf)
            if nf is not None and s + nf < 11:
                L = fl(ch, s + nf)
                for x in L[:-2]: G.put(0, x)
                G.put(1, L[-2]); G.put(5, L[-1])
            for g in (1, 5):
                for x in take_mem(mq): G.put(g if ismem(x) else g - 1, x)
            if s == 10:
                for r in range(1, 4):
                    for t in range(2): G.put(min(2 * r + 4 + t, 11), f"ds_write_b128 {vw[r-1]}, {TD(2*(r//2)+t, r%2)} offset:{ch*24576 + t*1024}")
            G.emit(k)
    def finish(ch, hook=()):
        k("s_waitcnt lgkmcnt(0)"); k("s_barrier")
        for j in range(6): k(f"ds_read_b128 {RD.sub(4*j,4)}, {vrd} offset:{ch*24576 + j*1024}")
        k.ext(hook)
        for p in range(3):
            k(f"s_waitcnt lgkmcnt({4-2*p})")
            for j in range(0, 8, 2): k(f"v_pk_add_f32 {FACC.sub(j,2)}, {FACC.sub(j,2)}, {RD.sub(8*p+j,2)}")
        k.ext(pack(OP, TD(0, 0), TD(1, 0)))
        k(f"buffer_store_dwordx4 {OP}, {vrow}, {sXO}, {sxo2} offen {opt.get('of', '')}")
    fpass(0, {opt.get("s4", 6): ["WAITVM mst1", "s_barrier", wsig(sclE, vbc, F4[1])]}, None)
    finish(0, [wpoll("p4b", sflE, F4[1]), f"s_mov_b32 {sAct[0]}, {sHM[0]}", f"s_mov_b32 {sAct[1]}, {sHM[1]}"])
    k(f"s_add_u32 {sxo2}, {sxo2}, {MB}")
    k.ext(stamp("fa"))
    k.ext(wcheck("p4b", 16, sflE, F4[1])); k("s_barrier")
    k.ext(stamp("g4b"))
    NF = opt.get("nf", 6)
    for s in range(NF): k.ext(fl(1, s))
    fpass(1, {}, NF)
    k.ext(stamp("fmm"))
    finish(1)
    if echo:
        k("s_waitcnt vmcnt(0)"); k.ext(stamp("end"))
        k("s_nop 4"); k(f"v_readlane_b32 {st0}, v0, 0"); k(f"v_readlane_b32 {st1}, v0, 1"); k("s_nop 4")
        k(f"s_sub_u32 {st0}, {st1}, {st0}"); k(f"s_lshl_b32 {st0}, {st0}, 2"); k(f"s_min_u32 {st0}, {st0}, 100000")
        k("s_memrealtime s[100:101]"); k("s_waitcnt lgkmcnt(0)"); k(f"s_mov_b32 {st1}, s100")
        k.label(Lb("echo"))
        k("s_memrealtime s[100:101]"); k("s_waitcnt lgkmcnt(0)"); k(f"s_sub_u32 {st2}, s100, {st1}")
        k(f"s_cmp_lt_u32 {st2}, {st0}"); k(f"s_cbranch_scc1 {Lb('echo')}")
    if dbg:
        k("s_waitcnt vmcnt(0)"); k.ext(stamp("end"))
        srd(k, sW, pWS, MB, WS_DBG)
        k(f"s_lshl_b32 {st0}, s2, 2"); k(f"s_add_u32 {st0}, {st0}, {swave}"); k(f"s_lshl_b32 {st0}, {st0}, 8")
        k(f"v_lshlrev_b32 {t0}, 2, {vlane}")
        k(f"buffer_store_dword v0, {t0}, {sW}, {st0} offen")
    k.label(E)
    k("s_endpgm")
    tail.label(Lb("codeend")); tail("s_endpgm")
    k.L = resolve_waits(k.L) + [x.replace("NOCOUNT ", "") for x in tail.L]
    return k, names

def build(path, **kw):
    import hazard
    k, names = gen(KNAME + "_kernel", **kw)
    k.L, nfix = hazard.fix(k.L, k.name)
    if nfix: print("padded", nfix, "hazards")
    bad = hazard.check(k.L, k.name)
    ref = open("cdna_kernels/" + KNAME + ".s.ref").read().split("\n")
    hdr = "\n".join(ref[:next(n for n, l in enumerate(ref) if l.startswith("; Override"))]) + "\n" + """;
; One persistent launch, 256 workgroups (one per CU) of 4 waves with 512 registers; emitted by my own python generator.
;  1. LayerNorm(x) (8 rows per workgroup), K = c Wuk, V = c Wuv for 256 keys of one head, Q for the 128-row blocks i and 15-i.
;  2. Causal flash attention, 16x16x32 bf16 MFMA. The subtracted maximum starts as the true maximum of the first 16 keys and
;     enters through the C operand; it never exceeds the row maximum, so only overflow is possible. The row sums are checked
;     at the end and a wave whose sum is >= 2^60 or not finite recomputes its rows with the running true maximum.
;  3. Output projection + residual, LayerNorm(LayerNorm(.)) folded around the up projection, GELU(tanh), down projection.
; Hand-offs between workgroups: sc1 stores, vmcnt wait, barrier, counter add; consumers poll, then load with sc1.
; The counters live in d_ws and are cleared inside the launch (announced through d_debug); every poll is bounded.
"""
    open(path, "w").write(build_single(k, 512, 256, 102, 256, 256, 163840, hdr))
    check_file(path)
    if names: open(path[:-2] + ".names", "w").write(" ".join(names))
    return bad

if __name__ == "__main__":
    build("m.s"); build("m_dbg.s", dbg=True); build("m_force.s", thr=0.5)
```
